```python
import torch

def _softmax(x, axis=-1):
    return torch.softmax(x, dim=axis)
def _gelu(x):
    return torch.nn.functional.gelu(x, approximate="tanh")
def _silu(x):
    return torch.nn.functional.silu(x)
def _sigmoid(x):
    return torch.sigmoid(x)
def _layernorm(x, axis=-1, eps=1e-5):
    m = x.mean(dim=axis, keepdim=True)
    v = x.var(dim=axis, keepdim=True, unbiased=False)
    return (x - m) / torch.sqrt(v + eps)
def _scatter_add(tgt, idx, src, axis=0):
    return tgt.clone().index_add_(axis, idx, src)
def _segment_sum(src, seg, n):
    out = torch.zeros((n,) + src.shape[1:], dtype=src.dtype)
    return out.index_add_(0, seg, src)
def _pad(x, pw):
    flat = tuple(v for pair in reversed(pw) for v in pair)
    return torch.nn.functional.pad(x, flat)

kernel_name = 'sequential_preLN__mha_block__glu_gated_bilinear__prompt'

def setup_inputs():

    _w = (lambda a: (lambda t: t.to(torch.bfloat16) if t.is_floating_point() else t)(torch.as_tensor(a)))
    def _A_setup():
        B, S, D, H = 1, 2048, 640, 32
        return {
            "x": _w((lambda *s: torch.randn(*s, dtype=torch.bfloat16) * 0.05)(B, S, D)),
            "wqkv": _w((lambda *s: torch.randn(*s, dtype=torch.bfloat16) * 0.05)(D, 3 * D)),
            "wo": _w((lambda *s: torch.randn(*s, dtype=torch.bfloat16) * 0.05)(D, D)),
        }
    _A_in = _A_setup()

    def _B_setup():
        B, S, D, F = 1, 2048, 640, 1536
        return {
            "x": _w((lambda *s: torch.randn(*s, dtype=torch.bfloat16) * 0.05)(B, S, D)),
            "w_gate": _w((lambda *s: torch.randn(*s, dtype=torch.bfloat16) * 0.8)(D, F) * (D ** -0.5)),
            "w_up": _w((lambda *s: torch.randn(*s, dtype=torch.bfloat16) * 0.8)(D, F) * (D ** -0.5)),
            "w_down": _w((lambda *s: torch.randn(*s, dtype=torch.bfloat16) * 0.8)(F, D) * (F ** -0.5)),
        }
    _B_in = _B_setup()

    return {
        "A_x": _A_in["x"],
        "A_wqkv": _A_in["wqkv"],
        "A_wo": _A_in["wo"],
        "B_x": _B_in["x"],
        "B_w_gate": _B_in["w_gate"],
        "B_w_up": _B_in["w_up"],
        "B_w_down": _B_in["w_down"],
    }

def reference(A_x, A_wqkv, A_wo, B_x, B_w_gate, B_w_up, B_w_down):
    def _A_ref(x, wqkv, wo):
        B, S, D = x.shape
        H = 32
        Dh = D // H
        qkv = (lambda x, *d: x.permute(*d))((x @ wqkv).reshape(B, S, 3, H, Dh), 2, 0, 3, 1, 4)
        q, k, v = qkv[0], qkv[1], qkv[2]
        scores = torch.einsum("bhqd,bhkd->bhqk", q, k) * (Dh ** -0.5)
        p = _softmax(scores, axis=-1)
        o = torch.einsum("bhqk,bhkd->bhqd", p, v)
        return (lambda x, *d: x.permute(*d))(o, 0, 2, 1, 3).reshape(B, S, D) @ wo

    def _B_ref(x, w_gate, w_up, w_down):
        g = torch.einsum("bsd,df->bsf", x, w_gate)
        u = torch.einsum("bsd,df->bsf", x, w_up)
        h = g * u
        return torch.einsum("bsf,fd->bsd", h, w_down)

    x = A_x
    h = x + _A_ref(_layernorm(x, axis=-1), A_wqkv, A_wo)
    h2 = h + _B_ref(_layernorm(h, axis=-1), B_w_gate, B_w_up, B_w_down)
    return h2
```

```python
class Asm:
    def __init__(self):
        self.lines = []
        self.uid = 0
    def __call__(self, s):
        for l in s.split("\n"):
            l = l.strip()
            if not l: continue
            if l.endswith(":") or l.startswith("."):
                self.lines.append(l)
            else:
                self.lines.append("  " + l)
    def label(self, base):
        self.uid += 1
        return f"L_{base}_{self.uid}"
    def text(self):
        return "\n".join(self.lines) + "\n"

def v(i, n=1):
    return f"v{i}" if n == 1 else f"v[{i}:{i+n-1}]"
def s(i, n=1):
    return f"s{i}" if n == 1 else f"s[{i}:{i+n-1}]"

def kernel_begin(a, name, align=8):
    a(f".text\n.globl {name}\n.p2align {align}\n.type {name},@function\n{name}:")

def kernel_desc(a, name, nvgpr, nsgpr=96, accum=None):
    if accum is None:
        accum = min(256, (nvgpr + 3) // 4 * 4)
    a(f""".section .rodata,"a"
.p2align 6
.amdhsa_kernel {name}
.amdhsa_next_free_vgpr {nvgpr}
.amdhsa_next_free_sgpr {nsgpr}
.amdhsa_accum_offset {accum}
.amdhsa_group_segment_fixed_size 0
.amdhsa_kernarg_size 80
.amdhsa_user_sgpr_count 2
.amdhsa_user_sgpr_kernarg_segment_ptr 1
.amdhsa_system_sgpr_workgroup_id_x 1
.end_amdhsa_kernel""")

def srd(a, d, base, nbytes, off=0):
    if off:
        a(f"s_add_u32 s{d}, s{base}, {off}")
        a(f"s_addc_u32 s{d+1}, s{base+1}, 0")
    else:
        a(f"s_mov_b32 s{d}, s{base}")
        a(f"s_mov_b32 s{d+1}, s{base+1}")
    a(f"s_mov_b32 s{d+2}, {nbytes}")
    a(f"s_mov_b32 s{d+3}, 0x20000")

import struct
def f32(x):
    return "0x%08x" % struct.unpack("<I", struct.pack("<f", x))[0]

def interleave(main, fill):
    out = []
    n, m = len(main), len(fill)
    k = 0
    for i, x in enumerate(main):
        out.append(x)
        want = (i + 1) * m // n
        while k < want:
            out.append(fill[k]); k += 1
    return out

import os
PROF = int(os.environ.get("PROF", "0"))
WS_PROF = 0x3000000
class Prof:
    def __init__(self, a, kid, base=64, vtmp=250):
        self.a, self.kid, self.base, self.n, self.vtmp = a, kid, base, 0, vtmp
    def start(self):
        if not PROF: return
        self.a(f"s_memrealtime s[{self.base}:{self.base+1}]")
        self.a(f"s_memtime s[{self.base+2}:{self.base+3}]")
        self.n = 2
    def stamp(self, idx):
        if not PROF: return
        b = self.base + 4 + 2*idx
        self.a(f"s_memtime s[{b}:{b+1}]")
        self.a("s_waitcnt lgkmcnt(0)")
    def flush(self, nst, wsreg, wavereg=None):
        if not PROF: return
        a = self.a; b = self.base; t = self.vtmp
        e = b + 4 + 2*nst
        a("s_waitcnt vmcnt(0)")
        a(f"s_memtime s[{e}:{e+1}]")
        a(f"s_memrealtime s[{e+2}:{e+3}]")
        a("s_waitcnt lgkmcnt(0)")
        a(f"s_mov_b64 exec, -1")
        a(f"s_lshl_b32 s{e+4}, s2, 3")
        a(f"s_add_u32 s{e+4}, s{e+4}, s{wavereg}")
        a(f"s_lshl_b32 s{e+4}, s{e+4}, 7")
        a(f"s_add_u32 s{e+4}, s{e+4}, {WS_PROF + self.kid*0x40000}")
        a(f"s_add_u32 s{e+4}, s{e+4}, s{wsreg}")
        a(f"s_addc_u32 s{e+5}, s{wsreg+1}, 0")
        a(f"v_mov_b32 v{t}, 0")
        for i in range(nst + 4):
            a(f"v_mov_b32 v{t+1}, s{b+2*i}")
            a(f"global_store_dword v{t}, v{t+1}, s[{e+4}:{e+5}] offset:{4*i}")
        a(f"s_getreg_b32 s{e+6}, hwreg(HW_REG_XCC_ID)")
        a(f"v_mov_b32 v{t+1}, s{e+6}")
        a(f"global_store_dword v{t}, v{t+1}, s[{e+4}:{e+5}] offset:124")
        a("s_waitcnt vmcnt(0)")
```

```python
from asmlib import *
from layout import *

K1_STAGE = 16*1040 + 16384
K1_BOFF = 16*1040
K1_STATS = 4*K1_STAGE
K1_LDS = K1_STATS + 1536

EXP = int(os.environ.get('EXP','0'))
def gen_k1(a, name="k1_qkv_kernel"):
    kernel_begin(a, name)
    SX, SW, SO = 8, 12, 16
    rb, cb, wv = 22, 23, 24
    soffA, soffB, dst_st, rd_st, cnt = 25, 26, 27, 28, 29
    wr, wc = 30, 31
    t0, t1, t2 = 32, 33, 34
    so0, so1 = 35, 36
    m0A, m0B = 37, 38
    rscale = 39
    kc, baseA, baseB, himask = 40, 41, 42, 43
    vA = [4,5,6,7]; vB = [8,9,10,11]
    aBase = [12,13]; bBase = [14,15]
    aCur = [16,17]; bCur = [18,19]
    vsq, vsum, vcs, vones, utmp = 206, 208, 212, 20, 216
    eaddr = list(range(24, 32))
    FA = lambda st, i: 32 + st*8 + i*4
    FB = lambda st, i: 48 + st*8 + i*4
    ACC = lambda ai, bi: 64 + (ai*2 + bi)*16
    lane, r, h, tmp, tmp2, tmp3 = 128, 129, 130, 131, 132, 133
    done = a.label("k1done")
    P = Prof(a, 0, 64, 250)
    P.start()
    a(f"s_load_dwordx4 s[4:7], s[0:1], {KA_X}")
    a(f"s_load_dwordx2 s[20:21], s[0:1], {KA_WS}")
    a(f"s_cmp_ge_u32 s2, 256")
    a(f"s_cbranch_scc1 {done}")
    a(f"s_and_b32 s{t0}, s2, 3")
    a(f"s_lshl_b32 s{rb}, s{t0}, 2")
    a(f"s_bfe_u32 s{t0}, s2, 0x20003")
    a(f"s_add_u32 s{rb}, s{rb}, s{t0}")
    a(f"s_bfe_u32 s{t0}, s2, 0x10002")
    a(f"s_lshl_b32 s{cb}, s{t0}, 3")
    a(f"s_lshr_b32 s{t0}, s2, 5")
    a(f"s_add_u32 s{cb}, s{cb}, s{t0}")
    a(f"s_cmp_ge_u32 s{cb}, 15")
    a(f"s_cbranch_scc1 {done}")
    a(f"v_lshrrev_b32 v1, 6, v0")
    a(f"v_and_b32 v{lane}, 63, v0")
    a(f"v_readfirstlane_b32 s{wv}, v1")
    a(f"v_lshrrev_b32 v{tmp}, 5, v{lane}")
    a(f"v_lshlrev_b32 v{tmp}, 5, v{tmp}")
    a(f"v_bfe_u32 v{tmp2}, v{lane}, 3, 1")
    a(f"v_add_u32 v{tmp}, v{tmp}, v{tmp2}")
    a(f"v_and_b32 v{tmp2}, 16, v{lane}")
    a(f"v_add_u32 v{tmp}, v{tmp}, v{tmp2}")
    a(f"s_lshr_b32 s{wr}, s{wv}, 1")
    a(f"s_and_b32 s{wc}, s{wv}, 1")
    a(f"s_lshl_b32 s{t0}, s{wr}, 6")
    a(f"s_lshl_b32 s{t1}, s{wc}, 3")
    a(f"s_add_u32 s{t0}, s{t0}, s{t1}")
    a(f"v_add_u32 v{tmp}, s{t0}, v{tmp}")
    a(f"v_mul_u32_u24 v{tmp}, 1280, v{tmp}")
    a(f"v_and_b32 v{tmp2}, 7, v{lane}")
    a(f"v_lshl_add_u32 v{vA[0]}, v{tmp2}, 4, v{tmp}")
    for i in range(1, 4):
        a(f"v_add_u32 v{vA[i]}, {i*(2*1280 - 1040)}, v{vA[0]}")
    a(f"v_lshrrev_b32 v{tmp}, 4, v{lane}")
    a(f"v_lshlrev_b32 v{tmp2}, 2, v{tmp}")
    a(f"v_and_b32 v{tmp3}, 15, v{lane}")
    a(f"v_xor_b32 v{tmp2}, v{tmp2}, v{tmp3}")
    a(f"s_lshl_b32 s{t0}, s{wv}, 4")
    a(f"v_add_u32 v{tmp}, s{t0}, v{tmp}")
    a(f"v_mul_u32_u24 v{tmp}, 3840, v{tmp}")
    a(f"v_lshl_add_u32 v{vB[0]}, v{tmp2}, 4, v{tmp}")
    for i in range(1, 4):
        a(f"v_add_u32 v{vB[i]}, {i*(4*3840 - 1024)}, v{vB[0]}")
    a(f"s_bfe_u32 s{t0}, s2, 0x20003")
    a(f"s_mul_i32 s{t0}, s{t0}, 3")
    a(f"s_lshr_b32 s{t1}, s2, 5")
    a(f"s_add_u32 s{kc}, s{t0}, s{t1}")
    a(f"s_sub_u32 s{t0}, s{kc}, 10")
    a(f"s_cmp_ge_u32 s{kc}, 10")
    a(f"s_cselect_b32 s{kc}, s{t0}, s{kc}")
    a(f"s_mul_i32 s{baseA}, s{rb}, {128*1280}")
    a(f"s_lshl_b32 s{baseB}, s{cb}, 8")
    a(f"s_mul_i32 s{m0A}, s{wv}, {4*1040}")
    a(f"s_lshl_b32 s{m0B}, s{wv}, 12")
    a(f"s_add_u32 s{m0B}, s{m0B}, {K1_BOFF}")
    P.stamp(5)
    a(f"s_waitcnt lgkmcnt(0)")
    P.stamp(6)
    srd(a, SX, 4, S*D*2)
    srd(a, SW, 6, D*3*D*2)
    def dmaA():
        return [f"buffer_load_dwordx4 v{vA[i]}, s[{SX}:{SX+3}], s{soffA} offen offset:{1040*i} lds" for i in range(4)]
    def dmaB():
        return [f"buffer_load_dwordx4 v{vB[i]}, s[{SW}:{SW+3}], s{soffB} offen offset:{1024*i} lds" for i in range(4)]
    def offs():
        return [f"s_lshl_b32 s{soffA}, s{kc}, 7", f"s_add_u32 s{soffA}, s{soffA}, s{baseA}",
                f"s_mul_i32 s{soffB}, s{kc}, {64*3840}", f"s_add_u32 s{soffB}, s{soffB}, s{baseB}",
                f"s_add_u32 s{kc}, s{kc}, 1", f"s_cmp_eq_u32 s{kc}, 10", f"s_cselect_b32 s{kc}, 0, s{kc}"]
    for c in range(3):
        a(f"s_add_u32 m0, s{m0A}, {c*K1_STAGE}")
        for x in offs(): a(x)
        for x in dmaA(): a(x)
        a(f"s_add_u32 m0, s{m0B}, {c*K1_STAGE}")
        a("s_nop 0")
        for x in dmaB(): a(x)
    for x in offs(): a(x)
    P.stamp(7)
    a(f"s_mov_b32 s{dst_st}, {3*K1_STAGE}")
    a(f"s_mov_b32 s{rd_st}, 0")
    a(f"v_and_b32 v{r}, 31, v{lane}")
    a(f"v_lshrrev_b32 v{h}, 5, v{lane}")
    a(f"v_bfe_u32 v{tmp}, v{r}, 1, 3")
    a(f"v_mul_u32_u24 v{tmp}, 1040, v{tmp}")
    a(f"v_and_b32 v{tmp2}, 1, v{r}")
    a(f"v_lshl_add_u32 v{tmp}, v{tmp2}, 7, v{tmp}")
    a(f"v_lshrrev_b32 v{tmp2}, 4, v{r}")
    a(f"v_lshl_add_u32 v{tmp}, v{tmp2}, 8, v{tmp}")
    a(f"v_lshl_add_u32 v{tmp}, v{h}, 4, v{tmp}")
    a(f"s_mul_i32 s{t0}, s{wr}, {8*1040}")
    a(f"s_lshl_b32 s{t1}, s{wc}, 9")
    a(f"s_add_u32 s{t2}, s{t0}, s{t1}")
    a(f"v_add_u32 v{aBase[0]}, s{t2}, v{tmp}")
    a(f"s_xor_b32 s{t1}, s{t1}, 512")
    a(f"s_add_u32 s{t2}, s{t0}, s{t1}")
    a(f"v_add_u32 v{aBase[1]}, s{t2}, v{tmp}")
    a(f"v_bfe_u32 v{tmp}, v{lane}, 2, 2")
    a(f"v_lshl_add_u32 v{tmp2}, v{h}, 3, v{tmp}")
    a(f"v_lshlrev_b32 v{tmp2}, 8, v{tmp2}")
    a(f"v_bfe_u32 v{tmp3}, v{lane}, 4, 1")
    a(f"v_lshl_add_u32 v{tmp2}, v{tmp3}, 5, v{tmp2}")
    a(f"v_and_b32 v{tmp3}, 3, v{lane}")
    a(f"v_lshl_add_u32 v{tmp2}, v{tmp3}, 3, v{tmp2}")
    a(f"v_add_u32 v{tmp2}, {K1_BOFF}, v{tmp2}")
    a(f"s_lshl_b32 s{t0}, s{wc}, 1")
    a(f"s_add_u32 s{t0}, s{t0}, s{wr}")
    a(f"v_xor_b32 v{tmp3}, s{t0}, v{tmp}")
    a(f"v_lshl_add_u32 v{bBase[0]}, v{tmp3}, 6, v{tmp2}")
    a(f"v_xor_b32 v{tmp3}, 1, v{tmp3}")
    a(f"v_lshl_add_u32 v{bBase[1]}, v{tmp3}, 6, v{tmp2}")
    for i in range(2):
        a(f"v_mov_b32 v{aCur[i]}, v{aBase[i]}")
        a(f"v_mov_b32 v{bCur[i]}, v{bBase[i]}")
    for i in range(10):
        a(f"v_mov_b32 v{vsq+i}, 0")
    a(f"v_lshrrev_b32 v{tmp}, 2, v{lane}")
    a(f"v_xor_b32 v{tmp}, v{tmp}, v{lane}")
    a(f"v_bfe_i32 v{tmp}, v{tmp}, 2, 1")
    a(f"v_mov_b32 v{vones}, 0x3f803f80")
    a(f"v_bfi_b32 v{vones}, v{tmp}, 0, v{vones}")
    for i in range(1, 4):
        a(f"v_mov_b32 v{vones+i}, v{vones}")
    a(f"s_mov_b32 s{himask}, 0xffff0000")
    for i in range(64):
        a(f"v_mov_b32 v{64+i}, 0")
    a(f"s_lshl_b32 s{t0}, s{rb}, 2")
    a(f"s_lshl_b32 s{t1}, s{wr}, 1")
    a(f"s_add_u32 s{t0}, s{t0}, s{t1}")
    a(f"s_add_u32 s{so0}, s{t0}, s{wc}")
    a(f"s_xor_b32 s{so1}, s{so0}, 1")
    a(f"s_mov_b32 s{cnt}, 0")

    def reads(step, st):
        out = []
        for i in range(2):
            out.append(f"ds_read_b128 {v(FA(st,i),4)}, v{aCur[i]} offset:{step*32}")
            for t in range(2):
                out.append(f"ds_read_b64_tr_b16 {v(FB(st,i)+2*t,2)}, v{bCur[i]} offset:{(16*step+4*t)*256}")
        return out
    def dots(st):
        out = []
        for k in range(4):
            u = utmp + 2*k
            out.append(f"v_lshlrev_b32 v{u}, 16, v{FA(st,0)+k}")
            out.append(f"v_and_b32 v{u+1}, s{himask}, v{FA(st,0)+k}")
        o2 = []
        for k in range(4):
            u = utmp + 2*k
            o2.append(f"v_fmac_f32 v{vsq}, v{u}, v{u}")
            o2.append(f"v_fmac_f32 v{vsq+1}, v{u+1}, v{u+1}")
        return out[:4] + o2[:2] + out[4:6] + o2[2:4] + out[6:] + o2[4:]
    def mainloop(vmode):
        lp = a.label("k1loop")
        P.stamp(0)
        a(f"s_waitcnt vmcnt(16)")
        a(f"s_barrier")
        P.stamp(1)
        for x in reads(0, 0): a(x)
        a(f".p2align 6")
        a(f"{lp}:")
        dA, dB = dmaA(), dmaB()
        for step in range(4):
            st = step & 1
            mf = []
            for ai in range(2):
                for bi in range(2):
                    A_, B_ = (FA(st,ai), FB(st,bi)) if vmode else (FB(st,bi), FA(st,ai))
                    mf.append(f"v_mfma_f32_32x32x16_bf16 {v(ACC(ai,bi),16)}, {v(A_,4)}, {v(B_,4)}, {v(ACC(ai,bi),16)}")
            cs = f"v_mfma_f32_16x16x32_bf16 {v(vcs,4)}, {v(vones,4)}, {v(FB(st,0),4)}, {v(vcs,4)}"
            sm = f"v_mfma_f32_16x16x32_bf16 {v(vsum,4)}, {v(vones,4)}, {v(FA(st,0),4)}, {v(vsum,4)}"
            d = dots(st)
            a("s_waitcnt lgkmcnt(0)")
            if step == 0:
                e0 = [f"s_add_u32 m0, s{m0A}, s{dst_st}", f"s_cmp_lt_u32 s{cnt}, 7", f"s_cselect_b32 s{SX+2}, {S*D*2}, 0", f"s_cselect_b32 s{SW+2}, {D*3*D*2}, 0"]
                e1, e2 = [dA[0]], [dA[1]]
            elif step == 1:
                e0 = [dA[2]]
                e1 = []
                e2 = [dA[3], f"s_add_u32 m0, s{m0B}, s{dst_st}", f"s_mov_b32 s{dst_st}, s{rd_st}"]
            elif step == 2:
                e0 = [dB[0], f"s_add_u32 s{rd_st}, s{rd_st}, {K1_STAGE}", f"s_cmp_eq_u32 s{rd_st}, {4*K1_STAGE}", f"s_cselect_b32 s{rd_st}, 0, s{rd_st}"]
                e1 = [dB[1], f"s_add_u32 s{cnt}, s{cnt}, 1"]
                e2 = [dB[2]] + [f"v_add_u32 v{aCur[i]}, s{rd_st}, v{aBase[i]}" for i in range(2)] + [f"v_add_u32 v{bCur[i]}, s{rd_st}, v{bBase[i]}" for i in range(2)]
            if step < 3:
                rd = reads(step+1, st^1)
                seq = [mf[0]] + rd[:3] + d[:3] + [mf[1]] + rd[3:] + e0 + d[3:5] + [cs] + d[5:7] + [mf[2]] + e1 + d[7:12] + [mf[3]] + d[12:] + e2 + [sm]
            else:
                rd = reads(0, st^1)
                seq = [mf[0], dB[3], "s_waitcnt vmcnt(16)", "s_barrier"] + rd[:3] + [mf[1]] + rd[3:] + d[:4] + [cs] + d[4:6] + [mf[2]] + d[6:12] + [mf[3]] + d[12:] + [sm] + offs() + [f"s_cmp_lt_u32 s{cnt}, 10", f"s_cbranch_scc1 {lp}"]
            for x in seq:
                if EXP == 1 and x.startswith("buffer_load"): continue
                if EXP == 2 and (x.startswith("v_") or x.startswith("ds_read")): continue
                a(x)
    def stats():
        P.stamp(2)
        a("s_nop 4")
        a(f"v_add_f32 v{vsq}, v{vsq}, v{vsq+1}")
        for x in (vsq,):
            a(f"v_mov_b32 v{tmp}, v{x}")
            a("s_nop 1")
            a(f"v_permlane32_swap_b32 v{tmp}, v{x}")
            a("s_nop 1")
            a(f"v_add_f32 v{x}, v{x}, v{tmp}")
        a(f"v_mul_f32 v{vsum}, {f32(1.0/D)}, v{vsum}")
        a(f"v_mul_f32 v{vsq}, {f32(1.0/D)}, v{vsq}")
        a(f"v_fma_f32 v{vsq}, -v{vsum}, v{vsum}, v{vsq}")
        a(f"v_max_f32 v{vsq}, 0, v{vsq}")
        a(f"v_add_f32 v{vsq}, {f32(EPS)}, v{vsq}")
        a(f"v_rsq_f32 v{vsq}, v{vsq}")
        a(f"v_sub_f32 v{vsum}, 0, v{vsum}")
        a(f"s_lshl_b32 s{t0}, s{wv}, 7")
        a(f"s_add_u32 s{t0}, s{t0}, {K1_STATS}")
        a(f"v_lshl_add_u32 v{tmp}, v{r}, 2, s{t0}")
        a(f"v_mul_f32 v{vsq}, s{rscale}, v{vsq}")
        a(f"s_lshl_b32 s{t0}, s{wc}, 8")
        a(f"s_lshl_b32 s{t1}, s{wr}, 7")
        a(f"s_add_u32 s{t0}, s{t0}, s{t1}")
        a(f"s_add_u32 s{t0}, s{t0}, {K1_STATS+1024}")
        a(f"v_lshl_add_u32 v{tmp2}, v{r}, 2, s{t0}")
        a(f"ds_write_b32 v{tmp}, v{vsq}")
        a(f"ds_write_b32 v{tmp}, v{vsum} offset:512")
        a(f"ds_write_b32 v{tmp2}, v{vcs}")
        a(f"s_waitcnt lgkmcnt(0)")
        a(f"s_barrier")
        P.stamp(3)

    lV = a.label("k1v")
    a(f"s_cmp_ge_u32 s{cb}, 10")
    a(f"s_cbranch_scc1 {lV}")
    a(f"s_cmp_ge_u32 s{cb}, 5")
    a(f"s_cselect_b32 s{t0}, 5, 0")
    a(f"s_sub_u32 s{t0}, s{cb}, s{t0}")
    a(f"s_cmp_ge_u32 s{cb}, 5")
    a(f"s_cselect_b32 s{t1}, 1, 0")
    a(f"s_cselect_b32 s{rscale}, 1.0, {f32(QSCALE)}")
    a(f"s_cselect_b32 s{SO}, {WS_KV}, {WS_Q}")
    a(f"s_lshl_b32 s{SO+2}, {SZ_Q}, s{t1}")
    a(f"s_lshl_b32 s{t2}, 81920, s{t1}")
    a(f"s_sub_u32 s{t2}, s{t2}, 1280")
    a(f"s_lshl_b32 s{t1}, 1280, s{t1}")
    a(f"s_add_u32 s{SO}, s{SO}, s20")
    a(f"s_addc_u32 s{SO+1}, s21, 0")
    a(f"s_mov_b32 s{SO+3}, 0x20000")
    a(f"s_mul_i32 s{so0}, s{so0}, s{t1}")
    a(f"s_mul_i32 s{so1}, s{so1}, s{t1}")
    a(f"s_lshl_b32 s{t0}, s{t0}, 5")
    a(f"s_lshl_b32 s{t1}, s{wc}, 4")
    a(f"s_add_u32 s{t0}, s{t0}, s{t1}")
    a(f"s_lshl_b32 s{t1}, s{wr}, 3")
    a(f"s_add_u32 s{t0}, s{t0}, s{t1}")
    a(f"v_lshlrev_b32 v{tmp3}, 3, v{r}")
    for bi in range(2):
        if bi == 1:
            a(f"s_xor_b32 s{t0}, s{t0}, 8")
        for g in range(4):
            e = eaddr[bi*4+g]
            a(f"v_add3_u32 v{tmp}, s{t0}, v{h}, {2*g}")
            a(f"v_mul_u32_u24 v{tmp2}, 205, v{tmp}")
            a(f"v_lshrrev_b32 v{tmp2}, 10, v{tmp2}")
            a(f"v_lshl_add_u32 v{e}, v{tmp}, 8, v{tmp3}")
            a(f"v_mad_u32_u24 v{e}, v{tmp2}, s{t2}, v{e}")
    mainloop(False)
    stats()
    RM = [134, 136]
    CS = 140
    a(f"v_xor_b32 v{tmp3}, 128, v{tmp}")
    a(f"ds_read_b32 v134, v{tmp}")
    a(f"ds_read_b32 v136, v{tmp} offset:512")
    a(f"ds_read_b32 v138, v{tmp3}")
    a(f"ds_read_b32 v172, v{tmp3} offset:512")
    Rr = [134, 138]; Mr = [136, 172]
    a(f"v_lshl_add_u32 v{tmp2}, v{h}, 4, s{t0}")
    a(f"v_xor_b32 v{tmp3}, 128, v{tmp2}")
    for bi in range(2):
        for g in range(4):
            a(f"ds_read_b128 {v(CS+bi*16+g*4,4)}, v{tmp2 if bi==0 else tmp3} offset:{g*32}")
    a(f"s_waitcnt lgkmcnt(0)")
    for ai in range(2):
        for bi in range(2):
            A0 = ACC(ai,bi)
            for p in range(8):
                a(f"v_pk_fma_f32 {v(A0+2*p,2)}, {v(CS+bi*16+2*p,2)}, {v(Mr[ai],2)}, {v(A0+2*p,2)} op_sel_hi:[1,0,1]")
            for p in range(8):
                a(f"v_pk_mul_f32 {v(A0+2*p,2)}, {v(A0+2*p,2)}, {v(Rr[ai],2)} op_sel_hi:[1,0]")
            for p in range(8):
                a(f"v_cvt_pk_bf16_f32 v{A0+p}, v{A0+2*p}, v{A0+2*p+1}")
            for g in range(4):
                a(f"buffer_store_dwordx2 {v(A0+2*g,2)}, v{eaddr[bi*4+g]}, s[{SO}:{SO+3}], s{so0 if ai==0 else so1} offen")
    P.stamp(4)
    P.flush(8, 20, wv)
    a("s_endpgm")
    a(f"{lV}:")
    srd(a, SO, 20, SZ_KV, WS_KV)
    a(f"s_mov_b32 s{rscale}, 1.0")
    a(f"s_mul_i32 s{so0}, s{so0}, 2560")
    a(f"s_mul_i32 s{so1}, s{so1}, 2560")
    a(f"s_sub_u32 s{t0}, s{cb}, 10")
    a(f"s_lshl_b32 s{t0}, s{t0}, 7")
    a(f"s_lshl_b32 s{t1}, s{wc}, 6")
    a(f"s_add_u32 s{t0}, s{t0}, s{t1}")
    a(f"s_lshl_b32 s{t1}, s{wr}, 5")
    a(f"s_add_u32 s{t0}, s{t0}, s{t1}")
    a(f"s_mov_b32 s{t2}, {163840-320}")
    a(f"v_mul_u32_u24 v{tmp3}, 320, v{h}")
    a(f"v_add_u32 v{tmp3}, 1280, v{tmp3}")
    for bi in range(2):
        if bi == 1:
            a(f"s_xor_b32 s{t0}, s{t0}, 32")
        e = eaddr[bi]
        a(f"v_add_u32 v{tmp}, s{t0}, v{r}")
        a(f"v_mul_u32_u24 v{tmp2}, 205, v{tmp}")
        a(f"v_lshrrev_b32 v{tmp2}, 12, v{tmp2}")
        a(f"v_lshl_add_u32 v{e}, v{tmp}, 4, v{tmp3}")
        a(f"v_mad_u32_u24 v{e}, v{tmp2}, s{t2}, v{e}")
    mainloop(True)
    stats()
    a(f"v_xor_b32 v{tmp3}, 128, v{tmp2}")
    a(f"ds_read_b32 v134, v{tmp2}")
    a(f"ds_read_b32 v136, v{tmp3}")
    Cr = [134, 136]
    RR, MM = 140, 172
    a(f"s_lshl_b32 s{t0}, s{wv}, 7")
    a(f"s_add_u32 s{t0}, s{t0}, {K1_STATS}")
    a(f"v_lshl_add_u32 v{tmp}, v{h}, 4, s{t0}")
    a(f"v_xor_b32 v{tmp3}, 128, v{tmp}")
    for ai in range(2):
        for g in range(4):
            a(f"ds_read_b128 {v(MM+ai*16+g*4,4)}, v{tmp if ai==0 else tmp3} offset:{512+g*32}")
        for g in range(4):
            a(f"ds_read_b128 {v(RR+ai*16+g*4,4)}, v{tmp if ai==0 else tmp3} offset:{g*32}")
    a(f"s_waitcnt lgkmcnt(0)")
    for ai in range(2):
        for bi in range(2):
            A0 = ACC(ai,bi)
            for p in range(8):
                a(f"v_pk_fma_f32 {v(A0+2*p,2)}, {v(MM+ai*16+2*p,2)}, {v(Cr[bi],2)}, {v(A0+2*p,2)} op_sel_hi:[1,0,1]")
            for p in range(8):
                a(f"v_pk_mul_f32 {v(A0+2*p,2)}, {v(A0+2*p,2)}, {v(RR+ai*16+2*p,2)}")
            for p in range(8):
                a(f"v_cvt_pk_bf16_f32 v{A0+p}, v{A0+2*p}, v{A0+2*p+1}")
            for g in range(2):
                a(f"buffer_store_dwordx4 {v(A0+4*g,4)}, v{eaddr[bi]}, s[{SO}:{SO+3}], s{so0 if ai==0 else so1} offen offset:{640*g}")
    P.stamp(4)
    P.flush(8, 20, wv)
    a(f"{done}:")
    a("s_endpgm")
    kernel_desc(a, name, 256 if PROF else 224, 96)
    return dict(name=name, grid=256, block=256, lds=K1_LDS)
```

```python
from asmlib import *
from layout import *

K2_LDS = 163840
EXP = int(os.environ.get('EXP2','0'))
PRIO = int(os.environ.get('PRIO','1'))
STF = os.environ.get('STF','')
def gen_k2(a, name="k2_attn_kernel"):
    kernel_begin(a, name)
    P = Prof(a, 1, 64, 250)
    SKV, SQ, SO, SW = 8, 12, 16, 24
    WS = 20
    head, wv, it, hooklim, grp = 28, 29, 30, 31, 32
    t0, t1, t2, t3 = 33, 34, 35, 36
    vmask = 38
    st1, st2, st3, sX, ssh, task = 40, 41, 42, 43, 44, 45
    qt = 46
    PW = 48
    lane, kaddr, vaddr, dvoff, kbase, vbase = 1, 2, 3, 4, 5, 6
    tmp, tmp2, tmp3, tmp4 = 8, 9, 10, 11
    Q1, Q2 = 12, 16
    K1_, K2_ = 20, 24
    VB = [28, 148]
    PP = 36
    NEG = 48; SA = 64; SB = 80; O = 96
    RL = 112
    RO = 128
    ra, rb_, ro = 144, 145, 146
    done = a.label("k2done")
    P.start()
    a(f"s_load_dwordx2 s[{WS}:{WS+1}], s[0:1], {KA_WS}")
    a(f"s_load_dwordx2 s[48:49], s[0:1], {KA_WO}")
    a(f"s_load_dwordx4 s[52:55], s[0:1], {KA_WG}")
    a(f"s_load_dwordx2 s[56:57], s[0:1], {KA_WD}")
    a(f"s_cmp_ge_u32 s2, 256")
    a(f"s_cbranch_scc1 {done}")
    a(f"v_lshrrev_b32 v{tmp}, 6, v0")
    a(f"v_and_b32 v{lane}, 63, v0")
    a(f"s_and_b32 s{head}, s2, 7")
    a(f"v_readfirstlane_b32 s{wv}, v{tmp}")
    a(f"s_lshl_b32 s{head}, s{head}, 2")
    a(f"s_bfe_u32 s{t0}, s2, 0x20003")
    a(f"s_add_u32 s{head}, s{head}, s{t0}")
    a(f"v_lshlrev_b32 v{dvoff}, 4, v{lane}")
    a(f"v_and_b32 v{tmp}, 31, v{lane}")
    a(f"v_lshrrev_b32 v{tmp2}, 5, v{lane}")
    a(f"v_lshlrev_b32 v{kbase}, 3, v{tmp}")
    a(f"v_lshl_add_u32 v{kbase}, v{tmp2}, 9, v{kbase}")
    a(f"s_lshr_b32 s{qt}, s2, 5")
    a(f"s_lshl_b32 s{qt}, s{qt}, 3")
    a(f"s_add_u32 s{qt}, s{qt}, s{wv}")
    a(f"s_mul_i32 s{t0}, s{head}, 163840")
    a(f"s_add_u32 s{t0}, s{t0}, {WS_KV}")
    a(f"s_mul_i32 s{t1}, s{head}, 81920")
    a(f"s_mul_i32 s{t2}, s{qt}, 1280")
    a(f"s_add_u32 s{t1}, s{t1}, s{t2}")
    a(f"s_lshl_b32 s{grp}, s{wv}, 11")
    a(f"s_mov_b32 m0, s{grp}")
    a(f"v_mov_b32 v{Q2}, 0")
    a(f"v_mov_b32 v{Q2+1}, 0")
    a(f"s_waitcnt lgkmcnt(0)")
    a(f"s_add_u32 s{SKV}, s{WS}, s{t0}")
    a(f"s_addc_u32 s{SKV+1}, s{WS+1}, 0")
    a(f"s_mov_b32 s{SKV+2}, 163840")
    a(f"s_mov_b32 s{SKV+3}, 0x20000")
    srd(a, SQ, WS, SZ_Q, WS_Q)
    def dma():
        a(f"buffer_load_dwordx4 v{dvoff}, s[{SKV}:{SKV+3}], s{grp} offen lds")
        a(f"buffer_load_dwordx4 v{dvoff}, s[{SKV}:{SKV+3}], s{grp} offen offset:1024 lds")
        a(f"s_add_u32 s{grp}, s{grp}, 16384")
        a(f"s_mov_b32 m0, s{grp}")
    a(f"buffer_load_dwordx2 {v(Q1,2)}, v{kbase}, s[{SQ}:{SQ+3}], s{t1} offen")
    a(f"buffer_load_dwordx2 {v(Q1+2,2)}, v{kbase}, s[{SQ}:{SQ+3}], s{t1} offen offset:256")
    a(f"s_mov_b32 exec_hi, 0")
    a(f"buffer_load_dwordx2 {v(Q2,2)}, v{kbase}, s[{SQ}:{SQ+3}], s{t1} offen offset:1024")
    a(f"s_mov_b64 exec, -1")
    dma()
    a("s_nop 0")
    dma()
    a(f"v_mul_u32_u24 v{vbase}, 320, v{tmp2}")
    a(f"v_lshl_add_u32 v{vbase}, v{tmp}, 4, v{vbase}")
    a(f"v_add_u32 v{vbase}, 1280, v{vbase}")
    a(f"s_mov_b32 s{vmask}, 0xfffff")
    a(f"s_mov_b32 s{vmask+1}, 0xfffff")
    for i in range(8):
        a(f"v_mov_b32 v{VB[0]+i}, 0x3f803f80")
        a(f"v_mov_b32 v{VB[1]+i}, 0x3f803f80")
    a(f"s_mov_b32 s{hooklim}, 10")
    a(f"s_cmp_lt_u32 s{wv}, 4")
    a(f"s_cselect_b64 vcc, -1, 0")
    a(f"s_setprio 1")
    srd(a, SQ, WS, SZ_OF, WS_OF)
    srd(a, SO, WS, WS_WD + SZ_WD - WS_WO, WS_WO)
    a(f"v_mov_b32 v{ro}, 0")
    a(f"s_mov_b32 s{sX}, 0")
    a(f"s_mov_b32 s{task}, 2048")
    def readK(off):
        return [f"ds_read_b64 {v(K1_,2)}, v{kaddr} offset:{off}",
                f"ds_read_b64 {v(K1_+2,2)}, v{kaddr} offset:{off+256}",
                f"ds_read_b64 {v(K2_,2)}, v{kaddr} offset:{off+1024}"]
    def readV(off, V0):
        return [f"s_mov_b64 exec, s[{vmask}:{vmask+1}]",
                f"ds_read_b128 {v(V0,4)}, v{vaddr} offset:{off}",
                f"ds_read_b128 {v(V0+4,4)}, v{vaddr} offset:{off+640}",
                f"s_mov_b64 exec, -1"]
    def qk1(S, C): return f"v_mfma_f32_32x32x16_bf16 {v(S,16)}, {v(K1_,4)}, {v(Q1,4)}, {C}"
    def qk2(S): return f"v_mfma_f32_32x32x8_bf16 {v(S,16)}, {v(K2_,2)}, {v(Q2,2)}, {v(S,16)}"
    def max16(S, d):
        a(f"v_max3_f32 v{d}, v{S}, v{S+1}, v{d}")
        for i in range(2, 16, 2):
            a(f"v_max3_f32 v{d}, v{S+i}, v{S+i+1}, v{d}")
    a(f"v_mov_b32 v{kaddr}, v{kbase}")
    P.stamp(0)
    a(f"s_waitcnt vmcnt(2)")
    a(f"s_barrier")
    P.stamp(1)
    for x in readK(0): a(x)
    dma()
    a(f"v_mov_b32 v{tmp}, 0xff800000")
    dma()
    a(f"s_waitcnt lgkmcnt(0)")
    a(qk1(SA, "0")); a(qk2(SA))
    a("s_nop 7"); a("s_nop 7")
    max16(SA, tmp)
    restart = a.label("k2restart")
    a(f"{restart}:")
    a(f"v_mov_b32 v{tmp2}, v{tmp}")
    a("s_nop 1")
    a(f"v_permlane32_swap_b32 v{tmp2}, v{tmp}")
    a("s_nop 1")
    a(f"v_max_f32 v{tmp}, v{tmp}, v{tmp2}")
    a(f"v_mov_b32 v{vaddr}, v{vbase}")
    for i in range(16):
        a(f"v_sub_f32 v{NEG+i}, 0, v{tmp}")
    for i in range(16):
        a(f"v_mov_b32 v{O+i}, 0")
    a(qk1(SA, v(NEG,16))); a(qk2(SA))
    for x in readK(2560): a(x)
    for x in readV(0, VB[0]): a(x)
    for i in range(4):
        a(f"v_mov_b32 v{PP+4+i}, 0")
    a(f"s_mov_b32 s{it}, 0")
    a("s_nop 4")
    a(f"v_exp_f32 v{SA}, v{SA}")
    a(f"v_exp_f32 v{SA+1}, v{SA+1}")
    hook = a.label("k2hook"); back = a.label("k2back")
    a(".p2align 6")
    a(f"{back}:")
    pv = lambda V, hh: f"v_mfma_f32_32x32x16_bf16 {v(O,16)}, {v(V+4*hh,4)}, {v(PP+4*hh,4)}, {v(O,16)}"
    for u in range(4):
        Sa, Sb = (SA, SB) if u % 2 == 0 else (SB, SA)
        Vc, Vn = VB[u % 2], VB[1 - u % 2]
        ex = lambda i: f"v_exp_f32 v{Sa+i}, v{Sa+i}" if i < 16 else f"v_exp_f32 v{Sb+i-16}, v{Sb+i-16}"
        cv = lambda j: f"v_cvt_pk_bf16_f32 v{PP+j}, v{Sa+2*j}, v{Sa+2*j+1}"
        rk = readK((u+2)*2560); rv = readV((u+1)*2560, Vn)
        pr = []
        if PRIO and u in (0, 1):
            l = a.label("k2p")
            pr = [f"s_cbranch_vccz {l}", f"s_setprio {0 if u == 0 else 2}", f"{l}:"]
        seq = [pv(Vn, 1), ex(2)] + pr + [cv(0), ex(3), ex(4), cv(1), ex(5), "s_waitcnt lgkmcnt(0)",
               qk1(Sb, v(NEG,16)), ex(6), cv(2), ex(7)] + rv + [ex(8), cv(3), ex(9),
               qk2(Sb), ex(10), rk[0], cv(4), ex(11), rk[1], ex(12), rk[2], cv(5), ex(13),
               pv(Vc, 0), ex(14), cv(6), ex(15)]
        if u == 3:
            seq += [f"s_add_u32 s{it}, s{it}, 1", f"v_add_u32 v{kaddr}, 10240, v{kaddr}", ex(16), f"s_cmp_lt_u32 s{it}, s{hooklim}", cv(7),
                    f"v_add_u32 v{vaddr}, 10240, v{vaddr}", ex(17)]
        else:
            seq += [ex(16), cv(7), ex(17), "s_nop 0"]
        for x in seq: a(x)
    a(f"s_cbranch_scc1 {hook}")
    a(f"s_cmp_lt_u32 s{it}, 16")
    a(f"s_cbranch_scc1 {back}")
    a(pv(VB[1], 1))
    P.stamp(2)
    a("s_nop 3")
    a(f"v_bfe_u32 v{tmp}, v{lane}, 4, 1")
    a(f"v_mul_u32_u24 v{tmp}, 20480, v{tmp}")
    a(f"v_and_b32 v{tmp2}, 15, v{lane}")
    a(f"v_lshl_add_u32 v{tmp}, v{tmp2}, 4, v{tmp}")
    a(f"v_lshrrev_b32 v{tmp2}, 5, v{lane}")
    a(f"v_lshl_add_u32 v{tmp2}, v{tmp2}, 8, v{tmp}")
    a(f"s_mov_b32 s{t3}, 0x5f800000")
    a(f"s_lshr_b32 s{t0}, s{head}, 1")
    a(f"s_mul_i32 s{t0}, s{t0}, 1280")
    a(f"s_mul_i32 s{t1}, s{qt}, 40960")
    a(f"s_add_u32 s{t0}, s{t0}, s{t1}")
    a(f"s_and_b32 s{t1}, s{head}, 1")
    a(f"v_cmp_nlt_f32 vcc, v{O+12}, s{t3}")
    a(f"s_lshl_b32 s{t2}, s{t1}, 9")
    a(f"s_add_u32 s{t2}, s{t2}, s{t0}")
    a(f"s_lshl_b32 s{t1}, s{t1}, 3")
    a(f"s_add_u32 s{t1}, s{t1}, s{t0}")
    fb = a.label("k2fb"); fin = a.label("k2fin")
    a(f"s_cbranch_vccnz {fb}")
    a(f"{fin}:")
    a(f"v_rcp_f32 v{tmp3}, v{O+12}")
    a("s_nop 0")
    for i in range(12):
        a(f"v_mul_f32 v{O+i}, v{O+i}, v{tmp3}")
    for i in range(6):
        a(f"v_cvt_pk_bf16_f32 v{O+i}, v{O+2*i}, v{O+2*i+1}")
    a(f"buffer_store_dwordx4 {v(O,4)}, v{tmp2}, s[{SQ}:{SQ+3}], s{t2} offen")
    a(f"s_mov_b32 exec_hi, 0")
    a(f"buffer_store_dwordx2 {v(O+4,2)}, v{tmp}, s[{SQ}:{SQ+3}], s{t1} offen offset:1024")
    P.stamp(3)
    P.flush(6, WS, wv)
    a(f"{done}:")
    a("s_endpgm")
    a(f"{fb}:")
    a(f"s_cmp_eq_u32 s{hooklim}, 0")
    a(f"s_cbranch_scc1 {fin}")
    a(f"s_mov_b32 s{hooklim}, 0")
    a(f"s_waitcnt lgkmcnt(0)")
    a(f"v_add_u32 v{kaddr}, {63*2560}, v{kbase}")
    a(f"v_mov_b32 v{tmp}, 0xff800000")
    a(f"s_mov_b32 s{it}, 64")
    fl = a.label("k2fl")
    a(f"{fl}:")
    for x in readK(0): a(x)
    a(f"s_waitcnt lgkmcnt(0)")
    a(qk1(SA, "0")); a(qk2(SA))
    a("s_nop 7"); a("s_nop 7")
    max16(SA, tmp)
    a(f"s_sub_u32 s{it}, s{it}, 1")
    a(f"s_cmp_eq_u32 s{it}, 0")
    a(f"s_cbranch_scc1 {restart}")
    a(f"v_subrev_u32 v{kaddr}, 2560, v{kaddr}")
    a(f"s_branch {fl}")
    h9 = a.label("k2h9"); h10 = a.label("k2h10"); h13 = a.label("k2h13")
    a(f"{hook}:")
    h3 = a.label("k2h3"); h4 = a.label("k2h4")
    a(f"s_cmp_ge_u32 s{it}, 5")
    a(f"s_cbranch_scc1 {h9}")
    a(f"s_cmp_eq_u32 s{it}, 3")
    a(f"s_cbranch_scc1 {h3}")
    a(f"s_waitcnt vmcnt(4)")
    a(f"s_barrier")
    a(f"s_cmp_eq_u32 s{it}, 4")
    a(f"s_cbranch_scc1 {back}")
    a(f"{h3}:")
    dma()
    a("s_nop 0")
    dma()
    a(f"s_branch {back}")
    a(f"{h9}:")
    a(f"s_cmp_eq_u32 s{it}, 9")
    a(f"s_cbranch_scc1 {h13}")
    a(f"s_cmp_eq_u32 s{it}, 6")
    a(f"s_cbranch_scc0 {back}")
    a(f"s_waitcnt vmcnt(0)")
    a(f"s_barrier")
    P.stamp(4)
    if EXP == 1: a(f"s_branch {back}")
    a(f"s_lshl_b32 s{task}, s{wv}, 8")
    a(f"s_add_u32 s{task}, s{task}, s2")
    a(f"s_cmp_ge_u32 s{task}, 1640")
    a(f"s_cbranch_scc1 {back}")
    lod = a.label("k2lod"); lwd = a.label("k2wd"); lperm = a.label("k2perm"); lld = a.label("k2ld")
    a(f"v_lshrrev_b32 v{tmp}, 4, v{lane}")
    a(f"v_and_b32 v{tmp2}, 15, v{lane}")
    a(f"s_cmp_ge_u32 s{task}, 960")
    a(f"s_cbranch_scc1 {lod}")
    a(f"s_cmp_ge_u32 s{task}, 480")
    a(f"s_cselect_b32 s{SW}, s54, s52")
    a(f"s_cselect_b32 s{SW+1}, s55, s53")
    a(f"s_cselect_b32 s{t3}, 32, 0")
    a(f"s_cselect_b32 s{t0}, 480, 0")
    a(f"s_sub_u32 s{t0}, s{task}, s{t0}")
    a(f"s_mul_i32 s{t1}, s{t0}, 2731")
    a(f"s_lshr_b32 s{t1}, s{t1}, 16")
    a(f"s_mul_i32 s{t2}, s{t1}, 24")
    a(f"s_sub_u32 s{t0}, s{t0}, s{t2}")
    a(f"s_mov_b32 s{SW+2}, {D*F*2}")
    a(f"s_mov_b32 s{st1}, 3072")
    a(f"s_mov_b32 s{sX}, 64")
    a(f"s_mov_b32 s{ssh}, 3")
    a(f"s_add_u32 s{t3}, s{t3}, {WS_WGU-WS_WO}")
    a(f"v_lshrrev_b32 v{tmp3}, 1, v{tmp2}")
    a(f"v_mul_u32_u24 v{ro}, 20480, v{tmp3}")
    a(f"v_and_b32 v{tmp3}, 1, v{tmp2}")
    a(f"v_lshl_add_u32 v{ro}, v{tmp3}, 7, v{ro}")
    a(f"s_mul_i32 s{t2}, s{t0}, {8*20480}")
    a(f"s_add_u32 s{t3}, s{t3}, s{t2}")
    a(f"s_lshl_b32 s{t2}, s{t1}, 10")
    a(f"s_add_u32 s{t3}, s{t3}, s{t2}")
    a(f"s_branch {lperm}")
    a(f"{lod}:")
    a(f"s_cmp_ge_u32 s{task}, 1440")
    a(f"s_cselect_b32 s{SW}, s48, s56")
    a(f"s_cselect_b32 s{SW+1}, s49, s57")
    a(f"s_cselect_b32 s{t0}, 480, 0")
    a(f"s_cselect_b32 s{t3}, 20, 48")
    a(f"s_cselect_b32 s{st2}, 0, {WS_WD-WS_WO}")
    a(f"s_sub_u32 s{t0}, s{task}, s{t0}")
    a(f"s_sub_u32 s{t0}, s{t0}, 960")
    a(f"s_mul_i32 s{SW+2}, s{t3}, {32*1280}")
    a(f"s_mul_i32 s{t1}, s{t0}, 6554")
    a(f"s_lshr_b32 s{t1}, s{t1}, 16")
    a(f"s_mul_i32 s{t2}, s{t1}, 10")
    a(f"s_sub_u32 s{t0}, s{t0}, s{t2}")
    a(f"s_mov_b32 s{st1}, 1280")
    a(f"s_mov_b32 s{sX}, 32")
    a(f"s_mov_b32 s{ssh}, 2")
    a(f"s_lshl_b32 s{t2}, s{t0}, 4")
    a(f"v_add_u32 v{tmp3}, s{t2}, v{tmp2}")
    a(f"v_mul_u32_u24 v{tmp4}, 205, v{tmp3}")
    a(f"v_lshrrev_b32 v{tmp4}, 10, v{tmp4}")
    a(f"v_mad_i32_i24 v{tmp3}, v{tmp4}, -5, v{tmp3}")
    a(f"v_lshlrev_b32 v{ro}, 10, v{tmp3}")
    a(f"v_and_b32 v{tmp3}, 3, v{tmp4}")
    a(f"v_lshl_add_u32 v{ro}, v{tmp3}, 6, v{ro}")
    a(f"v_lshrrev_b32 v{tmp4}, 2, v{tmp4}")
    a(f"s_mul_i32 s{t3}, s{t3}, 5120")
    a(f"v_mad_u32_u24 v{ro}, v{tmp4}, s{t3}, v{ro}")
    a(f"s_mul_i32 s{t3}, s{t1}, 5120")
    a(f"s_add_u32 s{t3}, s{t3}, s{st2}")
    a(f"s_cmp_lt_u32 s{task}, 1440")
    a(f"s_cbranch_scc1 {lwd}")
    a(f"{lperm}:")
    a(f"s_lshl_b32 s{t1}, s{t1}, 2")
    a(f"v_add_u32 v{tmp3}, s{t1}, v{tmp}")
    a(f"v_mul_u32_u24 v{tmp4}, 205, v{tmp3}")
    a(f"v_lshrrev_b32 v{tmp4}, 10, v{tmp4}")
    a(f"v_mad_i32_i24 v{tmp3}, v{tmp4}, -5, v{tmp3}")
    a(f"v_mul_u32_u24 v{ra}, 40, v{tmp4}")
    a(f"v_lshrrev_b32 v{tmp4}, 1, v{tmp3}")
    a(f"v_mad_u32_u24 v{ra}, v{tmp4}, 20, v{ra}")
    a(f"v_and_b32 v{tmp4}, 1, v{tmp3}")
    a(f"v_lshl_add_u32 v{ra}, v{tmp4}, s{ssh}, v{ra}")
    a(f"v_lshrrev_b32 v{tmp4}, 2, v{tmp3}")
    a(f"v_mul_u32_u24 v{tmp3}, 24, v{tmp4}")
    a(f"v_sub_u32 v{ra}, v{ra}, v{tmp3}")
    a(f"s_lshl_b32 s{t1}, 1, s{ssh}")
    a(f"s_add_u32 s{t2}, s{t1}, 8")
    a(f"s_sub_u32 s{t1}, 12, s{t1}")
    a(f"v_mad_u32_u24 v{rb_}, v{tmp4}, s{t2}, v{ra}")
    a(f"v_add_u32 v{rb_}, s{t1}, v{rb_}")
    a(f"s_branch {lld}")
    a(f"{lwd}:")
    a(f"s_lshl_b32 s{t1}, s{t1}, 5")
    a(f"v_lshl_add_u32 v{ra}, v{tmp}, 3, s{t1}")
    a(f"v_add_u32 v{rb_}, 4, v{ra}")
    a(f"{lld}:")
    a(f"s_mov_b32 s{SW+3}, 0x20000")
    a(f"s_lshl_b32 s{t0}, s{t0}, 7")
    a(f"v_lshl_add_u32 v{tmp2}, v{tmp2}, 3, s{t0}")
    a(f"v_mad_u32_u24 v{ra}, v{ra}, s{st1}, v{tmp2}")
    a(f"v_mad_u32_u24 v{rb_}, v{rb_}, s{st1}, v{tmp2}")
    a(f"v_lshl_add_u32 v{ro}, v{tmp}, 8, v{ro}")
    a(f"v_add_u32 v{ro}, s{t3}, v{ro}")
    a(f"s_lshl_b32 s{st2}, s{st1}, 1")
    a(f"s_add_u32 s{st3}, s{st2}, s{st1}")
    for r in range(8):
        so = ["0", f"s{st1}", f"s{st2}", f"s{st3}"][r & 3]
        a(f"buffer_load_dwordx2 {v(RL+2*r,2)}, v{ra if r < 4 else rb_}, s[{SW}:{SW+3}], {so} offen")
    a(f"s_branch {back}")
    a(f"{h13}:")
    P.stamp(5)
    a(f"s_cmp_ge_u32 s{task}, 1640")
    a(f"s_cbranch_scc1 {back}")
    a(f"s_mov_b32 s{t0}, 0x05040100")
    a(f"s_mov_b32 s{t1}, 0x07060302")
    a(f"s_waitcnt vmcnt(0)")
    for c in range(4):
        for j in range(4):
            a(f"v_perm_b32 v{RO+4*c+j}, v{RL+4*j+2+(c>>1)}, v{RL+4*j+(c>>1)}, s{t0 if c%2==0 else t1}")
    for c in range(4):
        a(f"buffer_store_dwordx4 {v(RO+4*c,4)}, v{ro}, s[{SO}:{SO+3}], {'0' if c < 2 else f's{sX}'} offen offset:{16*(c&1)} {STF}")
    a(f"s_branch {back}")
    kernel_desc(a, name, 256 if PROF else 160, 96)
    return dict(name=name, grid=256, block=512, lds=K2_LDS)

def perm_o():
    out = []
    for G in range(80):
        p, u = divmod(G, 5)
        if u < 4: ka, d = 40*p + 20*(u>>1) + 4*(u&1), 8
        else: ka, d = 40*p + 16, 20
        out += [ka+i for i in range(4)] + [ka+d+i for i in range(4)]
    return out
def perm_h():
    out = []
    for G in range(80):
        p, u = divmod(G, 5)
        if u < 4: ka, d = 40*p + 20*(u>>1) + 8*(u&1), 4
        else: ka, d = 40*p + 16, 20
        out += [ka+i for i in range(4)] + [ka+d+i for i in range(4)]
    return out

def check(W, bf, cmp, o, inp, torch):
    po = torch.tensor(perm_o()); ph = torch.tensor(perm_h())
    OF = bf(W[WS_OF:WS_OF+SZ_OF]).view(128, 80, 16, 8).permute(0,2,1,3).reshape(S, 640)
    cmp("O", OF, o[:, po])
    def chk_od(name, off, Wm, KS, perm):
        Pk = bf(W[off:off+KS*32*1280]).view(8, KS, 5, 4, 4, 4, 8)
        Pk = Pk.permute(1,3,6,0,4,2,5).reshape(KS*32, 640)
        cmp(name, Pk, Wm.float()[perm])
    chk_od("WoP", WS_WO, inp["A_wo"], 20, po)
    chk_od("WdP", WS_WD, inp["B_w_down"], 48, torch.arange(1536))
    Pk = bf(W[WS_WGU:WS_WGU+SZ_WGU]).view(192, 20, 4, 4, 2, 2, 8)
    Pk = Pk.permute(4,1,2,6,0,3,5).reshape(2, 640, 1536)
    cmp("WgP", Pk[0], inp["B_w_gate"].float()[ph])
    cmp("WuP", Pk[1], inp["B_w_up"].float()[ph])
```

```python
from asmlib import *
from layout import *

def gen_proj(a, name, kid, KS, down):
    kernel_begin(a, name)
    P = Prof(a, kid, 64, 250)
    NC = KS // 4
    L = 2 if not down else 3
    U = 5 if not down else 4
    NS = 5 if not down else 4
    NB = L + 1
    if not down: NB = 5
    SWp, SA, SR, SH, SS = 8, 12, 16, 24, 28
    WS = 20
    wv, nb, rb16, soW, soW2, soA, cnt, m0a, m0b = 32, 33, 34, 35, 36, 37, 38, 39, 40
    t0, t1, t2 = 41, 42, 43
    lane, voff, rd0, rd1, raddr, haddr, haddr2, tmp, tmp2, tmp3 = 1, 2, 3, 4, 5, 6, 7, 8, 9, 10
    RES = 12
    ACC = 24
    WF = lambda b, i: 44 + b*20 + i*4
    AF = lambda b, s: 84 + b*16 + s*4
    done = a.label("pdone")
    P.start()
    a(f"s_load_dwordx2 s[{WS}:{WS+1}], s[0:1], {KA_WS}")
    a(f"s_load_dwordx2 s[22:23], s[0:1], {KA_OUT if down else KA_X}")
    a(f"s_cmp_ge_u32 s2, 256")
    a(f"s_cbranch_scc1 {done}")
    a(f"v_lshrrev_b32 v{tmp}, 6, v0")
    a(f"v_and_b32 v{lane}, 63, v0")
    a(f"s_and_b32 s{t0}, s2, 7")
    a(f"v_readfirstlane_b32 s{wv}, v{tmp}")
    a(f"s_bfe_u32 s{t1}, s2, 0x20003")
    a(f"s_lshl_b32 s{t0}, s{t0}, 2")
    a(f"s_add_u32 s{t0}, s{t0}, s{t1}")
    a(f"s_lshr_b32 s{nb}, s2, 5")
    a(f"s_lshl_b32 s{rb16}, s{t0}, 2")
    a(f"s_add_u32 s{rb16}, s{rb16}, s{wv}")
    a(f"v_lshlrev_b32 v{voff}, 4, v{lane}")
    a(f"s_mul_i32 s{t0}, s{nb}, {KS*5120}")
    a(f"s_add_u32 s{t0}, s{t0}, {WS_WD if down else WS_WO}")
    a(f"s_mul_i32 s{t1}, s{rb16}, {KS*1024}")
    a(f"s_add_u32 s{t1}, s{t1}, {WS_ACT if down else WS_OF}")
    a(f"s_lshl_b32 s{m0a}, s{wv}, 12")
    a(f"s_lshl_b32 s{m0b}, s{wv}, 10")
    a(f"s_add_u32 s{m0b}, s{m0b}, 16384")
    a(f"s_mov_b32 s{soW}, s{m0a}")
    a(f"s_mov_b32 s{soW2}, s{m0b}")
    a(f"s_mov_b32 s{soA}, 0")
    a(f"s_waitcnt lgkmcnt(0)")
    a(f"s_add_u32 s{SWp}, s{WS}, s{t0}")
    a(f"s_addc_u32 s{SWp+1}, s{WS+1}, 0")
    a(f"s_mov_b32 s{SWp+2}, {KS*5120}")
    a(f"s_mov_b32 s{SWp+3}, 0x20000")
    a(f"s_add_u32 s{SA}, s{WS}, s{t1}")
    a(f"s_addc_u32 s{SA+1}, s{WS+1}, 0")
    a(f"s_mov_b32 s{SA+2}, {KS*1024}")
    a(f"s_mov_b32 s{SA+3}, 0x20000")
    def loads(c):
        st = c % NS; b = c % NB
        g = []
        g.append([f"s_add_u32 m0, s{m0a}, {st*20480}", f"buffer_load_dwordx4 {v(AF(b,0),4)}, v{voff}, s[{SA}:{SA+3}], s{soA} offen"])
        for i in range(4):
            g.append([f"buffer_load_dwordx4 v{voff}, s[{SWp}:{SWp+3}], s{soW} offen offset:{1024*i} lds"])
        g.append([f"s_add_u32 m0, s{m0b}, {st*20480}", f"buffer_load_dwordx4 {v(AF(b,1),4)}, v{voff}, s[{SA}:{SA+3}], s{soA} offen offset:1024"])
        g.append([f"buffer_load_dwordx4 v{voff}, s[{SWp}:{SWp+3}], s{soW2} offen lds", f"s_add_u32 s{soW}, s{soW}, 20480", f"s_add_u32 s{soW2}, s{soW2}, 20480"])
        g.append([f"buffer_load_dwordx4 {v(AF(b,2),4)}, v{voff}, s[{SA}:{SA+3}], s{soA} offen offset:2048"])
        g.append([f"buffer_load_dwordx4 {v(AF(b,3),4)}, v{voff}, s[{SA}:{SA+3}], s{soA} offen offset:3072", f"s_add_u32 s{soA}, s{soA}, 4096"])
        return g
    for g in loads(0):
        for x in g: a(x)
    srd(a, SR, 22, S*D*2)
    srd(a, SH, WS, SZ_H, WS_H)
    a(f"v_and_b32 v{tmp}, 15, v{lane}")
    a(f"v_lshrrev_b32 v{tmp2}, 4, v{lane}")
    a(f"s_lshl_b32 s{t0}, s{rb16}, 4")
    a(f"v_add_u32 v{tmp3}, s{t0}, v{tmp}")
    a(f"v_mul_u32_u24 v{raddr}, 1280, v{tmp3}")
    a(f"v_mad_u32_u24 v{raddr}, v{tmp2}, 40, v{raddr}")
    a(f"s_mul_i32 s{t0}, s{nb}, 160")
    a(f"v_add_u32 v{raddr}, s{t0}, v{raddr}")
    a(f"s_mul_i32 s{t0}, s{rb16}, 20480")
    a(f"s_mul_i32 s{t1}, s{nb}, 2560")
    a(f"s_add_u32 s{t0}, s{t0}, s{t1}")
    a(f"v_lshl_add_u32 v{haddr2}, v{tmp}, 4, s{t0}")
    a(f"v_lshrrev_b32 v{tmp}, 5, v{lane}")
    a(f"v_mul_u32_u24 v{tmp}, 1280, v{tmp}")
    a(f"v_add_u32 v{haddr2}, v{haddr2}, v{tmp}")
    a(f"v_and_b32 v{tmp2}, 1, v{tmp2}")
    a(f"v_lshl_add_u32 v{haddr}, v{tmp2}, 9, v{haddr2}")
    a(f"v_lshl_add_u32 v{haddr2}, v{tmp2}, 3, v{haddr2}")
    def rowmajor(op, R):
        sfx = "load" if op == "l" else "store"
        a(f"buffer_{sfx}_dwordx4 {v(R,4)}, v{raddr}, s[{SR}:{SR+3}], 0 offen")
        a(f"buffer_{sfx}_dwordx4 {v(R+4,4)}, v{raddr}, s[{SR}:{SR+3}], 0 offen offset:16")
        a(f"buffer_{sfx}_dwordx2 {v(R+8,2)}, v{raddr}, s[{SR}:{SR+3}], 0 offen offset:32")
    def frag(op, R):
        sfx = "load" if op == "l" else "store"
        a(f"buffer_{sfx}_dwordx4 {v(R,4)}, v{haddr}, s[{SH}:{SH+3}], 0 offen")
        a(f"buffer_{sfx}_dwordx4 {v(R+4,4)}, v{haddr}, s[{SH}:{SH+3}], 0 offen offset:256")
        a(f"buffer_{sfx}_dwordx2 {v(R+8,2)}, v{haddr2}, s[{SH}:{SH+3}], 0 offen offset:1024")
    a(f"v_mov_b32 v{rd0}, v{voff}")
    a(f"v_add_u32 v{rd1}, 40960, v{voff}")
    for i in range(20):
        a(f"v_mov_b32 v{ACC+i}, 0")
    (frag if down else rowmajor)("l", RES)
    for c in range(1, L):
        for g in loads(c):
            for x in g: a(x)
    if not down:
        srd(a, SS, WS, SZ_ST, WS_ST)
        a(f"s_lshl_b32 s{t0}, s{nb}, 3")
        a(f"v_lshl_add_u32 v{tmp3}, v{tmp3}, 6, s{t0}")
    a(f"s_mov_b32 s{cnt}, {NC // U}")
    def reads(c, s, b):
        st = c % NS
        base, off = (rd0, st*20480) if st < 2 else (rd1, st*20480 - 40960)
        return [f"ds_read_b128 {v(WF(b,i),4)}, v{base} offset:{off + s*5120 + i*1024}" for i in range(5)]
    lp = a.label("ploop")
    P.stamp(0)
    first = True
    a(f"s_waitcnt vmcnt({9*(L-1)+3})")
    a(f"s_barrier")
    P.stamp(1)
    for x in reads(0, 0, 0): a(x)
    if NC > U:
        a(".p2align 6")
        a(f"{lp}:")
    for c in range(U):
        issue = (NC > U) or (c + L < NC)
        ld = loads(c + L) if issue else [[]]*9
        k = 0
        for s in range(4):
            b = s & 1
            mf = [f"v_mfma_f32_16x16x32_bf16 {v(ACC+4*i,4)}, {v(WF(b,i),4)}, {v(AF(c % NB, s),4)}, {v(ACC+4*i,4)}" for i in range(5)]
            last = (NC == U and c == U-1 and s == 3)
            a("s_waitcnt lgkmcnt(0)")
            if s < 3:
                rd = reads(c, s+1, b^1)
                seq = []
                for i in range(5):
                    seq += [mf[i], rd[i]]
                    if i in (0, 2, 4):
                        seq += ld[k]; k += 1
            else:
                if last:
                    seq = mf
                else:
                    if NC > U: outst = 9*(L-1)
                    else: outst = 9*max(0, min(L-1, NC-2-c))
                    rd = reads(c+1, 0, 0)
                    seq = [mf[0], f"s_waitcnt vmcnt({outst})", "s_barrier", rd[0], rd[1], mf[1], rd[2], mf[2], rd[3], mf[3], rd[4], mf[4]]
            for x in seq: a(x)
    if NC > U:
        a(f"s_sub_u32 s{cnt}, s{cnt}, 1")
        a(f"s_cmp_lg_u32 s{cnt}, 0")
        a(f"s_cbranch_scc1 {lp}")
        a(f"s_waitcnt lgkmcnt(0)")
    P.stamp(2)
    U0 = 44
    for j in range(10):
        a(f"v_lshlrev_b32 v{U0+2*j}, 16, v{RES+j}")
        a(f"v_and_b32 v{U0+2*j+1}, 0xffff0000, v{RES+j}")
    for j in range(10):
        a(f"v_pk_add_f32 {v(ACC+2*j,2)}, {v(ACC+2*j,2)}, {v(U0+2*j,2)}")
    for j in range(10):
        a(f"v_cvt_pk_bf16_f32 v{RES+j}, v{ACC+2*j}, v{ACC+2*j+1}")
    (rowmajor if down else frag)("s", RES)
    if not down:
        sm, sq = U0, U0+2
        a(f"v_pk_add_f32 {v(sm,2)}, {v(ACC,2)}, {v(ACC+2,2)}")
        a(f"v_pk_mul_f32 {v(sq,2)}, {v(ACC,2)}, {v(ACC,2)}")
        for j in range(1, 10):
            if j > 1: a(f"v_pk_add_f32 {v(sm,2)}, {v(sm,2)}, {v(ACC+2*j,2)}")
            a(f"v_pk_fma_f32 {v(sq,2)}, {v(ACC+2*j,2)}, {v(ACC+2*j,2)}, {v(sq,2)}")
        a(f"v_add_f32 v{sm}, v{sm}, v{sm+1}")
        a(f"v_add_f32 v{sm+1}, v{sq}, v{sq+1}")
        for op in ("v_permlane32_swap_b32", "v_permlane16_swap_b32"):
            a(f"v_mov_b32 v{sq}, v{sm}")
            a(f"v_mov_b32 v{sq+1}, v{sm+1}")
            a("s_nop 1")
            a(f"{op} v{sq}, v{sm}")
            a(f"{op} v{sq+1}, v{sm+1}")
            a("s_nop 1")
            a(f"v_pk_add_f32 {v(sm,2)}, {v(sm,2)}, {v(sq,2)}")
        a(f"s_mov_b64 exec, 0xffff")
        a(f"buffer_store_dwordx2 {v(sm,2)}, v{tmp3}, s[{SS}:{SS+3}], 0 offen")
    P.stamp(3)
    P.flush(4, WS, wv)
    a(f"{done}:")
    a("s_endpgm")
    kernel_desc(a, name, 256 if PROF else 84 + NB*16, 96)
    return dict(name=name, grid=256, block=256, lds=NS*20480)

def gen_k3(a): return gen_proj(a, "k3_wo_kernel", 2, 20, False)
def gen_k5(a): return gen_proj(a, "k5_down_kernel", 4, 48, True)
```

```python
from asmlib import *
from layout import *

def ag(i, n=1):
    return f"a{i}" if n == 1 else f"a[{i}:{i+n-1}]"

def gen_k4(a, name="k4_glu_kernel"):
    kernel_begin(a, name)
    P = Prof(a, 3, 64, 250)
    L = 2
    SH, SWp, SS, SO = 8, 12, 16, 24
    WS = 20
    wv, rt, ct, h0, h1, w0, w1, w2, cnt = 28, 29, 30, 31, 32, 33, 34, 35, 36
    t0, t1, t2 = 37, 38, 39
    lane, voff, tmp, tmp2, tmp3, oaddr = 1, 2, 3, 4, 5, 6
    rdb = [8, 9, 10]
    ONES = 12
    CS = 16
    HF = lambda b, i: 28 + b*32 + i*4
    ACC = lambda i, f: 92 + (i*3 + f)*4
    ST = 188
    WF = lambda b, s, f: b*24 + (f*2 + s)*4
    done = a.label("k4done")
    P.start()
    a(f"s_load_dwordx2 s[{WS}:{WS+1}], s[0:1], {KA_WS}")
    a(f"s_cmp_ge_u32 s2, 256")
    a(f"s_cbranch_scc1 {done}")
    a(f"v_lshrrev_b32 v{tmp}, 6, v0")
    a(f"v_and_b32 v{lane}, 63, v0")
    a(f"s_bfe_u32 s{t0}, s2, 0x20001")
    a(f"v_readfirstlane_b32 s{wv}, v{tmp}")
    a(f"s_bfe_u32 s{t1}, s2, 0x20003")
    a(f"s_lshl_b32 s{rt}, s{t0}, 2")
    a(f"s_add_u32 s{rt}, s{rt}, s{t1}")
    a(f"s_and_b32 s{t0}, s2, 1")
    a(f"s_lshl_b32 s{t0}, s{t0}, 3")
    a(f"s_lshr_b32 s{ct}, s2, 5")
    a(f"s_add_u32 s{ct}, s{ct}, s{t0}")
    a(f"v_lshlrev_b32 v{voff}, 4, v{lane}")
    a(f"s_mul_i32 s{t0}, s{rt}, 163840")
    a(f"s_add_u32 s{t0}, s{t0}, {WS_H}")
    a(f"s_lshl_b32 s{t2}, s{ct}, 2")
    a(f"s_add_u32 s{t2}, s{t2}, s{wv}")
    a(f"s_mul_i32 s{t1}, s{t2}, {3*20480}")
    a(f"s_add_u32 s{t1}, s{t1}, {WS_WGU}")
    a(f"s_mul_i32 s{h0}, s{wv}, 40960")
    a(f"s_add_u32 s{h1}, s{h0}, 20480")
    a(f"s_mov_b32 s{w0}, 0")
    a(f"s_mov_b32 s{w1}, 20480")
    a(f"s_mov_b32 s{w2}, 40960")
    a(f"s_waitcnt lgkmcnt(0)")
    a(f"s_add_u32 s{SH}, s{WS}, s{t0}")
    a(f"s_addc_u32 s{SH+1}, s{WS+1}, 0")
    a(f"s_mov_b32 s{SH+2}, 163840")
    a(f"s_mov_b32 s{SH+3}, 0x20000")
    a(f"s_add_u32 s{SWp}, s{WS}, s{t1}")
    a(f"s_addc_u32 s{SWp+1}, s{WS+1}, 0")
    a(f"s_mov_b32 s{SWp+2}, {3*20480}")
    a(f"s_mov_b32 s{SWp+3}, 0x20000")
    def loads(it):
        b = it % 5
        wl = lambda s, f: f"buffer_load_dwordx4 {ag(WF(b,s,f),4)}, v{voff}, s[{SWp}:{SWp+3}], s{[w0,w1,w2][f]} offen offset:{1024*s}"
        dm = lambda h, s: f"buffer_load_dwordx4 v{voff}, s[{SH}:{SH+3}], s{h} offen offset:{1024*s} lds"
        return [[f"s_mov_b32 m0, s{h0}", wl(0,0)], [dm(h0,0)], [dm(h0,1), f"s_add_u32 s{h0}, s{h0}, 2048"],
                [f"s_mov_b32 m0, s{h1}", wl(0,1)], [dm(h1,0)], [dm(h1,1), f"s_add_u32 s{h1}, s{h1}, 2048"],
                [wl(0,2)], [wl(1,0), f"s_add_u32 s{w0}, s{w0}, 2048"], [wl(1,1), f"s_add_u32 s{w1}, s{w1}, 2048"], [wl(1,2), f"s_add_u32 s{w2}, s{w2}, 2048"]]
    for g in loads(0):
        for x in g: a(x)
    srd(a, SS, WS, SZ_ST, WS_ST)
    a(f"v_and_b32 v{tmp}, 15, v{lane}")
    a(f"v_lshrrev_b32 v{tmp2}, 4, v{lane}")
    a(f"v_lshlrev_b32 v{tmp3}, 6, v{tmp}")
    a(f"v_lshl_add_u32 v{tmp3}, v{tmp2}, 11, v{tmp3}")
    a(f"s_lshl_b32 s{t0}, s{rt}, 13")
    a(f"v_lshlrev_b32 v{oaddr}, 4, v{tmp}")
    a(f"v_lshl_add_u32 v{oaddr}, v{tmp2}, 2, v{oaddr}")
    a(f"s_mul_i32 s{t2}, s{t2}, 768")
    a(f"v_add_u32 v{oaddr}, s{t2}, v{oaddr}")
    for i in range(3):
        a(f"v_add_u32 v{rdb[i]}, {i*61440}, v{voff}")
    for i in range(4):
        a(f"v_mov_b32 v{ONES+i}, 0x3f803f80")
    for i in range(12):
        a(f"v_mov_b32 v{CS+i}, 0")
    for i in range(96):
        a(f"v_mov_b32 v{ACC(0,0)+i}, 0")
    for g in loads(1):
        for x in g: a(x)
    for j in range(2):
        for q in range(4):
            a(f"buffer_load_dwordx4 {v(ST+16*j+4*q,4)}, v{tmp3}, s[{SS}:{SS+3}], s{t0} offen offset:{1024*j+16*q}")
    srd(a, SO, WS, SZ_ACT, WS_ACT)
    a(f"s_mov_b32 s{cnt}, 0")
    def reads(ks, b):
        return [f"ds_read_b128 {v(HF(b,i),4)}, v{rdb[i//3]} offset:{(i%3)*20480 + ks*1024}" for i in range(8)]
    P.stamp(0)
    a(f"s_waitcnt vmcnt(18)")
    a(f"s_barrier")
    P.stamp(1)
    for x in reads(0, 0): a(x)
    lp = a.label("k4loop")
    a(".p2align 6")
    a(f"{lp}:")
    for it in range(5):
        ld = loads(it + L)
        skip = None
        for s in range(2):
            mf = []
            for i in range(8):
                for f in range(3):
                    mf.append(f"v_mfma_f32_16x16x32_bf16 {v(ACC(i,f),4)}, {ag(WF(it,s,f),4)}, {v(HF(s,i),4)}, {v(ACC(i,f),4)}")
            cs = [f"v_mfma_f32_16x16x32_bf16 {v(CS+4*f,4)}, {ag(WF(it,s,f),4)}, {v(ONES,4)}, {v(CS+4*f,4)}" for f in range(3)]
            rd = reads(2*it + s + 1, s ^ 1)
            seq = cs + ["s_waitcnt lgkmcnt(0)"]
            if s == 0:
                for i in range(8):
                    seq += [mf[i], rd[i]]
                if it >= 3:
                    l0 = a.label("k4nl"); l1 = a.label("k4j")
                    seq += [f"s_cmp_lg_u32 s{cnt}, 0", f"s_cbranch_scc1 {l0}"]
                    for g in ld: seq += g
                    seq += [f"{l0}:"] + mf[8:]
                else:
                    k = 0
                    for i in range(8, 24):
                        seq += [mf[i]]
                        if k < 10 and (i - 8) * 10 // 16 >= k:
                            seq += ld[k]; k += 1
                    assert k == 10
            else:
                pre = mf[:8]
                if it == 3:
                    l0 = a.label("k4w")
                    w = [f"s_cbranch_scc0 {l0}", "s_waitcnt vmcnt(0)", f"{l0}:", "s_waitcnt vmcnt(10)"]
                else:
                    w = ["s_waitcnt vmcnt(10)"]
                seq += pre + w + ["s_barrier"]
                for i in range(8):
                    seq += [mf[8+i], rd[i]]
                seq += mf[16:]
            for x in seq: a(x)
    for i in range(3):
        a(f"v_add_u32 v{rdb[i]}, 10240, v{rdb[i]}")
    a(f"s_add_u32 s{cnt}, s{cnt}, 1")
    a(f"s_cmp_lt_u32 s{cnt}, 2")
    a(f"s_cbranch_scc1 {lp}")
    P.stamp(2)
    for j in range(2):
        b = ST + 16*j
        for d in (8, 4, 2):
            for q in range(0, d, 2):
                a(f"v_pk_add_f32 {v(b+q,2)}, {v(b+q,2)}, {v(b+q+d,2)}")
    a(f"s_waitcnt lgkmcnt(0)")
    NM = 28; R2 = 44
    for j in range(2):
        b = ST + 16*j
        a(f"v_mul_f32 v{b}, {f32(-1.0/D)}, v{b}")
        a(f"v_mul_f32 v{b+1}, {f32(1.0/D)}, v{b+1}")
        a(f"v_fma_f32 v{b+1}, -v{b}, v{b}, v{b+1}")
        a(f"v_max_f32 v{b+1}, 0, v{b+1}")
        a(f"v_add_f32 v{b+1}, {f32(EPS)}, v{b+1}")
        a(f"v_rcp_f32 v{b+1}, v{b+1}")
    a("s_nop 0")
    for j in range(2):
        for (src, dst) in ((ST+16*j, NM), (ST+16*j+1, R2)):
            r = [dst + 2*(2*g + j) for g in range(4)]
            a(f"v_mov_b32 v{r[0]}, v{src}")
            a(f"v_mov_b32 v{r[1]}, v{src}")
    a("s_nop 1")
    for j in range(2):
        for dst in (NM, R2):
            r = [dst + 2*(2*g + j) for g in range(4)]
            a(f"v_permlane16_swap_b32 v{r[0]}, v{r[1]}")
    a("s_nop 0")
    for j in range(2):
        for dst in (NM, R2):
            r = [dst + 2*(2*g + j) for g in range(4)]
            a(f"v_mov_b32 v{r[2]}, v{r[0]}")
            a(f"v_mov_b32 v{r[3]}, v{r[1]}")
    a("s_nop 1")
    for j in range(2):
        for dst in (NM, R2):
            r = [dst + 2*(2*g + j) for g in range(4)]
            a(f"v_permlane32_swap_b32 v{r[0]}, v{r[2]}")
            a(f"v_permlane32_swap_b32 v{r[1]}, v{r[3]}")
    a(f"s_mul_i32 s{t0}, s{rt}, {8*49152}")
    a("s_nop 0")
    for i in range(8):
        for f in range(3):
            A = ACC(i,f)
            a(f"v_pk_fma_f32 {v(A,2)}, {v(CS+4*f,2)}, {v(NM+2*i,2)}, {v(A,2)} op_sel_hi:[1,0,1]")
            a(f"v_pk_fma_f32 {v(A+2,2)}, {v(CS+4*f+2,2)}, {v(NM+2*i,2)}, {v(A+2,2)} op_sel_hi:[1,0,1]")
        for f in range(3):
            A = ACC(i,f)
            a(f"v_pk_mul_f32 {v(A,2)}, {v(A,2)}, {v(R2+2*i,2)} op_sel_hi:[1,0]")
        for f in range(3):
            A = ACC(i,f)
            a(f"v_pk_mul_f32 {v(A,2)}, {v(A,2)}, {v(A+2,2)}")
        for f in range(3):
            A = ACC(i,f)
            a(f"v_cvt_pk_bf16_f32 v{A}, v{A}, v{A+1}")
        for f in range(3):
            a(f"buffer_store_dword v{ACC(i,f)}, v{oaddr}, s[{SO}:{SO+3}], s{t0} offen offset:{256*f}")
        if i < 7: a(f"s_add_u32 s{t0}, s{t0}, 49152")
    P.stamp(3)
    P.flush(4, WS, wv)
    a(f"{done}:")
    a("s_endpgm")
    kernel_desc(a, name, 256 + 120, 96, accum=256)
    return dict(name=name, grid=256, block=256, lds=163840)
```

```python
import math
S, D, H, DH, F = 2048, 640, 32, 20, 1536
WS_Q   = 0x0000000; SZ_Q = 32*81920
WS_KV  = 0x0400000; SZ_KV = 32*163840
WS_OF  = 0x0A00000; SZ_OF = S*D*2
WS_H   = 0x0D00000; SZ_H = S*D*2
WS_ACT = 0x1000000; SZ_ACT = S*F*2
WS_WO  = 0x1600000; SZ_WO = D*D*2
WS_WGU = 0x1700000; SZ_WGU = D*F*2*2
WS_WD  = 0x1B00000; SZ_WD = F*D*2
QSCALE = (DH ** -0.5) * math.log2(math.e)
EPS = 1e-5
KA_X, KA_WQKV, KA_WO, KA_BX, KA_WG, KA_WU, KA_WD, KA_OUT, KA_DBG, KA_WS = [8*i for i in range(10)]
WS_ST  = 0x1E00000; SZ_ST = S*64
WS_FL  = 0x1F00000; SZ_FL = 16384
FL1, FL2, FL3 = WS_FL + 1024, WS_FL + 1024 + 4096, WS_FL + 1024 + 8192
WS_SPAN = 0x2000000
GS = 0x110000; KVO = 2*163840
FL0, FLR = WS_FL + 13312, WS_FL + 17408
QS2 = QSCALE ** 0.5
FL1 = WS_FL + 0x10000
```

```python
import sys
from asmlib import *
from layout import *
import k1
def build(which):
    a = Asm()
    launches = []
    body = Asm()
    for w in which:
        launches.append(w(body))
    hdr = []
    for l in launches:
        hdr.append(f"; @launch kernel={l['name']} grid=({l['grid']},1,1) block=({l['block']},1,1) lds={l['lds']}")
    hdr.append('.amdgcn_target "amdgcn-amd-amdhsa--gfx950"')
    return "\n".join(hdr) + "\n" + body.text()
if __name__ == "__main__":
    ks = [k1.gen_k1]
    try:
        import k2; ks.append(k2.gen_k2)
        import k3; ks.append(k3.gen_k3)
        import k4; ks.append(k4.gen_k4)
        ks.append(k3.gen_k5)
    except ImportError as e:
        print("partial:", e)
    out = sys.argv[1] if len(sys.argv) > 1 else "sequential_preLN__mha_block__glu_gated_bilinear__prompt.s"
    open(out, "w").write(build(ks))
```

```python
class Asm:
    def __init__(self):
        self.lines = []
        self.uid = 0
    def __call__(self, s):
        for l in s.split("\n"):
            l = l.strip()
            if not l: continue
            if l.endswith(":") or l.startswith("."):
                self.lines.append(l)
            else:
                self.lines.append("  " + l)
    def label(self, base):
        self.uid += 1
        return f"L_{base}_{self.uid}"
    def text(self):
        return "\n".join(self.lines) + "\n"

def v(i, n=1):
    return f"v{i}" if n == 1 else f"v[{i}:{i+n-1}]"
def s(i, n=1):
    return f"s{i}" if n == 1 else f"s[{i}:{i+n-1}]"

def kernel_begin(a, name, align=8):
    a(f".text\n.globl {name}\n.p2align {align}\n.type {name},@function\n{name}:")

def kernel_desc(a, name, nvgpr, nsgpr=96, accum=None):
    if accum is None:
        accum = min(256, (nvgpr + 3) // 4 * 4)
    a(f""".section .rodata,"a"
.p2align 6
.amdhsa_kernel {name}
.amdhsa_next_free_vgpr {nvgpr}
.amdhsa_next_free_sgpr {nsgpr}
.amdhsa_accum_offset {accum}
.amdhsa_group_segment_fixed_size 0
.amdhsa_kernarg_size 80
.amdhsa_user_sgpr_count 2
.amdhsa_user_sgpr_kernarg_segment_ptr 1
.amdhsa_system_sgpr_workgroup_id_x 1
.end_amdhsa_kernel""")

def srd(a, d, base, nbytes, off=0):
    if off:
        a(f"s_add_u32 s{d}, s{base}, {off}")
        a(f"s_addc_u32 s{d+1}, s{base+1}, 0")
    else:
        a(f"s_mov_b32 s{d}, s{base}")
        a(f"s_mov_b32 s{d+1}, s{base+1}")
    a(f"s_mov_b32 s{d+2}, {nbytes}")
    a(f"s_mov_b32 s{d+3}, 0x20000")

import struct
def f32(x):
    return "0x%08x" % struct.unpack("<I", struct.pack("<f", x))[0]

def interleave(main, fill):
    out = []
    n, m = len(main), len(fill)
    k = 0
    for i, x in enumerate(main):
        out.append(x)
        want = (i + 1) * m // n
        while k < want:
            out.append(fill[k]); k += 1
    return out

import os
PROF = int(os.environ.get("PROF", "0"))
WS_PROF = 0x3000000
class Prof:
    def __init__(self, a, kid, base=64, vtmp=250):
        self.a, self.kid, self.base, self.n, self.vtmp = a, kid, base, 0, vtmp
    def start(self):
        if not PROF: return
        self.a(f"s_memrealtime s[{self.base}:{self.base+1}]")
        self.a(f"s_memtime s[{self.base+2}:{self.base+3}]")
        self.n = 2
    def stamp(self, idx):
        if not PROF: return
        b = self.base + 4 + 2*idx
        self.a(f"s_memtime s[{b}:{b+1}]")
        self.a("s_waitcnt lgkmcnt(0)")
    def flush(self, nst, wsreg, wavereg=None):
        if not PROF: return
        a = self.a; b = self.base; t = self.vtmp
        e = b + 4 + 2*nst
        a("s_waitcnt vmcnt(0)")
        a(f"s_memtime s[{e}:{e+1}]")
        a(f"s_memrealtime s[{e+2}:{e+3}]")
        a("s_waitcnt lgkmcnt(0)")
        a(f"s_mov_b64 exec, -1")
        a(f"s_lshl_b32 s{e+4}, s2, 3")
        a(f"s_add_u32 s{e+4}, s{e+4}, s{wavereg}")
        a(f"s_lshl_b32 s{e+4}, s{e+4}, 7")
        a(f"s_add_u32 s{e+4}, s{e+4}, {WS_PROF + self.kid*0x40000}")
        a(f"s_add_u32 s{e+4}, s{e+4}, s{wsreg}")
        a(f"s_addc_u32 s{e+5}, s{wsreg+1}, 0")
        a(f"v_mov_b32 v{t}, 0")
        for i in range(nst + 4):
            a(f"v_mov_b32 v{t+1}, s{b+2*i}")
            a(f"global_store_dword v{t}, v{t+1}, s[{e+4}:{e+5}] offset:{4*i}")
        a(f"s_getreg_b32 s{e+6}, hwreg(HW_REG_XCC_ID)")
        a(f"v_mov_b32 v{t+1}, s{e+6}")
        a(f"global_store_dword v{t}, v{t+1}, s[{e+4}:{e+5}] offset:124")
        a("s_waitcnt vmcnt(0)")

def code_prefetch(a, l0, l1, idx, sp, st, lane, vt):
    here = a.label("pc"); skip = a.label("npf")
    a(f"s_lshl_b32 s{st}, s{idx}, 13")
    a(f"s_cmp_ge_u32 s{st}, {l1}-{l0}")
    a(f"s_cbranch_scc1 {skip}")
    a(f"s_getpc_b64 s[{sp}:{sp+1}]")
    a(f"{here}:")
    a(f"s_add_u32 s{sp}, s{sp}, {l0}-{here}")
    a(f"s_addc_u32 s{sp+1}, s{sp+1}, 0")
    a(f"v_lshl_add_u32 v{vt}, v{lane}, 7, s{st}")
    a(f"v_min_u32 v{vt}, {l1}-{l0}-4, v{vt}")
    a(f"global_load_dword v{vt}, v{vt}, s[{sp}:{sp+1}]")
    a(f"{skip}:")
```

```python
from asmlib import *
from layout import *

K1_STAGE = 16*1040 + 16384
K1_BOFF = 16*1040
K1_STATS = 4*K1_STAGE
K1_LDS = K1_STATS + 1536

EXP = int(os.environ.get('EXP','0'))
def gen_k1(a, name="k1_qkv_kernel"):
    kernel_begin(a, name)
    SX, SW, SO = 8, 12, 16
    rb, cb, wv = 22, 23, 24
    soffA, soffB, dst_st, rd_st, cnt = 25, 26, 27, 28, 29
    wr, wc = 30, 31
    t0, t1, t2 = 32, 33, 34
    so0, so1 = 35, 36
    m0A, m0B = 37, 38
    rscale = 39
    kc, baseA, baseB, himask = 40, 41, 42, 43
    vA = [4,5,6,7]; vB = [8,9,10,11]
    aBase = [12,13]; bBase = [14,15]
    aCur = [16,17]; bCur = [18,19]
    vsq, vsum, vcs, vones, utmp = 206, 208, 212, 20, 216
    eaddr = list(range(24, 32))
    FA = lambda st, i: 32 + st*8 + i*4
    FB = lambda st, i: 48 + st*8 + i*4
    ACC = lambda ai, bi: 64 + (ai*2 + bi)*16
    lane, r, h, tmp, tmp2, tmp3 = 128, 129, 130, 131, 132, 133
    done = a.label("k1done"); spare = a.label("k1spare"); helper = a.label("k1help")
    P = Prof(a, 0, 64, 250)
    P.start()
    a(f"s_load_dwordx4 s[4:7], s[0:1], {KA_X}")
    a(f"s_load_dwordx2 s[20:21], s[0:1], {KA_WS}")
    a(f"v_lshrrev_b32 v1, 6, v0")
    a(f"s_cmp_ge_u32 s2, 256")
    a(f"s_cbranch_scc1 {done}")
    a(f"v_readfirstlane_b32 s{wv}, v1")
    a(f"v_and_b32 v{lane}, 63, v0")
    a(f"s_and_b32 s{t0}, s2, 3")
    a(f"s_cmp_ge_u32 s{wv}, 4")
    a(f"s_cbranch_scc1 {helper}")
    a(f"s_lshl_b32 s{rb}, s{t0}, 2")
    a(f"s_bfe_u32 s{t0}, s2, 0x20003")
    a(f"s_add_u32 s{rb}, s{rb}, s{t0}")
    a(f"s_bfe_u32 s{t0}, s2, 0x10002")
    a(f"s_lshl_b32 s{cb}, s{t0}, 3")
    a(f"s_lshr_b32 s{t0}, s2, 5")
    a(f"s_add_u32 s{cb}, s{cb}, s{t0}")
    a(f"s_cmp_ge_u32 s{cb}, 15")
    a(f"s_cbranch_scc1 {spare}")
    a(f"v_lshrrev_b32 v{tmp}, 5, v{lane}")
    a(f"v_lshlrev_b32 v{tmp}, 5, v{tmp}")
    a(f"v_bfe_u32 v{tmp2}, v{lane}, 3, 1")
    a(f"v_add_u32 v{tmp}, v{tmp}, v{tmp2}")
    a(f"v_and_b32 v{tmp2}, 16, v{lane}")
    a(f"v_add_u32 v{tmp}, v{tmp}, v{tmp2}")
    a(f"s_lshr_b32 s{wr}, s{wv}, 1")
    a(f"s_and_b32 s{wc}, s{wv}, 1")
    a(f"s_lshl_b32 s{t0}, s{wr}, 6")
    a(f"s_lshl_b32 s{t1}, s{wc}, 3")
    a(f"s_add_u32 s{t0}, s{t0}, s{t1}")
    a(f"v_add_u32 v{tmp}, s{t0}, v{tmp}")
    a(f"v_mul_u32_u24 v{tmp}, 1280, v{tmp}")
    a(f"v_and_b32 v{tmp2}, 7, v{lane}")
    a(f"v_lshl_add_u32 v{vA[0]}, v{tmp2}, 4, v{tmp}")
    for i in range(1, 4):
        a(f"v_add_u32 v{vA[i]}, {i*(2*1280 - 1040)}, v{vA[0]}")
    a(f"v_lshrrev_b32 v{tmp}, 4, v{lane}")
    a(f"v_lshlrev_b32 v{tmp2}, 2, v{tmp}")
    a(f"v_and_b32 v{tmp3}, 15, v{lane}")
    a(f"v_xor_b32 v{tmp2}, v{tmp2}, v{tmp3}")
    a(f"s_lshl_b32 s{t0}, s{wv}, 4")
    a(f"v_add_u32 v{tmp}, s{t0}, v{tmp}")
    a(f"v_mul_u32_u24 v{tmp}, 3840, v{tmp}")
    a(f"v_lshl_add_u32 v{vB[0]}, v{tmp2}, 4, v{tmp}")
    for i in range(1, 4):
        a(f"v_add_u32 v{vB[i]}, {i*(4*3840 - 1024)}, v{vB[0]}")
    a(f"s_bfe_u32 s{t0}, s2, 0x20003")
    a(f"s_mul_i32 s{t0}, s{t0}, 3")
    a(f"s_lshr_b32 s{t1}, s2, 5")
    a(f"s_add_u32 s{kc}, s{t0}, s{t1}")
    a(f"s_sub_u32 s{t0}, s{kc}, 10")
    a(f"s_cmp_ge_u32 s{kc}, 10")
    a(f"s_cselect_b32 s{kc}, s{t0}, s{kc}")
    a(f"s_mul_i32 s{baseA}, s{rb}, {128*1280}")
    a(f"s_lshl_b32 s{baseB}, s{cb}, 8")
    a(f"s_mul_i32 s{m0A}, s{wv}, {4*1040}")
    a(f"s_lshl_b32 s{m0B}, s{wv}, 12")
    a(f"s_add_u32 s{m0B}, s{m0B}, {K1_BOFF}")
    P.stamp(5)
    a(f"s_waitcnt lgkmcnt(0)")
    P.stamp(6)
    srd(a, SX, 4, S*D*2)
    srd(a, SW, 6, D*3*D*2)
    def dmaA():
        return [f"buffer_load_dwordx4 v{vA[i]}, s[{SX}:{SX+3}], s{soffA} offen offset:{1040*i} lds" for i in range(4)]
    def dmaB():
        return [f"buffer_load_dwordx4 v{vB[i]}, s[{SW}:{SW+3}], s{soffB} offen offset:{1024*i} lds" for i in range(4)]
    def offs():
        return [f"s_lshl_b32 s{soffA}, s{kc}, 7", f"s_add_u32 s{soffA}, s{soffA}, s{baseA}",
                f"s_mul_i32 s{soffB}, s{kc}, {64*3840}", f"s_add_u32 s{soffB}, s{soffB}, s{baseB}",
                f"s_add_u32 s{kc}, s{kc}, 1", f"s_cmp_eq_u32 s{kc}, 10", f"s_cselect_b32 s{kc}, 0, s{kc}"]
    for c in range(3):
        a(f"s_add_u32 m0, s{m0A}, {c*K1_STAGE}")
        for x in offs(): a(x)
        for x in dmaA(): a(x)
        a(f"s_add_u32 m0, s{m0B}, {c*K1_STAGE}")
        a("s_nop 0")
        for x in dmaB(): a(x)
    for x in offs(): a(x)
    P.stamp(7)
    a(f"s_mov_b32 s{dst_st}, {3*K1_STAGE}")
    a(f"s_mov_b32 s{rd_st}, 0")
    a(f"v_and_b32 v{r}, 31, v{lane}")
    a(f"v_lshrrev_b32 v{h}, 5, v{lane}")
    a(f"v_bfe_u32 v{tmp}, v{r}, 1, 3")
    a(f"v_mul_u32_u24 v{tmp}, 1040, v{tmp}")
    a(f"v_and_b32 v{tmp2}, 1, v{r}")
    a(f"v_lshl_add_u32 v{tmp}, v{tmp2}, 7, v{tmp}")
    a(f"v_lshrrev_b32 v{tmp2}, 4, v{r}")
    a(f"v_lshl_add_u32 v{tmp}, v{tmp2}, 8, v{tmp}")
    a(f"v_lshl_add_u32 v{tmp}, v{h}, 4, v{tmp}")
    a(f"s_mul_i32 s{t0}, s{wr}, {8*1040}")
    a(f"s_lshl_b32 s{t1}, s{wc}, 9")
    a(f"s_add_u32 s{t2}, s{t0}, s{t1}")
    a(f"v_add_u32 v{aBase[0]}, s{t2}, v{tmp}")
    a(f"s_xor_b32 s{t1}, s{t1}, 512")
    a(f"s_add_u32 s{t2}, s{t0}, s{t1}")
    a(f"v_add_u32 v{aBase[1]}, s{t2}, v{tmp}")
    a(f"v_bfe_u32 v{tmp}, v{lane}, 2, 2")
    a(f"v_lshl_add_u32 v{tmp2}, v{h}, 3, v{tmp}")
    a(f"v_lshlrev_b32 v{tmp2}, 8, v{tmp2}")
    a(f"v_bfe_u32 v{tmp3}, v{lane}, 4, 1")
    a(f"v_lshl_add_u32 v{tmp2}, v{tmp3}, 5, v{tmp2}")
    a(f"v_and_b32 v{tmp3}, 3, v{lane}")
    a(f"v_lshl_add_u32 v{tmp2}, v{tmp3}, 3, v{tmp2}")
    a(f"v_add_u32 v{tmp2}, {K1_BOFF}, v{tmp2}")
    a(f"s_lshl_b32 s{t0}, s{wc}, 1")
    a(f"s_add_u32 s{t0}, s{t0}, s{wr}")
    a(f"v_xor_b32 v{tmp3}, s{t0}, v{tmp}")
    a(f"v_lshl_add_u32 v{bBase[0]}, v{tmp3}, 6, v{tmp2}")
    a(f"v_xor_b32 v{tmp3}, 1, v{tmp3}")
    a(f"v_lshl_add_u32 v{bBase[1]}, v{tmp3}, 6, v{tmp2}")
    for i in range(2):
        a(f"v_mov_b32 v{aCur[i]}, v{aBase[i]}")
        a(f"v_mov_b32 v{bCur[i]}, v{bBase[i]}")
    for i in range(10):
        a(f"v_mov_b32 v{vsq+i}, 0")
    a(f"v_lshrrev_b32 v{tmp}, 2, v{lane}")
    a(f"v_xor_b32 v{tmp}, v{tmp}, v{lane}")
    a(f"v_bfe_i32 v{tmp}, v{tmp}, 2, 1")
    a(f"v_mov_b32 v{vones}, 0x3f803f80")
    a(f"v_bfi_b32 v{vones}, v{tmp}, 0, v{vones}")
    for i in range(1, 4):
        a(f"v_mov_b32 v{vones+i}, v{vones}")
    a(f"s_mov_b32 s{himask}, 0xffff0000")
    for i in range(64):
        a(f"v_mov_b32 v{64+i}, 0")
    a(f"s_lshl_b32 s{t0}, s{rb}, 2")
    a(f"s_lshl_b32 s{t1}, s{wr}, 1")
    a(f"s_add_u32 s{t0}, s{t0}, s{t1}")
    a(f"s_add_u32 s{so0}, s{t0}, s{wc}")
    a(f"s_xor_b32 s{so1}, s{so0}, 1")
    a(f"s_mov_b32 s{cnt}, 0")

    def reads(step, st):
        out = []
        for i in range(2):
            out.append(f"ds_read_b128 {v(FA(st,i),4)}, v{aCur[i]} offset:{step*32}")
            for t in range(2):
                out.append(f"ds_read_b64_tr_b16 {v(FB(st,i)+2*t,2)}, v{bCur[i]} offset:{(16*step+4*t)*256}")
        return out
    def dots(st):
        out = []
        for k in range(4):
            u = utmp + 2*k
            out.append(f"v_lshlrev_b32 v{u}, 16, v{FA(st,0)+k}")
            out.append(f"v_and_b32 v{u+1}, s{himask}, v{FA(st,0)+k}")
        o2 = []
        for k in range(4):
            u = utmp + 2*k
            o2.append(f"v_fmac_f32 v{vsq}, v{u}, v{u}")
            o2.append(f"v_fmac_f32 v{vsq+1}, v{u+1}, v{u+1}")
        return out[:4] + o2[:2] + out[4:6] + o2[2:4] + out[6:] + o2[4:]
    def mainloop(vmode):
        lp = a.label("k1loop")
        P.stamp(0)
        a(f"s_waitcnt vmcnt(16)")
        a(f"s_barrier")
        P.stamp(1)
        for x in reads(0, 0): a(x)
        a(f".p2align 6")
        a(f"{lp}:")
        dA, dB = dmaA(), dmaB()
        for step in range(4):
            st = step & 1
            mf = []
            for ai in range(2):
                for bi in range(2):
                    A_, B_ = (FA(st,ai), FB(st,bi)) if vmode else (FB(st,bi), FA(st,ai))
                    mf.append(f"v_mfma_f32_32x32x16_bf16 {v(ACC(ai,bi),16)}, {v(A_,4)}, {v(B_,4)}, {v(ACC(ai,bi),16)}")
            cs = f"v_mfma_f32_16x16x32_bf16 {v(vcs,4)}, {v(vones,4)}, {v(FB(st,0),4)}, {v(vcs,4)}"
            sm = f"v_mfma_f32_16x16x32_bf16 {v(vsum,4)}, {v(vones,4)}, {v(FA(st,0),4)}, {v(vsum,4)}"
            d = dots(st)
            a("s_waitcnt lgkmcnt(0)")
            if step == 0:
                e0 = [f"s_add_u32 m0, s{m0A}, s{dst_st}", f"s_cmp_lt_u32 s{cnt}, 7", f"s_cselect_b32 s{SX+2}, {S*D*2}, 0", f"s_cselect_b32 s{SW+2}, {D*3*D*2}, 0"]
                e1, e2 = [dA[0]], [dA[1]]
            elif step == 1:
                e0 = [dA[2]]
                e1 = []
                e2 = [dA[3], f"s_add_u32 m0, s{m0B}, s{dst_st}", f"s_mov_b32 s{dst_st}, s{rd_st}"]
            elif step == 2:
                e0 = [dB[0], f"s_add_u32 s{rd_st}, s{rd_st}, {K1_STAGE}", f"s_cmp_eq_u32 s{rd_st}, {4*K1_STAGE}", f"s_cselect_b32 s{rd_st}, 0, s{rd_st}"]
                e1 = [dB[1], f"s_add_u32 s{cnt}, s{cnt}, 1"]
                e2 = [dB[2]] + [f"v_add_u32 v{aCur[i]}, s{rd_st}, v{aBase[i]}" for i in range(2)] + [f"v_add_u32 v{bCur[i]}, s{rd_st}, v{bBase[i]}" for i in range(2)]
            if step < 3:
                rd = reads(step+1, st^1)
                seq = [mf[0]] + rd[:3] + d[:3] + [mf[1]] + rd[3:] + e0 + d[3:5] + [cs] + d[5:7] + [mf[2]] + e1 + d[7:12] + [mf[3]] + d[12:] + e2 + [sm]
            else:
                rd = reads(0, st^1)
                seq = [mf[0], dB[3], "s_waitcnt vmcnt(16)", "s_barrier"] + rd[:3] + [mf[1]] + rd[3:] + d[:4] + [cs] + d[4:6] + [mf[2]] + d[6:12] + [mf[3]] + d[12:] + [sm] + offs() + [f"s_cmp_lt_u32 s{cnt}, 10", f"s_cbranch_scc1 {lp}"]
            for x in seq:
                if EXP == 1 and x.startswith("buffer_load"): continue
                if EXP == 2 and (x.startswith("v_") or x.startswith("ds_read")): continue
                a(x)
    def stats():
        P.stamp(2)
        a("s_nop 4")
        a(f"v_add_f32 v{vsq}, v{vsq}, v{vsq+1}")
        for x in (vsq,):
            a(f"v_mov_b32 v{tmp}, v{x}")
            a("s_nop 1")
            a(f"v_permlane32_swap_b32 v{tmp}, v{x}")
            a("s_nop 1")
            a(f"v_add_f32 v{x}, v{x}, v{tmp}")
        a(f"v_mul_f32 v{vsum}, {f32(1.0/D)}, v{vsum}")
        a(f"v_mul_f32 v{vsq}, {f32(1.0/D)}, v{vsq}")
        a(f"v_fma_f32 v{vsq}, -v{vsum}, v{vsum}, v{vsq}")
        a(f"v_max_f32 v{vsq}, 0, v{vsq}")
        a(f"v_add_f32 v{vsq}, {f32(EPS)}, v{vsq}")
        a(f"v_rsq_f32 v{vsq}, v{vsq}")
        a(f"v_sub_f32 v{vsum}, 0, v{vsum}")
        a(f"s_lshl_b32 s{t0}, s{wv}, 7")
        a(f"s_add_u32 s{t0}, s{t0}, {K1_STATS}")
        a(f"v_lshl_add_u32 v{tmp}, v{r}, 2, s{t0}")
        a(f"v_mul_f32 v{vsq}, s{rscale}, v{vsq}")
        a(f"s_lshl_b32 s{t0}, s{wc}, 8")
        a(f"s_lshl_b32 s{t1}, s{wr}, 7")
        a(f"s_add_u32 s{t0}, s{t0}, s{t1}")
        a(f"s_add_u32 s{t0}, s{t0}, {K1_STATS+1024}")
        a(f"v_lshl_add_u32 v{tmp2}, v{r}, 2, s{t0}")
        a(f"ds_write_b32 v{tmp}, v{vsq}")
        a(f"ds_write_b32 v{tmp}, v{vsum} offset:512")
        a(f"ds_write_b32 v{tmp2}, v{vcs}")
        a(f"s_waitcnt lgkmcnt(0)")
        a(f"s_barrier")
        P.stamp(3)

    lV = a.label("k1v")
    a(f"s_cmp_ge_u32 s{cb}, 10")
    a(f"s_cbranch_scc1 {lV}")
    a(f"s_cmp_ge_u32 s{cb}, 5")
    a(f"s_cselect_b32 s{t0}, 5, 0")
    a(f"s_sub_u32 s{t0}, s{cb}, s{t0}")
    a(f"s_cmp_ge_u32 s{cb}, 5")
    a(f"s_cselect_b32 s{t1}, 1, 0")
    a(f"s_cselect_b32 s{rscale}, 1.0, {f32(QSCALE)}")
    a(f"s_cselect_b32 s{SO}, {WS_KV}, {WS_Q}")
    a(f"s_lshl_b32 s{SO+2}, {SZ_Q}, s{t1}")
    a(f"s_lshl_b32 s{t2}, 81920, s{t1}")
    a(f"s_sub_u32 s{t2}, s{t2}, 1280")
    a(f"s_lshl_b32 s{t1}, 1280, s{t1}")
    a(f"s_add_u32 s{SO}, s{SO}, s20")
    a(f"s_addc_u32 s{SO+1}, s21, 0")
    a(f"s_mov_b32 s{SO+3}, 0x20000")
    a(f"s_mul_i32 s{so0}, s{so0}, s{t1}")
    a(f"s_mul_i32 s{so1}, s{so1}, s{t1}")
    a(f"s_lshl_b32 s{t0}, s{t0}, 5")
    a(f"s_lshl_b32 s{t1}, s{wc}, 4")
    a(f"s_add_u32 s{t0}, s{t0}, s{t1}")
    a(f"s_lshl_b32 s{t1}, s{wr}, 3")
    a(f"s_add_u32 s{t0}, s{t0}, s{t1}")
    a(f"v_lshlrev_b32 v{tmp3}, 3, v{r}")
    for bi in range(2):
        if bi == 1:
            a(f"s_xor_b32 s{t0}, s{t0}, 8")
        for g in range(4):
            e = eaddr[bi*4+g]
            a(f"v_add3_u32 v{tmp}, s{t0}, v{h}, {2*g}")
            a(f"v_mul_u32_u24 v{tmp2}, 205, v{tmp}")
            a(f"v_lshrrev_b32 v{tmp2}, 10, v{tmp2}")
            a(f"v_lshl_add_u32 v{e}, v{tmp}, 8, v{tmp3}")
            a(f"v_mad_u32_u24 v{e}, v{tmp2}, s{t2}, v{e}")
    mainloop(False)
    stats()
    RM = [134, 136]
    CS = 140
    a(f"v_xor_b32 v{tmp3}, 128, v{tmp}")
    a(f"ds_read_b32 v134, v{tmp}")
    a(f"ds_read_b32 v136, v{tmp} offset:512")
    a(f"ds_read_b32 v138, v{tmp3}")
    a(f"ds_read_b32 v172, v{tmp3} offset:512")
    Rr = [134, 138]; Mr = [136, 172]
    a(f"v_lshl_add_u32 v{tmp2}, v{h}, 4, s{t0}")
    a(f"v_xor_b32 v{tmp3}, 128, v{tmp2}")
    for bi in range(2):
        for g in range(4):
            a(f"ds_read_b128 {v(CS+bi*16+g*4,4)}, v{tmp2 if bi==0 else tmp3} offset:{g*32}")
    a(f"s_waitcnt lgkmcnt(0)")
    for ai in range(2):
        for bi in range(2):
            A0 = ACC(ai,bi)
            for p in range(8):
                a(f"v_pk_fma_f32 {v(A0+2*p,2)}, {v(CS+bi*16+2*p,2)}, {v(Mr[ai],2)}, {v(A0+2*p,2)} op_sel_hi:[1,0,1]")
            for p in range(8):
                a(f"v_pk_mul_f32 {v(A0+2*p,2)}, {v(A0+2*p,2)}, {v(Rr[ai],2)} op_sel_hi:[1,0]")
            for p in range(8):
                a(f"v_cvt_pk_bf16_f32 v{A0+p}, v{A0+2*p}, v{A0+2*p+1}")
            for g in range(4):
                a(f"buffer_store_dwordx2 {v(A0+2*g,2)}, v{eaddr[bi*4+g]}, s[{SO}:{SO+3}], s{so0 if ai==0 else so1} offen")
    P.stamp(4)
    P.flush(8, 20, wv)
    a("s_endpgm")
    a(f"{lV}:")
    srd(a, SO, 20, SZ_KV, WS_KV)
    a(f"s_mov_b32 s{rscale}, 1.0")
    a(f"s_mul_i32 s{so0}, s{so0}, 2560")
    a(f"s_mul_i32 s{so1}, s{so1}, 2560")
    a(f"s_sub_u32 s{t0}, s{cb}, 10")
    a(f"s_lshl_b32 s{t0}, s{t0}, 7")
    a(f"s_lshl_b32 s{t1}, s{wc}, 6")
    a(f"s_add_u32 s{t0}, s{t0}, s{t1}")
    a(f"s_lshl_b32 s{t1}, s{wr}, 5")
    a(f"s_add_u32 s{t0}, s{t0}, s{t1}")
    a(f"s_mov_b32 s{t2}, {163840-320}")
    a(f"v_mul_u32_u24 v{tmp3}, 320, v{h}")
    a(f"v_add_u32 v{tmp3}, 1280, v{tmp3}")
    for bi in range(2):
        if bi == 1:
            a(f"s_xor_b32 s{t0}, s{t0}, 32")
        e = eaddr[bi]
        a(f"v_add_u32 v{tmp}, s{t0}, v{r}")
        a(f"v_mul_u32_u24 v{tmp2}, 205, v{tmp}")
        a(f"v_lshrrev_b32 v{tmp2}, 12, v{tmp2}")
        a(f"v_lshl_add_u32 v{e}, v{tmp}, 4, v{tmp3}")
        a(f"v_mad_u32_u24 v{e}, v{tmp2}, s{t2}, v{e}")
    mainloop(True)
    stats()
    a(f"v_xor_b32 v{tmp3}, 128, v{tmp2}")
    a(f"ds_read_b32 v134, v{tmp2}")
    a(f"ds_read_b32 v136, v{tmp3}")
    Cr = [134, 136]
    RR, MM = 140, 172
    a(f"s_lshl_b32 s{t0}, s{wv}, 7")
    a(f"s_add_u32 s{t0}, s{t0}, {K1_STATS}")
    a(f"v_lshl_add_u32 v{tmp}, v{h}, 4, s{t0}")
    a(f"v_xor_b32 v{tmp3}, 128, v{tmp}")
    for ai in range(2):
        for g in range(4):
            a(f"ds_read_b128 {v(MM+ai*16+g*4,4)}, v{tmp if ai==0 else tmp3} offset:{512+g*32}")
        for g in range(4):
            a(f"ds_read_b128 {v(RR+ai*16+g*4,4)}, v{tmp if ai==0 else tmp3} offset:{g*32}")
    a(f"s_waitcnt lgkmcnt(0)")
    for ai in range(2):
        for bi in range(2):
            A0 = ACC(ai,bi)
            for p in range(8):
                a(f"v_pk_fma_f32 {v(A0+2*p,2)}, {v(MM+ai*16+2*p,2)}, {v(Cr[bi],2)}, {v(A0+2*p,2)} op_sel_hi:[1,0,1]")
            for p in range(8):
                a(f"v_pk_mul_f32 {v(A0+2*p,2)}, {v(A0+2*p,2)}, {v(RR+ai*16+2*p,2)}")
            for p in range(8):
                a(f"v_cvt_pk_bf16_f32 v{A0+p}, v{A0+2*p}, v{A0+2*p+1}")
            for g in range(2):
                a(f"buffer_store_dwordx4 {v(A0+4*g,4)}, v{eaddr[bi]}, s[{SO}:{SO+3}], s{so0 if ai==0 else so1} offen offset:{640*g}")
    P.stamp(4)
    P.flush(8, 20, wv)
    a(f"{done}:")
    a("s_endpgm")
    a(f"{spare}:")
    a(f"v_lshlrev_b32 v1, 2, v0")
    a(f"v_mov_b32 v2, 0")
    a(f"s_lshl_b32 s{t0}, s{rb}, 10")
    a(f"s_waitcnt lgkmcnt(0)")
    srd(a, SO, 20, SZ_FL, WS_FL)
    a(f"buffer_store_dword v2, v1, s[{SO}:{SO+3}], s{t0} offen")
    a("s_endpgm")
    import rp
    RB0 = int(os.environ.get('RB0', '1')); RB1 = int(os.environ.get('RB1', '6')); RFL = os.environ.get('RFL', '')
    a(f"{helper}:")
    a(f"s_load_dwordx2 s[50:51], s[0:1], {KA_WO}")
    a(f"s_load_dwordx4 s[52:55], s[0:1], {KA_WG}")
    a(f"s_load_dwordx2 s[56:57], s[0:1], {KA_WD}")
    a(f"s_lshl_b32 s30, s2, 2")
    a(f"s_add_u32 s30, s30, s{wv}")
    a(f"s_sub_u32 s30, s30, 4")
    a(f"s_add_u32 s31, s30, 1024")
    a(f"s_min_u32 s37, s31, 1639")
    a(f"s_waitcnt lgkmcnt(0)")
    srd(a, 8, 20, WS_SPAN)
    rp.rp_addr(a, 30, 50, 12, 32, 33, 34, 35, 36, (40,41,42,43), lane, (2,3,4,5), 6, 7, 8)
    rp.rp_addr(a, 37, 50, 16, 44, 45, 46, 47, 36, (40,41,42,43), lane, (2,3,4,5), 9, 10, 11)
    a("s_mov_b32 s40, 0x05040100"); a("s_mov_b32 s41, 0x07060302")
    for i in range(RB0): a("s_barrier")
    for x in rp.rp_loads(12, 32, 33, 34, 6, 7, 16): a(x)
    one = a.label("k1one"); one2 = a.label("k1one")
    a(f"s_cmp_ge_u32 s31, 1640")
    a(f"s_cbranch_scc1 {one}")
    for x in rp.rp_loads(16, 44, 45, 46, 9, 10, 48): a(x)
    a(f"{one}:")
    for i in range(RB0, RB1): a("s_barrier")
    a("s_waitcnt vmcnt(0)")
    for x in rp.rp_finish(8, 35, 40, 41, 16, 32, 8): a(x + (" " + RFL if x.startswith("buffer") else ""))
    a("s_barrier")
    a(f"s_cbranch_scc1 {one2}")
    for x in rp.rp_finish(8, 47, 40, 41, 48, 64, 11): a(x + (" " + RFL if x.startswith("buffer") else ""))
    a(f"{one2}:")
    for i in range(RB1+1, 11): a("s_barrier")
    if not os.environ.get('NOCP'):
        a(f"s_lshr_b32 s{t0}, s30, 5")
        a(f"s_lshl_b32 s{t0}, s{t0}, 2")
        a(f"s_add_u32 s{t0}, s{t0}, s{wv}")
        a(f"s_sub_u32 s{t0}, s{t0}, 4")
        code_prefetch(a, "mk_attn_ffn_kernel", "L_mk_end", t0, 44, t1, lane, tmp)
    a("s_barrier")
    a("s_endpgm")
    kernel_desc(a, name, 256 if PROF else 224, 96)
    return dict(name=name, grid=256, block=512, lds=K1_LDS)
```

```python
from asmlib import *
from layout import *

def ag(i, n=1):
    return f"a{i}" if n == 1 else f"a[{i}:{i+n-1}]"

UPTO = int(os.environ.get('UPTO', '5'))
SPIN = int(os.environ.get('SPIN', '200000'))
IMPURE = int(os.environ.get('IMPURE', '0'))
WSTART = int(os.environ.get('WSTART', '19'))

def gen_mk(a, name="mk_attn_ffn_kernel"):
    kernel_begin(a, name)
    P = Prof(a, 1, 64, 9)
    SW, SX, SOUT, SR = 8, 12, 16, 20
    WS = 24
    g, m, wv, kvo, pure, spin, myid = 26, 27, 28, 29, 30, 31, 32
    t0, t1, t2, t3 = 33, 34, 35, 36
    fbk = 37
    hd, qb, wdp = 50, 51, 52
    vmask = 38
    st1, st2, st3, ssh, task = 40, 41, 42, 43, 44
    sX = [45, 46]
    wo_, wgu_ = 47, 58
    kvb = 59
    so = [60, 61, 62, 63]
    lane, voff = 1, 2
    kb = [3, 4, 5]; vb = [6, 7, 8]
    tmp, tmp2, tmp3, tmp4 = 9, 10, 11, 12
    Q = [14, 20]; K = [26, 32]; V = [38, 46]; PP = 54
    NEG = [64, 80]; S_ = [96, 112]; O = [128, 144]
    RL = [160, 176]; RO = [192, 208]; ro = [224, 225]; ra, rb_ = 226, 227
    RES = 244
    raddr = 13
    WOF = lambda n: (ag(240 + 4*n, 4) if n < 4 else v(160 + 4*(n-4), 4))
    done = a.label("mkdone")
    P.start()
    a(f"s_load_dwordx2 s[{WS}:{WS+1}], s[0:1], {KA_WS}")
    a(f"s_load_dwordx2 s[4:5], s[0:1], {KA_X}")
    a(f"s_load_dwordx2 s[6:7], s[0:1], {KA_OUT}")
    a(f"s_cmp_ge_u32 s2, 256")
    a(f"s_cbranch_scc1 {done}")
    a(f"v_lshrrev_b32 v{tmp}, 6, v0")
    a(f"v_and_b32 v{lane}, 63, v0")
    a(f"s_and_b32 s{g}, s2, 7")
    a(f"v_readfirstlane_b32 s{wv}, v{tmp}")
    a(f"s_lshr_b32 s{m}, s2, 3")
    a(f"v_lshlrev_b32 v{voff}, 4, v{lane}")
    a(f"v_and_b32 v{tmp}, 31, v{lane}")
    a(f"v_lshrrev_b32 v{tmp2}, 5, v{lane}")
    a(f"v_lshlrev_b32 v{kb[0]}, 3, v{tmp}")
    a(f"v_lshl_add_u32 v{kb[0]}, v{tmp2}, 9, v{kb[0]}")
    a(f"s_lshl_b32 s{hd}, s{g}, 2")
    a(f"s_and_b32 s{t0}, s{m}, 3")
    a(f"s_add_u32 s{hd}, s{hd}, s{t0}")
    a(f"s_lshr_b32 s{qb}, s{m}, 2")
    a(f"s_lshl_b32 s{t0}, s{qb}, 2")
    a(f"s_add_u32 s{t0}, s{t0}, s{wv}")
    a(f"s_mul_i32 s{t0}, s{t0}, 2560")
    a(f"s_mul_i32 s{t1}, s{hd}, 81920")
    a(f"s_add_u32 s{t1}, s{t1}, s{t0}")
    a(f"s_lshl_b32 s{kvo}, s{wv}, 12")
    a(f"s_mov_b32 m0, s{kvo}")
    a(f"s_mul_i32 s{t2}, s{hd}, 163840")
    a(f"s_add_u32 s{t2}, s{t2}, {WS_KV}")
    for x in range(2):
        a(f"v_mov_b32 v{Q[x]+4}, 0")
        a(f"v_mov_b32 v{Q[x]+5}, 0")
    a(f"s_waitcnt lgkmcnt(0)")
    srd(a, SW, WS, WS_SPAN)
    srd(a, SOUT, 6, S*D*2)
    a(f"s_add_u32 s{kvb}, s{t2}, s{kvo}")
    ndma = [0]
    def dma():
        j = ndma[0]; ndma[0] += 1
        out = [f"buffer_load_dwordx4 v{voff}, s[{SW}:{SW+3}], s{kvb} offen offset:{1024*(j&3)} lds"]
        if j & 3 == 0 and j:
            out = [f"s_add_u32 m0, m0, 16384", f"s_add_u32 s{kvb}, s{kvb}, 16384"] + out
        return out
    for x in range(2):
        a(f"buffer_load_dwordx2 {v(Q[x],2)}, v{kb[0]}, s[{SW}:{SW+3}], s{t1} offen offset:{1280*x}")
        a(f"buffer_load_dwordx2 {v(Q[x]+2,2)}, v{kb[0]}, s[{SW}:{SW+3}], s{t1} offen offset:{1280*x+256}")
    a(f"s_mov_b32 exec_hi, 0")
    for x in range(2):
        a(f"buffer_load_dwordx2 {v(Q[x]+4,2)}, v{kb[0]}, s[{SW}:{SW+3}], s{t1} offen offset:{1280*x+1024}")
    a(f"s_mov_b64 exec, -1")
    for j in range(4):
        for x in dma(): a(x)
    srd(a, SX, 4, S*D*2)
    a(f"v_mul_u32_u24 v{vb[0]}, 320, v{tmp2}")
    a(f"v_lshl_add_u32 v{vb[0]}, v{tmp}, 4, v{vb[0]}")
    a(f"v_add_u32 v{vb[0]}, 1280, v{vb[0]}")
    for j in range(4):
        for x in dma(): a(x)
    for i in (1, 2):
        a(f"v_add_u32 v{kb[i]}, {61440*i}, v{kb[0]}")
        a(f"v_add_u32 v{vb[i]}, {61440*i}, v{vb[0]}")
    a(f"s_mov_b32 s{vmask}, 0xfffff")
    a(f"s_mov_b32 s{vmask+1}, 0xfffff")
    for i in range(8):
        a(f"v_mov_b32 v{V[0]+i}, 0x3f803f80")
        a(f"v_mov_b32 v{V[1]+i}, 0x3f803f80")
    a(f"s_getreg_b32 s{myid}, hwreg(HW_REG_XCC_ID)")
    a(f"s_and_b32 s{myid}, s{myid}, 15")
    a(f"s_add_u32 s{myid}, s{myid}, 1")
    a(f"s_mov_b32 s{fbk}, 0")
    l0 = a.label("nfl")
    for x in [f"s_cmp_lg_u32 s{wv}, 0", f"s_cbranch_scc1 {l0}",
              f"s_lshl_b32 s{t0}, s{g}, 5", f"s_add_u32 s{t0}, s{t0}, s{m}", f"s_lshl_b32 s{t0}, s{t0}, 2", f"s_add_u32 s{t0}, s{t0}, {WS_FL}",
              f"v_mov_b32 v{tmp}, s{myid}", f"v_mov_b32 v{tmp2}, 0", "s_mov_b64 exec, 1",
              f"buffer_store_dword v{tmp}, v{tmp2}, s[{SW}:{SW+3}], s{t0} offen sc0 sc1", "s_mov_b64 exec, -1", f"{l0}:"]: a(x)
    a(f"s_lshr_b32 s{t0}, s{m}, 2")
    a(f"s_mul_i32 s{wo_}, s{t0}, {20*5120}")
    a(f"s_mul_i32 s{t1}, s{wv}, {5*5120}")
    a(f"s_add_u32 s{wo_}, s{wo_}, s{t1}")
    a(f"s_add_u32 s{wo_}, s{wo_}, {WS_WO}")
    a(f"s_lshl_b32 s{t1}, s{t0}, 1")
    a(f"s_and_b32 s{t2}, s{m}, 1")
    a(f"s_add_u32 s{t1}, s{t1}, s{t2}")
    a(f"s_lshl_b32 s{t1}, s{t1}, 2")
    a(f"s_add_u32 s{t1}, s{t1}, s{wv}")
    a(f"s_mul_i32 s{wgu_}, s{t1}, {3*20480}")
    a(f"s_add_u32 s{wgu_}, s{wgu_}, {WS_WGU}")
    a(f"s_lshl_b32 s{t1}, s{g}, 2")
    a(f"s_and_b32 s{t2}, s{m}, 3")
    a(f"s_add_u32 s{t1}, s{t1}, s{t2}")
    a(f"s_lshl_b32 s{t1}, s{t1}, 2")
    a(f"s_add_u32 s{t1}, s{t1}, s{wv}")
    a(f"s_mul_i32 s{t1}, s{t1}, 20480")
    a(f"s_mul_i32 s{t0}, s{t0}, 160")
    a(f"s_add_u32 s{t0}, s{t0}, s{t1}")
    a(f"v_and_b32 v{tmp}, 15, v{lane}")
    a(f"v_lshrrev_b32 v{tmp2}, 4, v{lane}")
    a(f"v_mul_u32_u24 v{raddr}, 1280, v{tmp}")
    a(f"v_mad_u32_u24 v{raddr}, v{tmp2}, 40, v{raddr}")
    a(f"v_add_u32 v{raddr}, s{t0}, v{raddr}")

    PT, pt20, pt16 = 254, 62, 63
    a(f"s_lshl_b32 s{t0}, s{g}, 5")
    a(f"s_add_u32 s{t0}, s{t0}, s{m}")
    a(f"s_lshl_b32 s{t0}, s{t0}, 2")
    a(f"s_add_u32 s{t0}, s{t0}, s{wv}")
    a(f"s_mul_i32 s{so[0]}, s{t0}, 2560")
    a(f"s_add_u32 s{so[0]}, s{so[0]}, {WS_H}")
    a(f"s_mul_i32 s{so[1]}, s{t0}, 6144")
    a(f"s_add_u32 s{so[1]}, s{so[1]}, {WS_ACT}")
    a(f"s_and_b32 s{wdp}, s{t0}, 127")
    a(f"s_mul_i32 s{wdp}, s{wdp}, 15360")
    a(f"s_add_u32 s{wdp}, s{wdp}, {WS_WD}")
    a(f"v_min_u32 v{pt20}, 19, v{lane}")
    a(f"v_lshlrev_b32 v{pt20}, 7, v{pt20}")
    a(f"v_lshlrev_b32 v{pt16}, 7, v{tmp}")
    a(f"s_lshl_b32 s{so[3]}, s{t0}, 7")
    a(f"s_mov_b32 s{so[2]}, {WS_ST}")

    def ldsb(bases, off):
        i = off // 61440
        return bases[i], off - 61440*i
    def readK(t, Kb, bases=kb):
        b, off = ldsb(bases, t*2560)
        return [f"ds_read_b64 {v(Kb,2)}, v{b} offset:{off}",
                f"ds_read_b64 {v(Kb+2,2)}, v{b} offset:{off+256}",
                f"ds_read_b64 {v(Kb+4,2)}, v{b} offset:{off+1024}"]
    def readV(t, V0, bases=vb):
        b, off = ldsb(bases, t*2560)
        return [f"s_mov_b64 exec, s[{vmask}:{vmask+1}]",
                f"ds_read_b128 {v(V0,4)}, v{b} offset:{off}",
                f"ds_read_b128 {v(V0+4,4)}, v{b} offset:{off+640}",
                f"s_mov_b64 exec, -1"]
    def qk1(x, Kb, C): return f"v_mfma_f32_32x32x16_bf16 {v(S_[x],16)}, {v(Kb,4)}, {v(Q[x],4)}, {C}"
    def qk2(x, Kb): return f"v_mfma_f32_32x32x8_bf16 {v(S_[x],16)}, {v(Kb+4,2)}, {v(Q[x]+4,2)}, {v(S_[x],16)}"
    def max16(Sr, d):
        for i in range(0, 16, 2):
            a(f"v_max3_f32 v{d}, v{Sr+i}, v{Sr+i+1}, v{d}")
    pv = lambda x, Vb, hh: f"v_mfma_f32_32x32x16_bf16 {v(O[x],16)}, {v(Vb+4*hh,4)}, {v(PP+4*hh,4)}, {v(O[x],16)}"
    def prime():
        for x, d in enumerate((tmp, tmp2)):
            a(f"v_mov_b32 v{tmp3+x}, v{d}")
        a("s_nop 1")
        for x, d in enumerate((tmp, tmp2)):
            a(f"v_permlane32_swap_b32 v{tmp3+x}, v{d}")
        a("s_nop 1")
        for x, d in enumerate((tmp, tmp2)):
            a(f"v_max_f32 v{d}, v{d}, v{tmp3+x}")
        for i in range(16):
            a(f"v_sub_f32 v{NEG[0]+i}, 0, v{tmp}")
        for x in readK(1, K[1]): a(x)
        a(qk1(0, K[0], v(NEG[0],16))); a(qk2(0, K[0]))
        for x in readV(0, V[0]): a(x)
        for i in range(16):
            a(f"v_sub_f32 v{NEG[1]+i}, 0, v{tmp2}")
        for i in range(32):
            a(f"v_mov_b32 v{O[0]+i}, 0")
        for i in range(4):
            a(f"v_mov_b32 v{PP+4+i}, 0")
        a(f"s_waitcnt lgkmcnt(0)")
        a(f"v_exp_f32 v{S_[0]}, v{S_[0]}")
        a(f"v_exp_f32 v{S_[0]+1}, v{S_[0]+1}")
    def half(t, x, side, kbs=kb, vbs=vb, last=63):
        Sa, Sb = S_[x], S_[1-x]
        ex = lambda i: f"v_exp_f32 v{Sa+i}, v{Sa+i}" if i < 16 else f"v_exp_f32 v{Sb+i-16}, v{Sb+i-16}"
        cv = lambda j: f"v_cvt_pk_bf16_f32 v{PP+j}, v{Sa+2*j}, v{Sa+2*j+1}"
        Vc = V[t & 1]
        sl = [[], []]
        for i, gp in enumerate(side): sl[i % 2] += gp
        fin = x == 1 and t == last
        if x == 0:
            Kn = K[t & 1]
            rd = readV(t+1, V[(t+1) & 1], vbs) if t < last else []
            P1 = [pv(1, V[(t-1) & 1], 1)]
        else:
            Kn = K[(t+1) & 1]
            rd = readK(t+2, K[t & 1], kbs) if t + 2 <= last else []
            P1 = [pv(0, Vc, 1), "s_waitcnt lgkmcnt(0)"]
        seq = [ex(2)] + P1 + sl[1] + [cv(0), ex(3), ex(4), cv(1), ex(5), None if fin else qk1(1-x, Kn, v(NEG[1-x],16))] + rd + [
               ex(6), cv(2), ex(7), ex(8), None if fin else qk2(1-x, Kn), cv(3), ex(9), ex(10), cv(4), ex(11), ex(12), cv(5), ex(13),
               pv(x, Vc, 0)] + sl[0] + [ex(14), cv(6), ex(15)] + (["s_nop 0", cv(7), "s_nop 1"] if fin else [ex(16), cv(7), ex(17)])
        for s_ in seq:
            if s_: a(s_)
    def poll(off_sreg, nl, vt, lanes_ready=False):
        lp = a.label("poll"); out = a.label("pout")
        a(f"v_and_b32 v{vt+1}, {nl-1}, v{lane}")
        a(f"s_mov_b32 s{spin}, {SPIN}")
        a(f"v_lshlrev_b32 v{vt+1}, 2, v{vt+1}")
        a(f"{lp}:")
        a(f"buffer_load_dword v{vt}, v{vt+1}, s[{SW}:{SW+3}], s{off_sreg} offen sc1")
        a(f"s_sub_u32 s{spin}, s{spin}, 1")
        a(f"s_waitcnt vmcnt(0)")
        a(f"v_cmp_eq_u32 vcc, 0, v{vt}")
        a(f"s_cbranch_scc1 {out}")
        a(f"s_cbranch_vccnz {lp}")
        a(f"{out}:")
    def both(stores, wt=False):
        if wt:
            for x in stores: a(x + " sc0 sc1" if x.startswith("buffer_store") else x)
            return
        l0 = a.label("wt"); l1 = a.label("wj")
        a(f"s_cmp_eq_u32 s{pure}, 0")
        a(f"s_cbranch_scc1 {l0}")
        for x in stores: a(x)
        a(f"{l1}:")
        tail.append((l0, [x + " sc0 sc1" if x.startswith("buffer_store") else x for x in stores], l1))
    def flag(off_sreg, vt, wt=False):
        a(f"v_mov_b32 v{vt}, 1")
        a(f"v_mov_b32 v{vt+1}, 0")
        a(f"s_mov_b64 exec, 1")
        a(f"s_waitcnt vmcnt(0)")
        both([f"buffer_store_dword v{vt}, v{vt+1}, s[{SW}:{SW+3}], s{off_sreg} offen"], wt)
        a(f"s_mov_b64 exec, -1")
    tail = []

    P.stamp(0)
    a(f"s_waitcnt vmcnt(4)")
    a(f"s_barrier")
    P.stamp(1)
    for x in readK(0, K[0]): a(x)
    a(f"v_mov_b32 v{tmp}, 0xff800000")
    a(f"v_mov_b32 v{tmp2}, 0xff800000")
    a(f"s_waitcnt lgkmcnt(0)")
    a(qk1(0, K[0], "0")); a(qk1(1, K[0], "0")); a(qk2(0, K[0])); a(qk2(1, K[0]))
    a("s_nop 7"); a("s_nop 4")
    max16(S_[0], tmp); max16(S_[1], tmp2)
    prime()
    a(f"v_and_b32 v{tmp}, 3, v{lane}")
    a(f"v_bfe_u32 v{tmp2}, v{lane}, 2, 1")
    a(f"v_lshlrev_b32 v{tmp}, 7, v{tmp}")
    a(f"v_lshl_add_u32 v{tmp}, v{tmp2}, 12, v{tmp}")
    a(f"s_lshl_b32 s{t1}, s{g}, 9")
    a(f"s_add_u32 s{t1}, s{t1}, {FL2-WS_ST}")
    a(f"v_add_u32 v{tmp4}, s{t1}, v{tmp}")
    a(f"v_writelane_b32 v{tmp4}, s{so[3]}, 63")
    Wd_ = f"s[{SW}:{SW+3}]"
    wo_l, gu_l = [], []
    for n in range(25):
        gp = [f"buffer_load_dwordx4 {WOF(n)}, v{voff}, {Wd_}, s{wo_} offen offset:{1024*(n&3)}"]
        if n & 3 == 0 and n: gp.insert(0, f"s_add_u32 s{wo_}, s{wo_}, 4096")
        wo_l.append((8, gp))
    for f in range(3):
        for ks in range(20):
            gp = [f"buffer_load_dwordx4 {ag((ks*3+f)*4,4)}, v{voff}, {Wd_}, s{wgu_} offen offset:{1024*(ks&3)}"]
            if ks & 3 == 0 and (ks or f): gp.insert(0, f"s_add_u32 s{wgu_}, s{wgu_}, 4096")
            gu_l.append((8, gp))
    CW = float(os.environ.get('CW', '2'))
    x_l = [(24, [f"buffer_load_dwordx4 {v(RES,4)}, v{raddr}, s[{SX}:{SX+3}], 0 offen"]),
           (8, [f"buffer_load_dwordx4 {v(RES+4,4)}, v{raddr}, s[{SX}:{SX+3}], 0 offen offset:16"]),
           (8, [f"buffer_load_dwordx2 {v(RES+8,2)}, v{raddr}, s[{SX}:{SX+3}], 0 offen offset:32"])]
    pt = lambda va, sr, off=0: f"buffer_load_dword v{PT}, v{va}, {Wd_}, s{sr} offen offset:{off} sc1"
    pt_l = [(20*CW, [pt(pt20, so[0])]), (16*CW, [pt(pt16, so[1])]), (16*CW, [pt(pt16, so[1], 2048)]),
            (16*CW, [f"s_add_u32 s{so[1]}, s{so[1]}, 4096", pt(pt16, so[1])]), (9, [pt(tmp4, so[2])])]
    if os.environ.get('NOPT'): pt_l = []
    items = gu_l[:40] + wo_l + x_l
    rem = gu_l[40:]
    for k, it_ in enumerate(pt_l): items += [it_] + rem[4*k:4*k+4]
    items += rem[4*len(pt_l):]
    WDW = float(os.environ.get('WDW', '0'))
    if WDW:
        wd_l = [(WDW, ([f"s_add_u32 s{wdp}, s{wdp}, 4096"] if k and k % 2 == 0 else []) + [f"buffer_load_dword v{PT}, v{pt16}, {Wd_}, s{wdp} offen offset:{2048*(k&1)}"]) for k in range(8)]
        step = len(items)//9
        for k in range(8): items.insert((k+1)*step + k, wd_l[k])
    if os.environ.get('NOW'): items = []
    CAP = float(os.environ.get('CAP', '10')); KVR = float(os.environ.get('KVR', '2')); HEND = int(os.environ.get('HEND', '122'))
    side = {}; issued = []
    kvh = {int((j-8)*KVR): j for j in range(8, 40)}
    budget = 0.0; k = 0
    bars = {8: 8, 22: 16, 46: 28, 84: 40} if KVR >= 2 else {8: 8, 22: 24, 46: 40}
    for h in range(128):
        sd = []
        budget = min(budget + CAP, 2*CAP)
        if h in bars:
            idx = [i for i, x in enumerate(issued) if x == bars[h]-1]
            after = len(issued) - 1 - idx[0] if idx else len(issued)
            assert idx or bars[h] == 8
            sd.append([f"s_waitcnt vmcnt({after})", "s_barrier"])
        if h in kvh:
            sd.append(dma()); issued.append(kvh[h]); budget -= 5.6
        while h < HEND and k < len(items) and budget > 0 and len(sd) < 2:
            budget -= items[k][0]; sd.append(items[k][1]); issued.append(-1); k += 1
        side[h] = sd[::-1]
    late = [gp for w_, gp in items[k:]]
    print("late items", len(late))
    assert ndma[0] == 40
    for t in range(64):
        for x in range(2):
            half(t, x, side[2*t+x])
        if UPTO < 5 and t in (15, 31, 47): P.stamp({15: 2, 31: 3, 47: 4}[t])
    fin0 = a.label("fin0")
    a(f"{fin0}:")
    a(pv(1, V[1], 1))
    P.stamp(5)
    a(f"v_bfe_u32 v{tmp}, v{lane}, 4, 1")
    a(f"v_mul_u32_u24 v{tmp}, 20480, v{tmp}")
    a(f"v_and_b32 v{tmp2}, 15, v{lane}")
    a(f"v_lshl_add_u32 v{tmp}, v{tmp2}, 4, v{tmp}")
    a(f"v_lshrrev_b32 v{tmp2}, 5, v{lane}")
    a(f"v_lshl_add_u32 v{tmp2}, v{tmp2}, 8, v{tmp}")
    a(f"v_rcp_f32 v{tmp3}, v{O[0]+12}")
    a(f"s_mov_b32 s{t3}, 0x5f800000")
    a(f"s_lshr_b32 s{t0}, s{hd}, 1")
    a(f"s_mul_i32 s{t0}, s{t0}, 1280")
    a(f"s_lshl_b32 s{t1}, s{qb}, 2")
    a(f"s_add_u32 s{t1}, s{t1}, s{wv}")
    a(f"s_mul_i32 s{t1}, s{t1}, 81920")
    a(f"s_add_u32 s{t0}, s{t0}, s{t1}")
    a(f"s_add_u32 s{t0}, s{t0}, {WS_OF}")
    a(f"s_and_b32 s{t1}, s{hd}, 1")
    a(f"v_add_f32 v{S_[0]}, v{O[0]+12}, v{O[1]+12}")
    a(f"s_lshl_b32 s{t2}, s{t1}, 9")
    a(f"s_add_u32 s{so[0]}, s{t2}, s{t0}")
    a(f"v_cmp_nlt_f32 vcc, v{S_[0]}, s{t3}")
    a(f"s_lshl_b32 s{t1}, s{t1}, 3")
    a(f"s_add_u32 s{so[1]}, s{t1}, s{t0}")
    a(f"s_add_u32 s{so[2]}, s{so[0]}, 40960")
    a(f"s_add_u32 s{so[3]}, s{so[1]}, 40960")
    fb = a.label("fb"); fin = a.label("fin")
    a(f"s_cbranch_vccnz {fb}")
    a(f"{fin}:")
    a(f"v_rcp_f32 v{tmp4}, v{O[1]+12}")
    a("s_waitcnt vmcnt(0)")
    for x in range(2):
        for i in range(12):
            a(f"v_mul_f32 v{O[x]+i}, v{O[x]+i}, v{tmp3+x}")
        for i in range(6):
            a(f"v_cvt_pk_bf16_f32 v{O[x]+i}, v{O[x]+2*i}, v{O[x]+2*i+1}")
    both([f"buffer_store_dwordx4 {v(O[x],4)}, v{tmp2}, s[{SW}:{SW+3}], s{so[2*x]} offen" for x in range(2)] + ["s_mov_b32 exec_hi, 0"] +
         [f"buffer_store_dwordx2 {v(O[x]+4,2)}, v{tmp}, s[{SW}:{SW+3}], s{so[2*x+1]} offen offset:1024" for x in range(2)] + ["s_mov_b64 exec, -1"], True)
    ctx = dict(locals())
    if UPTO >= 3:
        import mk2
        mk2.rest(ctx)
    P.flush(12, WS, wv)
    a(f"{done}:")
    a("s_endpgm")
    a(f"{fb}:")
    a(f"s_cmp_lg_u32 s{fbk}, 0")
    a(f"s_cbranch_scc1 {fin}")
    a(f"s_mov_b32 s{fbk}, 1")
    ka, va = 62, 63
    a(f"v_add_u32 v{ka}, {63*2560}, v{kb[0]}")
    a(f"v_mov_b32 v{tmp}, 0xff800000")
    a(f"v_mov_b32 v{tmp2}, 0xff800000")
    a(f"s_mov_b32 s{t0}, 64")
    fl = a.label("fl")
    a(f"{fl}:")
    for x in readK(0, K[0], [ka]): a(x)
    a(f"s_waitcnt lgkmcnt(0)")
    a(qk1(0, K[0], "0")); a(qk1(1, K[0], "0")); a(qk2(0, K[0])); a(qk2(1, K[0]))
    a(f"v_subrev_u32 v{ka}, 2560, v{ka}")
    a(f"s_sub_u32 s{t0}, s{t0}, 1")
    a("s_nop 7"); a("s_nop 4")
    max16(S_[0], tmp); max16(S_[1], tmp2)
    a(f"s_cmp_lg_u32 s{t0}, 0")
    a(f"s_cbranch_scc1 {fl}")
    prime()
    a(f"v_mov_b32 v{ka}, v{kb[0]}")
    a(f"v_mov_b32 v{va}, v{vb[0]}")
    a(f"s_mov_b32 s{t0}, 31")
    fl = a.label("fl2")
    a(f"{fl}:")
    for t in range(2):
        for x in range(2): half(t, x, [], [ka], [va])
    a(f"v_add_u32 v{ka}, 5120, v{ka}")
    a(f"v_add_u32 v{va}, 5120, v{va}")
    a(f"s_sub_u32 s{t0}, s{t0}, 1")
    a(f"s_cmp_lg_u32 s{t0}, 0")
    a(f"s_cbranch_scc1 {fl}")
    for t in range(2):
        for x in range(2): half(t, x, [], [ka], [va], last=1)
    a(f"s_branch {fin0}")
    for l0, ins, l1 in tail:
        a(f"{l0}:")
        for x in ins: a(x)
        a(f"s_branch {l1}")
    a("L_mk_end:")
    kernel_desc(a, name, 512, 102, accum=256)
    return dict(name=name, grid=256, block=256, lds=163840)
```

```python
from asmlib import *
from layout import *

def rest(c):
    a, P = c['a'], c['P']
    ag, both, flag, poll, WOF = c['ag'] if 'ag' in c else None, c['both'], c['flag'], c['poll'], c['WOF']
    import mk
    ag = mk.ag; UPTO = mk.UPTO
    SW, SOUT, g, m, wv = c['SW'], c['SOUT'], c['g'], c['m'], c['wv']
    t0, t1, t2, t3, so = c['t0'], c['t1'], c['t2'], c['t3'], c['so']
    lane, voff, RES, raddr = c['lane'], c['voff'], c['RES'], c['raddr']
    tmp, tmp2, tmp3, tmp4 = c['tmp'], c['tmp2'], c['tmp3'], c['tmp4']
    W = f"s[{SW}:{SW+3}]"
    rb64, nb, rbg, sfl, spl, wd_ = 40, 41, 42, 43, 44, 47
    hs = [45, 46]; hl = [48, 49]; chunk, rt = 50, 51
    CS = [136, 140, 152]; ONES = 156
    wr = [3, 4, 5]; rdv = 6; voff2 = 7
    mf16 = lambda D_, A_, B_, C_: f"v_mfma_f32_16x16x32_bf16 {v(D_,4)}, {A_}, {B_}, {C_}"
    def colsum(k0, k1):
        for ks in range(k0, k1):
            for f in range(3):
                a(mf16(CS[f], ag((ks*3+f)*4,4), v(ONES,4), "0" if ks == 0 else v(CS[f],4)))
    for i in range(4): a(f"v_mov_b32 v{ONES+i}, 0x3f803f80")
    a(f"s_and_b32 s{rb64}, s{m}, 3")
    a(f"s_lshr_b32 s{nb}, s{m}, 2")
    a(f"s_lshl_b32 s{rbg}, s{g}, 2")
    a(f"s_add_u32 s{rbg}, s{rbg}, s{rb64}")
    a(f"s_lshl_b32 s{rbg}, s{rbg}, 2")
    a(f"s_lshl_b32 s{t3}, s{c['qb']}, 9")
    a(f"s_add_u32 s{t3}, s{t3}, {FL1}")
    a(f"s_lshl_b32 s{t0}, s{wv}, 5")
    a(f"s_add_u32 s{t1}, s{t0}, s{c['hd']}")
    a(f"s_lshl_b32 s{t1}, s{t1}, 2")
    a(f"s_add_u32 s{sfl}, s{t3}, s{t1}")
    a(f"s_lshl_b32 s{t3}, s{g}, 9")
    a(f"s_add_u32 s{t3}, s{t3}, {FL1}")
    a(f"s_lshl_b32 s{t1}, s{rb64}, 7")
    a(f"s_add_u32 s{t1}, s{t1}, s{t0}")
    a(f"s_add_u32 s{spl}, s{t3}, s{t1}")
    if not c['late']: colsum(0, 10)
    def rowsel(stride, kq, base):
        a(f"s_mul_i32 s{t2}, s{wv}, {kq}")
        a(f"s_add_u32 s{t2}, s{t2}, {base}")
        for j in range(4):
            a(f"s_add_u32 s{t0}, s{wv}, {j}")
            a(f"s_and_b32 s{t0}, s{t0}, 3")
            a(f"s_add_u32 s{t0}, s{t0}, s{rbg}")
            a(f"s_mul_i32 s{t0}, s{t0}, {stride}")
            a(f"s_add_u32 s{so[j]}, s{t0}, s{t2}")
    flag(sfl, tmp3, True)
    P.stamp(6)
    rowsel(20480, 5120, WS_OF)
    for j in range(1, 4):
        a(f"s_add_u32 s{t0}, s{wv}, {j}")
        a(f"s_and_b32 s{t0}, s{t0}, 3")
        a(f"s_mul_i32 s{t0}, s{t0}, 15360")
        a(f"s_add_u32 s{t0}, s{t0}, {(j-1)*5120}")
        a(f"v_add_u32 v{wr[j-1]}, s{t0}, v{voff}")
    a(f"s_mul_i32 s{t0}, s{wv}, 15360")
    a(f"v_add_u32 v{rdv}, s{t0}, v{voff}")
    for gp in c['late']:
        for x in gp: a(x)
    a(f"s_lshl_b32 s{t0}, s{g}, 7")
    a(f"s_add_u32 s{t0}, s{t0}, {WS_FL}")
    poll(t0, 32, tmp3)
    a(f"v_cmp_ne_u32 vcc, s{c['myid']}, v{tmp3}")
    a(f"v_lshlrev_b32 v{tmp}, 7, v{lane}")
    a(f"s_cmp_lg_u64 vcc, 0")
    a(f"s_cselect_b32 s{c['pure']}, 0, {0 if mk.IMPURE else 1}")
    if os.environ.get('WDP'):
        a(f"buffer_load_dword v254, v{tmp}, {W}, s{c['wdp']} offen")
        a(f"s_add_u32 s{c['wdp']}, s{c['wdp']}, 7168")
        a(f"buffer_load_dword v254, v{tmp}, {W}, s{c['wdp']} offen")
    if c['late']: colsum(0, 20)
    else: colsum(10, 20)
    a("s_barrier")
    poll(spl, 8, tmp3)
    P.stamp(7)
    def xgemm(KS, A0, NR, ACC, RD, wf, lead, pre):
        order = [(j, s) for j in (1, 2, 3, 0) for s in range(KS)]
        N = len(order)
        accs = {1: ACC[0], 2: ACC[1], 3: ACC[2], 0: ACC[0]}
        def ld(n):
            j, s = order[n]
            out = [f"buffer_load_dwordx4 {v(A0+4*(n%NR),4)}, v{voff}, {W}, s{so[j]} offen offset:{1024*(s&3)} sc1"]
            if s & 3 == 3 and s + 1 < KS: out.append(f"s_add_u32 s{so[j]}, s{so[j]}, 4096")
            return out
        for n in range(lead):
            for x in ld(n): a(x)
        for x in pre: a(x)
        for n, (j, s) in enumerate(order):
            a(f"s_waitcnt vmcnt({min(lead-1, N-1-n)})")
            pj = {2: 1, 3: 2, 0: 3}.get(j)
            for i in range(5):
                D_ = accs[j] + 4*i
                a(mf16(D_, wf(s*5+i), v(A0+4*(n%NR),4), "0" if s == 0 else v(D_,4)))
                if i == 0 and n + lead < N:
                    for x in ld(n+lead): a(x)
                if pj and s == 2:
                    a(f"ds_write_b128 v{wr[pj-1]}, {v(accs[pj]+4*i,4)} offset:{1024*i}")
            if j == 0 and s == KS - 2:
                a("s_waitcnt lgkmcnt(0)")
                a("s_barrier")
        for q in range(15):
            a(f"ds_read_b128 {v(RD+4*q,4)}, v{rdv} offset:{1024*q}")
    def addres(ACC0, RD, U0):
        for j in range(10):
            a(f"v_lshlrev_b32 v{U0+2*j}, 16, v{RES+j}")
            a(f"v_and_b32 v{U0+2*j+1}, 0xffff0000, v{RES+j}")
        for j in range(10):
            a(f"v_pk_add_f32 {v(ACC0+2*j,2)}, {v(ACC0+2*j,2)}, {v(U0+2*j,2)}")
        a("s_waitcnt lgkmcnt(5)")
        for j in range(10):
            a(f"v_pk_add_f32 {v(RD+2*j,2)}, {v(RD+2*j,2)}, {v(RD+20+2*j,2)}")
        a("s_waitcnt lgkmcnt(0)")
        for j in range(10):
            a(f"v_pk_add_f32 {v(ACC0+2*j,2)}, {v(ACC0+2*j,2)}, {v(RD+40+2*j,2)}")
        for j in range(10):
            a(f"v_pk_add_f32 {v(ACC0+2*j,2)}, {v(ACC0+2*j,2)}, {v(RD+2*j,2)}")
        for j in range(10):
            a(f"v_cvt_pk_bf16_f32 v{RES+j}, v{ACC0+2*j}, v{ACC0+2*j+1}")
    ACC = [64, 84, 104]
    ha, ha2, sta = 124, 125, 126
    pre = [f"v_and_b32 v{tmp}, 15, v{lane}", f"v_lshrrev_b32 v{tmp2}, 5, v{lane}", f"v_mul_u32_u24 v{tmp2}, 1280, v{tmp2}",
           f"v_lshl_add_u32 v{ha2}, v{tmp}, 4, v{tmp2}", f"v_bfe_u32 v{tmp2}, v{lane}, 4, 1",
           f"v_lshl_add_u32 v{ha}, v{tmp2}, 9, v{ha2}", f"v_lshl_add_u32 v{ha2}, v{tmp2}, 3, v{ha2}", f"v_lshlrev_b32 v{sta}, 6, v{tmp}",
           f"s_add_u32 s{t0}, s{rbg}, s{wv}", f"s_mul_i32 s{t1}, s{t0}, 20480", f"s_mul_i32 s{t2}, s{nb}, 2560",
           f"s_add_u32 s{t1}, s{t1}, s{t2}", f"s_add_u32 s{hs[0]}, s{t1}, {WS_H}",
           f"s_lshl_b32 s{t1}, s{t0}, 10", f"s_lshl_b32 s{t2}, s{nb}, 3", f"s_add_u32 s{t1}, s{t1}, s{t2}", f"s_add_u32 s{hs[1]}, s{t1}, {WS_ST}",
           f"s_lshl_b32 s{t0}, s{t0}, 3", f"s_add_u32 s{t0}, s{t0}, s{nb}", f"s_lshl_b32 s{t0}, s{t0}, 2", f"s_add_u32 s{sfl}, s{t0}, {FL2}"]
    xgemm(5, 14, 12, ACC, 160, WOF, 6, pre)
    P.stamp(8)
    U0 = 14
    addres(ACC[0], 160, U0)
    A0 = ACC[0]
    both([f"buffer_store_dwordx4 {v(RES,4)}, v{ha}, {W}, s{hs[0]} offen",
          f"buffer_store_dwordx4 {v(RES+4,4)}, v{ha}, {W}, s{hs[0]} offen offset:256",
          f"buffer_store_dwordx2 {v(RES+8,2)}, v{ha2}, {W}, s{hs[0]} offen offset:1024"])
    sm, sq = U0, U0+2
    a(f"v_pk_add_f32 {v(sm,2)}, {v(A0,2)}, {v(A0+2,2)}")
    a(f"v_pk_mul_f32 {v(sq,2)}, {v(A0,2)}, {v(A0,2)}")
    for j in range(1, 10):
        if j > 1: a(f"v_pk_add_f32 {v(sm,2)}, {v(sm,2)}, {v(A0+2*j,2)}")
        a(f"v_pk_fma_f32 {v(sq,2)}, {v(A0+2*j,2)}, {v(A0+2*j,2)}, {v(sq,2)}")
    a(f"v_add_f32 v{sm}, v{sm}, v{sm+1}")
    a(f"v_add_f32 v{sm+1}, v{sq}, v{sq+1}")
    for op in ("v_permlane32_swap_b32", "v_permlane16_swap_b32"):
        a(f"v_mov_b32 v{sq}, v{sm}")
        a(f"v_mov_b32 v{sq+1}, v{sm+1}")
        a("s_nop 1")
        a(f"{op} v{sq}, v{sm}")
        a(f"{op} v{sq+1}, v{sm+1}")
        a("s_nop 1")
        a(f"v_pk_add_f32 {v(sm,2)}, {v(sm,2)}, {v(sq,2)}")
    a(f"s_mov_b64 exec, 0xffff")
    both([f"buffer_store_dwordx2 {v(sm,2)}, v{sta}, {W}, s{hs[1]} offen"])
    a(f"s_mov_b64 exec, -1")
    if UPTO < 4: return
    a(f"s_bfe_u32 s{rt}, s{m}, 0x10001")
    a(f"s_lshl_b32 s{t0}, s{g}, 1")
    a(f"s_add_u32 s{rt}, s{rt}, s{t0}")
    a(f"s_lshl_b32 s{chunk}, s{nb}, 1")
    a(f"s_and_b32 s{t0}, s{m}, 1")
    a(f"s_add_u32 s{chunk}, s{chunk}, s{t0}")
    a(f"s_lshl_b32 s{chunk}, s{chunk}, 2")
    a(f"s_add_u32 s{chunk}, s{chunk}, s{wv}")
    a(f"s_lshl_b32 s{t0}, s{rt}, 8")
    a(f"s_lshl_b32 s{t1}, s{wv}, 6")
    a(f"s_add_u32 s{t0}, s{t0}, s{t1}")
    a(f"s_add_u32 s{spl}, s{t0}, {FL2}")
    a(f"s_mul_i32 s{hl[0]}, s{wv}, 40960")
    a(f"s_add_u32 s{hl[1]}, s{hl[0]}, 20480")
    a(f"s_mul_i32 s{t0}, s{rt}, 163840")
    a(f"s_add_u32 s{t0}, s{t0}, {WS_H}")
    flag(sfl, tmp3)
    P.stamp(9)
    a(f"s_add_u32 s{hs[0]}, s{hl[0]}, s{t0}")
    a(f"s_add_u32 s{hs[1]}, s{hl[1]}, s{t0}")
    a(f"s_mul_i32 s{wd_}, s{nb}, {48*5120}")
    a(f"s_mul_i32 s{t0}, s{wv}, {12*5120}")
    a(f"s_add_u32 s{wd_}, s{wd_}, s{t0}")
    a(f"s_add_u32 s{wd_}, s{wd_}, {WS_WD}")
    rdb = [92, 93, 94]; oaddr = 95; sta = 8
    HF = lambda b, i: 14 + b*32 + i*4
    def AC(i, f):
        n = i*3 + f
        return 160 + 4*n if n < 21 else 80 + 4*(n-21)
    ST = 96
    for i in range(3):
        a(f"v_add_u32 v{rdb[i]}, {i*61440}, v{voff}")
    a(f"v_and_b32 v{tmp}, 15, v{lane}")
    a(f"v_lshrrev_b32 v{tmp2}, 4, v{lane}")
    a(f"v_lshlrev_b32 v{sta}, 6, v{tmp}")
    a(f"v_lshl_add_u32 v{sta}, v{tmp2}, 11, v{sta}")
    a(f"v_mul_u32_u24 v{oaddr}, 49152, v{tmp2}")
    a(f"v_lshl_add_u32 v{oaddr}, v{tmp}, 4, v{oaddr}")
    a("s_barrier")
    poll(spl, 16, tmp3)
    P.stamp(10)
    def hgrp(u):
        o = (u & 1)*2048
        dm = lambda b, s: f"buffer_load_dwordx4 v{voff}, {W}, s{hs[b]} offen offset:{o+1024*s} sc1 lds"
        out = []
        for b in range(2):
            out.append([f"s_mov_b32 m0, s{hl[b]}", "s_nop 0", dm(b, 0)])
            last = [dm(b, 1)]
            if u & 1: last += [f"s_add_u32 s{hs[b]}, s{hs[b]}, 4096", f"s_add_u32 s{hl[b]}, s{hl[b]}, 4096"]
            out.append(last)
        return out
    def wdl(n):
        out = [f"buffer_load_dwordx4 {ag(4*n,4)}, v{voff}, {W}, s{wd_} offen offset:{1024*(n&3)}"]
        if n & 3 == 3: out.append(f"s_add_u32 s{wd_}, s{wd_}, 4096")
        return out
    for u in range(3):
        for gp in hgrp(u):
            for x in gp: a(x)
    a(f"s_lshl_b32 s{t0}, s{rt}, 13")
    a(f"s_add_u32 s{t0}, s{t0}, {WS_ST}")
    def reads(ks, b):
        return [f"ds_read_b128 {v(HF(b,i),4)}, v{rdb[i//3]} offset:{(i%3)*20480 + ks*1024}" for i in range(8)]
    a(f"s_waitcnt vmcnt(8)")
    a(f"s_barrier")
    for x in reads(0, 0): a(x)
    NIN = 48
    loads = {ks: [] for ks in range(20)}
    for u in range(3, 10): loads[u-3] += hgrp(u)
    loads[7] += [[f"buffer_load_dwordx4 {v(ST+16*j+4*q,4)}, v{sta}, {W}, s{t0} offen offset:{1024*j+16*q} sc1"] for j in range(2) for q in range(4)]
    for n in range(NIN):
        ks = 8 + n*12//NIN
        assert n < 3*ks
        loads[ks].append(wdl(n))
    for ks in range(20):
        b = ks & 1
        mf = [mf16(AC(i,f), ag((ks*3+f)*4,4), v(HF(b,i),4), "0" if ks == 0 else v(AC(i,f),4)) for i in range(8) for f in range(3)]
        rd = reads(ks+1, b^1) if ks < 19 else []
        ld = loads[ks]
        if os.environ.get('NOWD') and ks >= 8: ld = []
        a("s_waitcnt lgkmcnt(0)")
        seq = []
        bar = {1: 4, 5: 8, 11: 8 + sum(len(loads[k]) for k in range(8, 11))}.get(ks)
        if bar is not None:
            seq += mf[:2] + [f"s_waitcnt vmcnt({bar})", "s_barrier"]
            k0 = 2
        else:
            k0 = 0
        for i in range(8):
            seq.append(mf[k0+i])
            if rd: seq.append(rd[i])
        rest_ = mf[k0+8:]
        k = 0
        for i, x in enumerate(rest_):
            seq.append(x)
            while k < len(ld) and k*len(rest_) <= i*len(ld):
                seq += ld[k]; k += 1
        assert k == len(ld)
        for x in seq: a(x)
    P.stamp(11)
    a(f"s_waitcnt vmcnt({min(NIN,63)})")
    for j in range(2):
        b = ST + 16*j
        for d in (8, 4, 2):
            for q in range(0, d, 2):
                a(f"v_pk_add_f32 {v(b+q,2)}, {v(b+q,2)}, {v(b+q+d,2)}")
    NM = 14; R2 = 30; T = 48
    for j in range(2):
        b = ST + 16*j
        a(f"v_mul_f32 v{b}, {f32(-1.0/D)}, v{b}")
        a(f"v_mul_f32 v{b+1}, {f32(1.0/D)}, v{b+1}")
        a(f"v_fma_f32 v{b+1}, -v{b}, v{b}, v{b+1}")
        a(f"v_max_f32 v{b+1}, 0, v{b+1}")
        a(f"v_add_f32 v{b+1}, {f32(EPS)}, v{b+1}")
        a(f"v_rcp_f32 v{b+1}, v{b+1}")
    a("s_nop 0")
    rr = lambda dst, j: [dst + 2*(2*q + j) for q in range(4)]
    for j in range(2):
        for (src, dst) in ((ST+16*j, NM), (ST+16*j+1, R2)):
            r = rr(dst, j)
            a(f"v_mov_b32 v{r[0]}, v{src}")
            a(f"v_mov_b32 v{r[1]}, v{src}")
    a("s_nop 1")
    for j in range(2):
        for dst in (NM, R2):
            r = rr(dst, j)
            a(f"v_permlane16_swap_b32 v{r[0]}, v{r[1]}")
    a("s_nop 0")
    for j in range(2):
        for dst in (NM, R2):
            r = rr(dst, j)
            a(f"v_mov_b32 v{r[2]}, v{r[0]}")
            a(f"v_mov_b32 v{r[3]}, v{r[1]}")
    a("s_nop 1")
    for j in range(2):
        for dst in (NM, R2):
            r = rr(dst, j)
            a(f"v_permlane32_swap_b32 v{r[0]}, v{r[2]}")
            a(f"v_permlane32_swap_b32 v{r[1]}, v{r[3]}")
    a(f"s_mul_i32 s{t0}, s{rt}, {8*49152}")
    a(f"s_mul_i32 s{t1}, s{chunk}, 768")
    a(f"s_add_u32 s{t0}, s{t0}, s{t1}")
    a(f"s_add_u32 s{t0}, s{t0}, {WS_ACT}")
    for h in range(2):
        for I in range(4):
            i = 4*h + I
            for f in range(3):
                A = AC(i,f)
                a(f"v_pk_fma_f32 {v(A,2)}, {v(CS[f],2)}, {v(NM+2*i,2)}, {v(A,2)} op_sel_hi:[1,0,1]")
                a(f"v_pk_fma_f32 {v(A+2,2)}, {v(CS[f]+2,2)}, {v(NM+2*i,2)}, {v(A+2,2)} op_sel_hi:[1,0,1]")
            for f in range(3):
                A = AC(i,f)
                a(f"v_pk_mul_f32 {v(A,2)}, {v(A,2)}, {v(R2+2*i,2)} op_sel_hi:[1,0]")
            for f in range(3):
                A = AC(i,f)
                a(f"v_pk_mul_f32 {v(A,2)}, {v(A,2)}, {v(A+2,2)}")
            for f in range(3):
                A = AC(i,f)
                a(f"v_cvt_pk_bf16_f32 v{T+12*h+4*f+I}, v{A}, v{A+1}")
        a("s_nop 1")
        for f in range(3):
            r = T + 12*h + 4*f
            a(f"v_permlane16_swap_b32 v{r}, v{r+1}")
            a(f"v_permlane16_swap_b32 v{r+2}, v{r+3}")
        a("s_nop 1")
        for f in range(3):
            r = T + 12*h + 4*f
            a(f"v_permlane32_swap_b32 v{r}, v{r+2}")
            a(f"v_permlane32_swap_b32 v{r+1}, v{r+3}")
        both([f"buffer_store_dwordx4 {v(T+12*h+4*f,4)}, v{oaddr}, {W}, s{t0} offen offset:{256*f}" for f in range(3)])
        if h == 0: a(f"s_add_u32 s{t0}, s{t0}, {4*49152}")
    if UPTO < 5: return
    a(f"s_lshl_b32 s{t0}, s{rt}, 8")
    a(f"s_add_u32 s{t0}, s{t0}, {FL3}")
    a(f"s_lshl_b32 s{t1}, s{chunk}, 2")
    a(f"s_add_u32 s{sfl}, s{t0}, s{t1}")
    a(f"s_lshl_b32 s{t1}, s{wv}, 6")
    a(f"s_add_u32 s{spl}, s{t0}, s{t1}")
    rowsel(49152, 12288, WS_ACT)
    flag(sfl, tmp3)
    P.stamp(2)
    for n in range(NIN, 60):
        for x in wdl(n): a(x)
    a("s_barrier")
    poll(spl, 16, tmp3)
    P.stamp(3)
    ACC = [112, 132, 152]
    xgemm(12, 14, 24, ACC, 176, lambda n: ag(4*n,4), 8, [])
    P.stamp(4)
    addres(ACC[0], 176, 14)
    O_ = f"s[{SOUT}:{SOUT+3}]"
    a(f"buffer_store_dwordx4 {v(RES,4)}, v{raddr}, {O_}, 0 offen")
    a(f"buffer_store_dwordx4 {v(RES+4,4)}, v{raddr}, {O_}, 0 offen offset:16")
    a(f"buffer_store_dwordx2 {v(RES+8,2)}, v{raddr}, {O_}, 0 offen offset:32")
```

```python
from asmlib import *
from layout import *
def rp_addr(a, task, pw, SR, st1, st2, st3, sX, ssh, ts, lane, tv, ra, rb_, rj):
    t0, t1, t2, t3 = ts
    tmp, tmp2, tmp3, tmp4 = tv
    lod = a.label("lod"); lwd = a.label("wd"); lperm = a.label("perm"); lld = a.label("ld")
    a(f"v_lshrrev_b32 v{tmp}, 4, v{lane}")
    a(f"v_and_b32 v{tmp2}, 15, v{lane}")
    a(f"s_cmp_ge_u32 s{task}, 960")
    a(f"s_cbranch_scc1 {lod}")
    a(f"s_cmp_ge_u32 s{task}, 480")
    a(f"s_cselect_b32 s{SR}, s{pw+4}, s{pw+2}")
    a(f"s_cselect_b32 s{SR+1}, s{pw+5}, s{pw+3}")
    a(f"s_cselect_b32 s{t3}, 32, 0")
    a(f"s_cselect_b32 s{t0}, 480, 0")
    a(f"s_sub_u32 s{t0}, s{task}, s{t0}")
    a(f"s_mul_i32 s{t1}, s{t0}, 2731")
    a(f"s_lshr_b32 s{t1}, s{t1}, 16")
    a(f"s_mul_i32 s{t2}, s{t1}, 24")
    a(f"s_sub_u32 s{t0}, s{t0}, s{t2}")
    a(f"s_mov_b32 s{SR+2}, {D*F*2}")
    a(f"s_mov_b32 s{st1}, 3072")
    a(f"s_mov_b32 s{sX}, 64")
    a(f"s_mov_b32 s{ssh}, 3")
    a(f"s_add_u32 s{t3}, s{t3}, {WS_WGU}")
    a(f"v_lshrrev_b32 v{tmp3}, 1, v{tmp2}")
    a(f"v_mul_u32_u24 v{rj}, 20480, v{tmp3}")
    a(f"v_and_b32 v{tmp3}, 1, v{tmp2}")
    a(f"v_lshl_add_u32 v{rj}, v{tmp3}, 7, v{rj}")
    a(f"s_mul_i32 s{t2}, s{t0}, {8*20480}")
    a(f"s_add_u32 s{t3}, s{t3}, s{t2}")
    a(f"s_lshl_b32 s{t2}, s{t1}, 10")
    a(f"s_add_u32 s{t3}, s{t3}, s{t2}")
    a(f"s_branch {lperm}")
    a(f"{lod}:")
    a(f"s_cmp_ge_u32 s{task}, 1440")
    a(f"s_cselect_b32 s{SR}, s{pw}, s{pw+6}")
    a(f"s_cselect_b32 s{SR+1}, s{pw+1}, s{pw+7}")
    a(f"s_cselect_b32 s{t0}, 480, 0")
    a(f"s_cselect_b32 s{t3}, 20, 48")
    a(f"s_cselect_b32 s{st2}, 0, {WS_WD-WS_WO}")
    a(f"s_sub_u32 s{t0}, s{task}, s{t0}")
    a(f"s_sub_u32 s{t0}, s{t0}, 960")
    a(f"s_mul_i32 s{SR+2}, s{t3}, {32*1280}")
    a(f"s_mul_i32 s{t1}, s{t0}, 6554")
    a(f"s_lshr_b32 s{t1}, s{t1}, 16")
    a(f"s_mul_i32 s{t2}, s{t1}, 10")
    a(f"s_sub_u32 s{t0}, s{t0}, s{t2}")
    a(f"s_mov_b32 s{st1}, 1280")
    a(f"s_mov_b32 s{sX}, 32")
    a(f"s_mov_b32 s{ssh}, 2")
    a(f"s_lshl_b32 s{t2}, s{t0}, 4")
    a(f"v_add_u32 v{tmp3}, s{t2}, v{tmp2}")
    a(f"v_mul_u32_u24 v{tmp4}, 205, v{tmp3}")
    a(f"v_lshrrev_b32 v{tmp4}, 10, v{tmp4}")
    a(f"v_mad_i32_i24 v{tmp3}, v{tmp4}, -5, v{tmp3}")
    a(f"v_lshlrev_b32 v{rj}, 10, v{tmp3}")
    a(f"v_and_b32 v{tmp3}, 3, v{tmp4}")
    a(f"v_lshl_add_u32 v{rj}, v{tmp3}, 6, v{rj}")
    a(f"v_lshrrev_b32 v{tmp4}, 2, v{tmp4}")
    a(f"s_mul_i32 s{t3}, s{t3}, 5120")
    a(f"v_mad_u32_u24 v{rj}, v{tmp4}, s{t3}, v{rj}")
    a(f"s_mul_i32 s{t3}, s{t1}, 5120")
    a(f"s_add_u32 s{t3}, s{t3}, s{st2}")
    a(f"s_add_u32 s{t3}, s{t3}, {WS_WO}")
    a(f"s_cmp_lt_u32 s{task}, 1440")
    a(f"s_cbranch_scc1 {lwd}")
    a(f"{lperm}:")
    a(f"s_lshl_b32 s{t1}, s{t1}, 2")
    a(f"v_add_u32 v{tmp3}, s{t1}, v{tmp}")
    a(f"v_mul_u32_u24 v{tmp4}, 205, v{tmp3}")
    a(f"v_lshrrev_b32 v{tmp4}, 10, v{tmp4}")
    a(f"v_mad_i32_i24 v{tmp3}, v{tmp4}, -5, v{tmp3}")
    a(f"v_mul_u32_u24 v{ra}, 40, v{tmp4}")
    a(f"v_lshrrev_b32 v{tmp4}, 1, v{tmp3}")
    a(f"v_mad_u32_u24 v{ra}, v{tmp4}, 20, v{ra}")
    a(f"v_and_b32 v{tmp4}, 1, v{tmp3}")
    a(f"v_lshl_add_u32 v{ra}, v{tmp4}, s{ssh}, v{ra}")
    a(f"v_lshrrev_b32 v{tmp4}, 2, v{tmp3}")
    a(f"v_mul_u32_u24 v{tmp3}, 24, v{tmp4}")
    a(f"v_sub_u32 v{ra}, v{ra}, v{tmp3}")
    a(f"s_lshl_b32 s{t1}, 1, s{ssh}")
    a(f"s_add_u32 s{t2}, s{t1}, 8")
    a(f"s_sub_u32 s{t1}, 12, s{t1}")
    a(f"v_mad_u32_u24 v{rb_}, v{tmp4}, s{t2}, v{ra}")
    a(f"v_add_u32 v{rb_}, s{t1}, v{rb_}")
    a(f"s_branch {lld}")
    a(f"{lwd}:")
    a(f"s_lshl_b32 s{t1}, s{t1}, 5")
    a(f"v_lshl_add_u32 v{ra}, v{tmp}, 3, s{t1}")
    a(f"v_add_u32 v{rb_}, 4, v{ra}")
    a(f"{lld}:")
    a(f"s_mov_b32 s{SR+3}, 0x20000")
    a(f"s_lshl_b32 s{t0}, s{t0}, 7")
    a(f"v_lshl_add_u32 v{tmp2}, v{tmp2}, 3, s{t0}")
    a(f"v_mad_u32_u24 v{ra}, v{ra}, s{st1}, v{tmp2}")
    a(f"v_mad_u32_u24 v{rb_}, v{rb_}, s{st1}, v{tmp2}")
    a(f"v_lshl_add_u32 v{rj}, v{tmp}, 8, v{rj}")
    a(f"v_add_u32 v{rj}, s{t3}, v{rj}")
    a(f"s_lshl_b32 s{st2}, s{st1}, 1")
    a(f"s_add_u32 s{st3}, s{st2}, s{st1}")

def rp_loads(SR, st1, st2, st3, ra, rb_, RL, fl=""):
    return [f"buffer_load_dwordx2 {v(RL+2*r,2)}, v{ra if r < 4 else rb_}, s[{SR}:{SR+3}], {['0', f's{st1}', f's{st2}', f's{st3}'][r & 3]} offen {fl}" for r in range(8)]
def rp_finish(SW, sX, p0, p1, RL, RO, rj):
    out = []
    for c in range(4):
        out += [f"v_perm_b32 v{RO+4*c+q}, v{RL+4*q+2+(c>>1)}, v{RL+4*q+(c>>1)}, s{p0 if c%2==0 else p1}" for q in range(4)]
        out.append(f"buffer_store_dwordx4 {v(RO+4*c,4)}, v{rj}, s[{SW}:{SW+3}], {'0' if c < 2 else f's{sX}'} offen offset:{16*(c&1)}")
    return out
def gen_rp(a, name="rp_kernel"):
    kernel_begin(a, name)
    done = a.label("rpdone")
    a(f"s_load_dwordx2 s[24:25], s[0:1], {KA_WS}")
    a(f"s_load_dwordx2 s[50:51], s[0:1], {KA_WO}")
    a(f"s_load_dwordx4 s[52:55], s[0:1], {KA_WG}")
    a(f"s_load_dwordx2 s[56:57], s[0:1], {KA_WD}")
    a(f"v_lshrrev_b32 v2, 6, v0")
    a(f"v_and_b32 v1, 63, v0")
    a(f"s_lshl_b32 s30, s2, 2")
    a(f"v_readfirstlane_b32 s31, v2")
    a(f"s_add_u32 s30, s30, s31")
    a(f"s_cmp_ge_u32 s30, 1640")
    a(f"s_cbranch_scc1 {done}")
    a(f"s_waitcnt lgkmcnt(0)")
    srd(a, 8, 24, WS_SPAN)
    rp_addr(a, 30, 50, 12, 32, 33, 34, 35, 36, (40,41,42,43), 1, (2,3,4,5), 6, 7, 8)
    for x in rp_loads(12, 32, 33, 34, 6, 7, 16): a(x)
    a("s_mov_b32 s40, 0x05040100"); a("s_mov_b32 s41, 0x07060302")
    a("s_waitcnt vmcnt(0)")
    for x in rp_finish(8, 35, 40, 41, 16, 32, 8): a(x)
    a(f"{done}:")
    a("s_endpgm")
    kernel_desc(a, name, 48, 96)
    return dict(name=name, grid=410, block=256, lds=0)
```

```python
import sys, os
from gen import build
import k1, mk, k3, k4, rp
ks = [k1.gen_k1, mk.gen_mk] + [k3.gen_k3, k4.gen_k4, k3.gen_k5][mk.UPTO-2:]
out = sys.argv[1] if len(sys.argv) > 1 else "sequential_preLN__mha_block__glu_gated_bilinear__prompt.s"
open(out, "w").write(build(ks))
```

```python
class Asm:
    def __init__(self):
        self.lines = []
        self.uid = 0
    def __call__(self, s):
        for l in s.split("\n"):
            l = l.strip()
            if not l: continue
            if l.endswith(":") or l.startswith("."):
                self.lines.append(l)
            else:
                self.lines.append("  " + l)
    def label(self, base):
        self.uid += 1
        return f"L_{base}_{self.uid}"
    def text(self):
        return "\n".join(self.lines) + "\n"

def v(i, n=1):
    return f"v{i}" if n == 1 else f"v[{i}:{i+n-1}]"
def s(i, n=1):
    return f"s{i}" if n == 1 else f"s[{i}:{i+n-1}]"

def kernel_begin(a, name, align=8):
    a(f".text\n.globl {name}\n.p2align {align}\n.type {name},@function\n{name}:")

def kernel_desc(a, name, nvgpr, nsgpr=96, accum=None):
    if accum is None:
        accum = min(256, (nvgpr + 3) // 4 * 4)
    a(f""".section .rodata,"a"
.p2align 6
.amdhsa_kernel {name}
.amdhsa_next_free_vgpr {nvgpr}
.amdhsa_next_free_sgpr {nsgpr}
.amdhsa_accum_offset {accum}
.amdhsa_group_segment_fixed_size 0
.amdhsa_kernarg_size 80
.amdhsa_user_sgpr_count 2
.amdhsa_user_sgpr_kernarg_segment_ptr 1
.amdhsa_system_sgpr_workgroup_id_x 1
.end_amdhsa_kernel""")

def srd(a, d, base, nbytes, off=0):
    if off:
        a(f"s_add_u32 s{d}, s{base}, {off}")
        a(f"s_addc_u32 s{d+1}, s{base+1}, 0")
    else:
        a(f"s_mov_b32 s{d}, s{base}")
        a(f"s_mov_b32 s{d+1}, s{base+1}")
    a(f"s_mov_b32 s{d+2}, {nbytes}")
    a(f"s_mov_b32 s{d+3}, 0x20000")

import struct
def f32(x):
    return "0x%08x" % struct.unpack("<I", struct.pack("<f", x))[0]

def interleave(main, fill):
    out = []
    n, m = len(main), len(fill)
    k = 0
    for i, x in enumerate(main):
        out.append(x)
        want = (i + 1) * m // n
        while k < want:
            out.append(fill[k]); k += 1
    return out

import os
PROF = int(os.environ.get("PROF", "0"))
WS_PROF = 0x3000000
class Prof:
    def __init__(self, a, kid, base=64, vtmp=250):
        self.a, self.kid, self.base, self.n, self.vtmp = a, kid, base, 0, vtmp
    def start(self):
        if not PROF: return
        self.a(f"s_memrealtime s[{self.base}:{self.base+1}]")
        self.a(f"s_memtime s[{self.base+2}:{self.base+3}]")
        self.n = 2
    def stamp(self, idx):
        if not PROF: return
        if isinstance(idx, str):
            mp = dict(x.split('=') for x in os.environ.get('ST', '').split(',') if x)
            if idx not in mp: return
            idx = int(mp[idx])
        elif str(idx) in [x.split('=')[1] for x in os.environ.get('ST', '').split(',') if x]: return
        b = self.base + 4 + 2*idx
        self.a(f"s_memtime s[{b}:{b+1}]")
        self.a("s_waitcnt lgkmcnt(0)")
    def flush(self, nst, wsreg, wavereg=None):
        if not PROF: return
        a = self.a; b = self.base; t = self.vtmp
        e = b + 4 + 2*nst
        a("s_waitcnt vmcnt(0)")
        a(f"s_memtime s[{e}:{e+1}]")
        a(f"s_memrealtime s[{e+2}:{e+3}]")
        a("s_waitcnt lgkmcnt(0)")
        a(f"s_mov_b64 exec, -1")
        a(f"s_lshl_b32 s{e+4}, s2, 3")
        a(f"s_add_u32 s{e+4}, s{e+4}, s{wavereg}")
        a(f"s_lshl_b32 s{e+4}, s{e+4}, 7")
        a(f"s_add_u32 s{e+4}, s{e+4}, {WS_PROF + self.kid*0x40000}")
        a(f"s_add_u32 s{e+4}, s{e+4}, s{wsreg}")
        a(f"s_addc_u32 s{e+5}, s{wsreg+1}, 0")
        a(f"v_mov_b32 v{t}, 0")
        for i in range(nst + 4):
            a(f"v_mov_b32 v{t+1}, s{b+2*i}")
            a(f"global_store_dword v{t}, v{t+1}, s[{e+4}:{e+5}] offset:{4*i}")
        a(f"s_getreg_b32 s{e+6}, hwreg(HW_REG_XCC_ID)")
        a(f"v_mov_b32 v{t+1}, s{e+6}")
        a(f"global_store_dword v{t}, v{t+1}, s[{e+4}:{e+5}] offset:124")
        a("s_waitcnt vmcnt(0)")

def code_prefetch(a, l0, l1, idx, sp, st, lane, vt, back=False):
    here = a.label("pc"); skip = a.label("npf")
    a(f"s_lshl_b32 s{st}, s{idx}, 13")
    a(f"s_cmp_ge_u32 s{st}, {l1}-{l0}")
    a(f"s_cbranch_scc1 {skip}")
    a(f"s_getpc_b64 s[{sp}:{sp+1}]")
    a(f"{here}:")
    if back:
        a(f"s_sub_u32 s{sp}, s{sp}, {here}-{l0}")
        a(f"s_subb_u32 s{sp+1}, s{sp+1}, 0")
    else:
        a(f"s_add_u32 s{sp}, s{sp}, {l0}-{here}")
        a(f"s_addc_u32 s{sp+1}, s{sp+1}, 0")
    a(f"v_lshl_add_u32 v{vt}, v{lane}, 7, s{st}")
    a(f"v_min_u32 v{vt}, {l1}-{l0}-4, v{vt}")
    a(f"global_load_dword v{vt}, v{vt}, s[{sp}:{sp+1}]")
    a(f"{skip}:")
```

```python
from asmlib import *
from layout import *

K1_STAGE = 16*1040 + 16384
K1_BOFF = 16*1040
K1_STATS = 4*K1_STAGE
K1_LDS = K1_STATS + 1536

EXP = int(os.environ.get('EXP','0'))
def gen_k1(a, name="k1_qkv_kernel"):
    kernel_begin(a, name)
    SX, SW, SO = 8, 12, 16
    rb, cb, wv = 22, 23, 24
    soffA, soffB, dst_st, rd_st, cnt = 25, 26, 27, 28, 29
    wr, wc = 30, 31
    t0, t1, t2 = 32, 33, 34
    so0, so1 = 35, 36
    m0A, m0B = 37, 38
    rscale = 39
    kc, baseA, baseB, himask = 40, 41, 42, 43
    vA = [4,5,6,7]; vB = [8,9,10,11]
    aBase = [12,13]; bBase = [14,15]
    aCur = [16,17]; bCur = [18,19]
    vsq, vsum, vcs, vones, utmp = 206, 208, 212, 20, 216
    eaddr = list(range(24, 32))
    FA = lambda st, i: 32 + st*8 + i*4
    FB = lambda st, i: 48 + st*8 + i*4
    ACC = lambda ai, bi: 64 + (ai*2 + bi)*16
    lane, r, h, tmp, tmp2, tmp3 = 128, 129, 130, 131, 132, 133
    done = a.label("k1done"); spare = a.label("k1spare"); helper = a.label("k1help")
    P = Prof(a, 0, 64, 250)
    P.start()
    a(f"s_load_dwordx4 s[4:7], s[0:1], {KA_X}")
    a(f"s_load_dwordx2 s[20:21], s[0:1], {KA_WS}")
    a(f"v_lshrrev_b32 v1, 6, v0")
    a(f"s_cmp_ge_u32 s2, 256")
    a(f"s_cbranch_scc1 {done}")
    a(f"v_readfirstlane_b32 s{wv}, v1")
    a(f"v_and_b32 v{lane}, 63, v0")
    a(f"s_and_b32 s{t0}, s2, 3")
    a(f"s_cmp_ge_u32 s{wv}, 4")
    a(f"s_cbranch_scc1 {helper}")
    a(f"s_lshl_b32 s{rb}, s{t0}, 2")
    a(f"s_bfe_u32 s{t0}, s2, 0x20003")
    a(f"s_add_u32 s{rb}, s{rb}, s{t0}")
    a(f"s_bfe_u32 s{t0}, s2, 0x10002")
    a(f"s_lshl_b32 s{cb}, s{t0}, 3")
    a(f"s_lshr_b32 s{t0}, s2, 5")
    a(f"s_add_u32 s{cb}, s{cb}, s{t0}")
    a(f"s_cmp_ge_u32 s{cb}, 15")
    a(f"s_cbranch_scc1 {spare}")
    a(f"v_lshrrev_b32 v{tmp}, 5, v{lane}")
    a(f"v_lshlrev_b32 v{tmp}, 5, v{tmp}")
    a(f"v_bfe_u32 v{tmp2}, v{lane}, 3, 1")
    a(f"v_add_u32 v{tmp}, v{tmp}, v{tmp2}")
    a(f"v_and_b32 v{tmp2}, 16, v{lane}")
    a(f"v_add_u32 v{tmp}, v{tmp}, v{tmp2}")
    a(f"s_lshr_b32 s{wr}, s{wv}, 1")
    a(f"s_and_b32 s{wc}, s{wv}, 1")
    a(f"s_lshl_b32 s{t0}, s{wr}, 6")
    a(f"s_lshl_b32 s{t1}, s{wc}, 3")
    a(f"s_add_u32 s{t0}, s{t0}, s{t1}")
    a(f"v_add_u32 v{tmp}, s{t0}, v{tmp}")
    a(f"v_mul_u32_u24 v{tmp}, 1280, v{tmp}")
    a(f"v_and_b32 v{tmp2}, 7, v{lane}")
    a(f"v_lshl_add_u32 v{vA[0]}, v{tmp2}, 4, v{tmp}")
    for i in range(1, 4):
        a(f"v_add_u32 v{vA[i]}, {i*(2*1280 - 1040)}, v{vA[0]}")
    a(f"v_lshrrev_b32 v{tmp}, 4, v{lane}")
    a(f"v_lshlrev_b32 v{tmp2}, 2, v{tmp}")
    a(f"v_and_b32 v{tmp3}, 15, v{lane}")
    a(f"v_xor_b32 v{tmp2}, v{tmp2}, v{tmp3}")
    a(f"s_lshl_b32 s{t0}, s{wv}, 4")
    a(f"v_add_u32 v{tmp}, s{t0}, v{tmp}")
    a(f"v_mul_u32_u24 v{tmp}, 3840, v{tmp}")
    a(f"v_lshl_add_u32 v{vB[0]}, v{tmp2}, 4, v{tmp}")
    for i in range(1, 4):
        a(f"v_add_u32 v{vB[i]}, {i*(4*3840 - 1024)}, v{vB[0]}")
    a(f"s_bfe_u32 s{t0}, s2, 0x20003")
    a(f"s_mul_i32 s{t0}, s{t0}, 3")
    a(f"s_lshr_b32 s{t1}, s2, 5")
    a(f"s_add_u32 s{kc}, s{t0}, s{t1}")
    a(f"s_sub_u32 s{t0}, s{kc}, 10")
    a(f"s_cmp_ge_u32 s{kc}, 10")
    a(f"s_cselect_b32 s{kc}, s{t0}, s{kc}")
    a(f"s_mul_i32 s{baseA}, s{rb}, {128*1280}")
    a(f"s_lshl_b32 s{baseB}, s{cb}, 8")
    a(f"s_mul_i32 s{m0A}, s{wv}, {4*1040}")
    a(f"s_lshl_b32 s{m0B}, s{wv}, 12")
    a(f"s_add_u32 s{m0B}, s{m0B}, {K1_BOFF}")
    P.stamp(5)
    a(f"s_waitcnt lgkmcnt(0)")
    P.stamp(6)
    srd(a, SX, 4, S*D*2)
    srd(a, SW, 6, D*3*D*2)
    def dmaA():
        return [f"buffer_load_dwordx4 v{vA[i]}, s[{SX}:{SX+3}], s{soffA} offen offset:{1040*i} lds" for i in range(4)]
    def dmaB():
        return [f"buffer_load_dwordx4 v{vB[i]}, s[{SW}:{SW+3}], s{soffB} offen offset:{1024*i} lds" for i in range(4)]
    def offs():
        return [f"s_lshl_b32 s{soffA}, s{kc}, 7", f"s_add_u32 s{soffA}, s{soffA}, s{baseA}",
                f"s_mul_i32 s{soffB}, s{kc}, {64*3840}", f"s_add_u32 s{soffB}, s{soffB}, s{baseB}",
                f"s_add_u32 s{kc}, s{kc}, 1", f"s_cmp_eq_u32 s{kc}, 10", f"s_cselect_b32 s{kc}, 0, s{kc}"]
    for c in range(3):
        a(f"s_add_u32 m0, s{m0A}, {c*K1_STAGE}")
        for x in offs(): a(x)
        for x in dmaA(): a(x)
        a(f"s_add_u32 m0, s{m0B}, {c*K1_STAGE}")
        a("s_nop 0")
        for x in dmaB(): a(x)
    for x in offs(): a(x)
    P.stamp(7)
    a(f"s_mov_b32 s{dst_st}, {3*K1_STAGE}")
    a(f"s_mov_b32 s{rd_st}, 0")
    a(f"v_and_b32 v{r}, 31, v{lane}")
    a(f"v_lshrrev_b32 v{h}, 5, v{lane}")
    a(f"v_bfe_u32 v{tmp}, v{r}, 1, 3")
    a(f"v_mul_u32_u24 v{tmp}, 1040, v{tmp}")
    a(f"v_and_b32 v{tmp2}, 1, v{r}")
    a(f"v_lshl_add_u32 v{tmp}, v{tmp2}, 7, v{tmp}")
    a(f"v_lshrrev_b32 v{tmp2}, 4, v{r}")
    a(f"v_lshl_add_u32 v{tmp}, v{tmp2}, 8, v{tmp}")
    a(f"v_lshl_add_u32 v{tmp}, v{h}, 4, v{tmp}")
    a(f"s_mul_i32 s{t0}, s{wr}, {8*1040}")
    a(f"s_lshl_b32 s{t1}, s{wc}, 9")
    a(f"s_add_u32 s{t2}, s{t0}, s{t1}")
    a(f"v_add_u32 v{aBase[0]}, s{t2}, v{tmp}")
    a(f"s_xor_b32 s{t1}, s{t1}, 512")
    a(f"s_add_u32 s{t2}, s{t0}, s{t1}")
    a(f"v_add_u32 v{aBase[1]}, s{t2}, v{tmp}")
    a(f"v_bfe_u32 v{tmp}, v{lane}, 2, 2")
    a(f"v_lshl_add_u32 v{tmp2}, v{h}, 3, v{tmp}")
    a(f"v_lshlrev_b32 v{tmp2}, 8, v{tmp2}")
    a(f"v_bfe_u32 v{tmp3}, v{lane}, 4, 1")
    a(f"v_lshl_add_u32 v{tmp2}, v{tmp3}, 5, v{tmp2}")
    a(f"v_and_b32 v{tmp3}, 3, v{lane}")
    a(f"v_lshl_add_u32 v{tmp2}, v{tmp3}, 3, v{tmp2}")
    a(f"v_add_u32 v{tmp2}, {K1_BOFF}, v{tmp2}")
    a(f"s_lshl_b32 s{t0}, s{wc}, 1")
    a(f"s_add_u32 s{t0}, s{t0}, s{wr}")
    a(f"v_xor_b32 v{tmp3}, s{t0}, v{tmp}")
    a(f"v_lshl_add_u32 v{bBase[0]}, v{tmp3}, 6, v{tmp2}")
    a(f"v_xor_b32 v{tmp3}, 1, v{tmp3}")
    a(f"v_lshl_add_u32 v{bBase[1]}, v{tmp3}, 6, v{tmp2}")
    for i in range(2):
        a(f"v_mov_b32 v{aCur[i]}, v{aBase[i]}")
        a(f"v_mov_b32 v{bCur[i]}, v{bBase[i]}")
    for i in range(10):
        a(f"v_mov_b32 v{vsq+i}, 0")
    a(f"v_lshrrev_b32 v{tmp}, 2, v{lane}")
    a(f"v_xor_b32 v{tmp}, v{tmp}, v{lane}")
    a(f"v_bfe_i32 v{tmp}, v{tmp}, 2, 1")
    a(f"v_mov_b32 v{vones}, 0x3f803f80")
    a(f"v_bfi_b32 v{vones}, v{tmp}, 0, v{vones}")
    for i in range(1, 4):
        a(f"v_mov_b32 v{vones+i}, v{vones}")
    a(f"s_mov_b32 s{himask}, 0xffff0000")
    for i in range(64):
        a(f"v_mov_b32 v{64+i}, 0")
    a(f"s_lshl_b32 s{t0}, s{rb}, 2")
    a(f"s_lshl_b32 s{t1}, s{wr}, 1")
    a(f"s_add_u32 s{t0}, s{t0}, s{t1}")
    a(f"s_add_u32 s{so0}, s{t0}, s{wc}")
    a(f"s_xor_b32 s{so1}, s{so0}, 1")
    a(f"s_mov_b32 s{cnt}, 0")

    def reads(step, st):
        out = []
        for i in range(2):
            out.append(f"ds_read_b128 {v(FA(st,i),4)}, v{aCur[i]} offset:{step*32}")
            for t in range(2):
                out.append(f"ds_read_b64_tr_b16 {v(FB(st,i)+2*t,2)}, v{bCur[i]} offset:{(16*step+4*t)*256}")
        return out
    def dots(st):
        out = []
        for k in range(4):
            u = utmp + 2*k
            out.append(f"v_lshlrev_b32 v{u}, 16, v{FA(st,0)+k}")
            out.append(f"v_and_b32 v{u+1}, s{himask}, v{FA(st,0)+k}")
        o2 = []
        for k in range(4):
            u = utmp + 2*k
            o2.append(f"v_fmac_f32 v{vsq}, v{u}, v{u}")
            o2.append(f"v_fmac_f32 v{vsq+1}, v{u+1}, v{u+1}")
        return out[:4] + o2[:2] + out[4:6] + o2[2:4] + out[6:] + o2[4:]
    def mainloop(vmode):
        lp = a.label("k1loop")
        P.stamp(0)
        a(f"s_waitcnt vmcnt(16)")
        a(f"s_barrier")
        P.stamp(1)
        for x in reads(0, 0): a(x)
        a(f".p2align 6")
        a(f"{lp}:")
        dA, dB = dmaA(), dmaB()
        for step in range(4):
            st = step & 1
            mf = []
            for ai in range(2):
                for bi in range(2):
                    A_, B_ = (FA(st,ai), FB(st,bi)) if vmode else (FB(st,bi), FA(st,ai))
                    mf.append(f"v_mfma_f32_32x32x16_bf16 {v(ACC(ai,bi),16)}, {v(A_,4)}, {v(B_,4)}, {v(ACC(ai,bi),16)}")
            cs = f"v_mfma_f32_16x16x32_bf16 {v(vcs,4)}, {v(vones,4)}, {v(FB(st,0),4)}, {v(vcs,4)}"
            sm = f"v_mfma_f32_16x16x32_bf16 {v(vsum,4)}, {v(vones,4)}, {v(FA(st,0),4)}, {v(vsum,4)}"
            d = dots(st)
            a("s_waitcnt lgkmcnt(0)")
            if step == 0:
                e0 = [f"s_add_u32 m0, s{m0A}, s{dst_st}", f"s_cmp_lt_u32 s{cnt}, 7", f"s_cselect_b32 s{SX+2}, {S*D*2}, 0", f"s_cselect_b32 s{SW+2}, {D*3*D*2}, 0"]
                e1, e2 = [dA[0]], [dA[1]]
            elif step == 1:
                e0 = [dA[2]]
                e1 = []
                e2 = [dA[3], f"s_add_u32 m0, s{m0B}, s{dst_st}", f"s_mov_b32 s{dst_st}, s{rd_st}"]
            elif step == 2:
                e0 = [dB[0], f"s_add_u32 s{rd_st}, s{rd_st}, {K1_STAGE}", f"s_cmp_eq_u32 s{rd_st}, {4*K1_STAGE}", f"s_cselect_b32 s{rd_st}, 0, s{rd_st}"]
                e1 = [dB[1], f"s_add_u32 s{cnt}, s{cnt}, 1"]
                e2 = [dB[2]] + [f"v_add_u32 v{aCur[i]}, s{rd_st}, v{aBase[i]}" for i in range(2)] + [f"v_add_u32 v{bCur[i]}, s{rd_st}, v{bBase[i]}" for i in range(2)]
            if step < 3:
                rd = reads(step+1, st^1)
                seq = [mf[0]] + rd[:3] + d[:3] + [mf[1]] + rd[3:] + e0 + d[3:5] + [cs] + d[5:7] + [mf[2]] + e1 + d[7:12] + [mf[3]] + d[12:] + e2 + [sm]
            else:
                rd = reads(0, st^1)
                seq = [mf[0], dB[3], "s_waitcnt vmcnt(16)", "s_barrier"] + rd[:3] + [mf[1]] + rd[3:] + d[:4] + [cs] + d[4:6] + [mf[2]] + d[6:12] + [mf[3]] + d[12:] + [sm] + offs() + [f"s_cmp_lt_u32 s{cnt}, 10", f"s_cbranch_scc1 {lp}"]
            for x in seq:
                if EXP == 1 and x.startswith("buffer_load"): continue
                if EXP == 2 and (x.startswith("v_") or x.startswith("ds_read")): continue
                a(x)
    def stats():
        P.stamp(2)
        a("s_nop 4")
        a(f"v_add_f32 v{vsq}, v{vsq}, v{vsq+1}")
        for x in (vsq,):
            a(f"v_mov_b32 v{tmp}, v{x}")
            a("s_nop 1")
            a(f"v_permlane32_swap_b32 v{tmp}, v{x}")
            a("s_nop 1")
            a(f"v_add_f32 v{x}, v{x}, v{tmp}")
        a(f"v_mul_f32 v{vsum}, {f32(1.0/D)}, v{vsum}")
        a(f"v_mul_f32 v{vsq}, {f32(1.0/D)}, v{vsq}")
        a(f"v_fma_f32 v{vsq}, -v{vsum}, v{vsum}, v{vsq}")
        a(f"v_max_f32 v{vsq}, 0, v{vsq}")
        a(f"v_add_f32 v{vsq}, {f32(EPS)}, v{vsq}")
        a(f"v_rsq_f32 v{vsq}, v{vsq}")
        a(f"v_sub_f32 v{vsum}, 0, v{vsum}")
        a(f"s_lshl_b32 s{t0}, s{wv}, 7")
        a(f"s_add_u32 s{t0}, s{t0}, {K1_STATS}")
        a(f"v_lshl_add_u32 v{tmp}, v{r}, 2, s{t0}")
        a(f"v_mul_f32 v{vsq}, s{rscale}, v{vsq}")
        a(f"s_lshl_b32 s{t0}, s{wc}, 8")
        a(f"s_lshl_b32 s{t1}, s{wr}, 7")
        a(f"s_add_u32 s{t0}, s{t0}, s{t1}")
        a(f"s_add_u32 s{t0}, s{t0}, {K1_STATS+1024}")
        a(f"v_lshl_add_u32 v{tmp2}, v{r}, 2, s{t0}")
        a(f"ds_write_b32 v{tmp}, v{vsq}")
        a(f"ds_write_b32 v{tmp}, v{vsum} offset:512")
        a(f"ds_write_b32 v{tmp2}, v{vcs}")
        a(f"s_waitcnt lgkmcnt(0)")
        a(f"s_barrier")
        P.stamp(3)

    lV = a.label("k1v")
    a(f"s_cmp_ge_u32 s{cb}, 10")
    a(f"s_cbranch_scc1 {lV}")
    a(f"s_cmp_ge_u32 s{cb}, 5")
    a(f"s_cselect_b32 s{t0}, 5, 0")
    a(f"s_sub_u32 s{t0}, s{cb}, s{t0}")
    a(f"s_cmp_ge_u32 s{cb}, 5")
    a(f"s_cselect_b32 s{t1}, 1, 0")
    a(f"s_cselect_b32 s{rscale}, 1.0, {f32(QSCALE)}")
    a(f"s_cselect_b32 s{SO}, {WS_KV}, {WS_Q}")
    a(f"s_lshl_b32 s{SO+2}, {SZ_Q}, s{t1}")
    a(f"s_lshl_b32 s{t2}, 81920, s{t1}")
    a(f"s_sub_u32 s{t2}, s{t2}, 1280")
    a(f"s_lshl_b32 s{t1}, 1280, s{t1}")
    a(f"s_add_u32 s{SO}, s{SO}, s20")
    a(f"s_addc_u32 s{SO+1}, s21, 0")
    a(f"s_mov_b32 s{SO+3}, 0x20000")
    a(f"s_mul_i32 s{so0}, s{so0}, s{t1}")
    a(f"s_mul_i32 s{so1}, s{so1}, s{t1}")
    a(f"s_lshl_b32 s{t0}, s{t0}, 5")
    a(f"s_lshl_b32 s{t1}, s{wc}, 4")
    a(f"s_add_u32 s{t0}, s{t0}, s{t1}")
    a(f"s_lshl_b32 s{t1}, s{wr}, 3")
    a(f"s_add_u32 s{t0}, s{t0}, s{t1}")
    a(f"v_lshlrev_b32 v{tmp3}, 3, v{r}")
    for bi in range(2):
        if bi == 1:
            a(f"s_xor_b32 s{t0}, s{t0}, 8")
        for g in range(4):
            e = eaddr[bi*4+g]
            a(f"v_add3_u32 v{tmp}, s{t0}, v{h}, {2*g}")
            a(f"v_mul_u32_u24 v{tmp2}, 205, v{tmp}")
            a(f"v_lshrrev_b32 v{tmp2}, 10, v{tmp2}")
            a(f"v_lshl_add_u32 v{e}, v{tmp}, 8, v{tmp3}")
            a(f"v_mad_u32_u24 v{e}, v{tmp2}, s{t2}, v{e}")
    mainloop(False)
    stats()
    RM = [134, 136]
    CS = 140
    a(f"v_xor_b32 v{tmp3}, 128, v{tmp}")
    a(f"ds_read_b32 v134, v{tmp}")
    a(f"ds_read_b32 v136, v{tmp} offset:512")
    a(f"ds_read_b32 v138, v{tmp3}")
    a(f"ds_read_b32 v172, v{tmp3} offset:512")
    Rr = [134, 138]; Mr = [136, 172]
    a(f"v_lshl_add_u32 v{tmp2}, v{h}, 4, s{t0}")
    a(f"v_xor_b32 v{tmp3}, 128, v{tmp2}")
    for bi in range(2):
        for g in range(4):
            a(f"ds_read_b128 {v(CS+bi*16+g*4,4)}, v{tmp2 if bi==0 else tmp3} offset:{g*32}")
    a(f"s_waitcnt lgkmcnt(0)")
    for ai in range(2):
        for bi in range(2):
            A0 = ACC(ai,bi)
            for p in range(8):
                a(f"v_pk_fma_f32 {v(A0+2*p,2)}, {v(CS+bi*16+2*p,2)}, {v(Mr[ai],2)}, {v(A0+2*p,2)} op_sel_hi:[1,0,1]")
            for p in range(8):
                a(f"v_pk_mul_f32 {v(A0+2*p,2)}, {v(A0+2*p,2)}, {v(Rr[ai],2)} op_sel_hi:[1,0]")
            for p in range(8):
                a(f"v_cvt_pk_bf16_f32 v{A0+p}, v{A0+2*p}, v{A0+2*p+1}")
            for g in range(4):
                a(f"buffer_store_dwordx2 {v(A0+2*g,2)}, v{eaddr[bi*4+g]}, s[{SO}:{SO+3}], s{so0 if ai==0 else so1} offen")
    P.stamp(4)
    P.flush(8, 20, wv)
    a("s_endpgm")
    a(f"{lV}:")
    srd(a, SO, 20, SZ_KV, WS_KV)
    a(f"s_mov_b32 s{rscale}, 1.0")
    a(f"s_mul_i32 s{so0}, s{so0}, 2560")
    a(f"s_mul_i32 s{so1}, s{so1}, 2560")
    a(f"s_sub_u32 s{t0}, s{cb}, 10")
    a(f"s_lshl_b32 s{t0}, s{t0}, 7")
    a(f"s_lshl_b32 s{t1}, s{wc}, 6")
    a(f"s_add_u32 s{t0}, s{t0}, s{t1}")
    a(f"s_lshl_b32 s{t1}, s{wr}, 5")
    a(f"s_add_u32 s{t0}, s{t0}, s{t1}")
    a(f"s_mov_b32 s{t2}, {163840-320}")
    a(f"v_mul_u32_u24 v{tmp3}, 320, v{h}")
    a(f"v_add_u32 v{tmp3}, 1280, v{tmp3}")
    for bi in range(2):
        if bi == 1:
            a(f"s_xor_b32 s{t0}, s{t0}, 32")
        e = eaddr[bi]
        a(f"v_add_u32 v{tmp}, s{t0}, v{r}")
        a(f"v_mul_u32_u24 v{tmp2}, 205, v{tmp}")
        a(f"v_lshrrev_b32 v{tmp2}, 12, v{tmp2}")
        a(f"v_lshl_add_u32 v{e}, v{tmp}, 4, v{tmp3}")
        a(f"v_mad_u32_u24 v{e}, v{tmp2}, s{t2}, v{e}")
    mainloop(True)
    stats()
    a(f"v_xor_b32 v{tmp3}, 128, v{tmp2}")
    a(f"ds_read_b32 v134, v{tmp2}")
    a(f"ds_read_b32 v136, v{tmp3}")
    Cr = [134, 136]
    RR, MM = 140, 172
    a(f"s_lshl_b32 s{t0}, s{wv}, 7")
    a(f"s_add_u32 s{t0}, s{t0}, {K1_STATS}")
    a(f"v_lshl_add_u32 v{tmp}, v{h}, 4, s{t0}")
    a(f"v_xor_b32 v{tmp3}, 128, v{tmp}")
    for ai in range(2):
        for g in range(4):
            a(f"ds_read_b128 {v(MM+ai*16+g*4,4)}, v{tmp if ai==0 else tmp3} offset:{512+g*32}")
        for g in range(4):
            a(f"ds_read_b128 {v(RR+ai*16+g*4,4)}, v{tmp if ai==0 else tmp3} offset:{g*32}")
    a(f"s_waitcnt lgkmcnt(0)")
    for ai in range(2):
        for bi in range(2):
            A0 = ACC(ai,bi)
            for p in range(8):
                a(f"v_pk_fma_f32 {v(A0+2*p,2)}, {v(MM+ai*16+2*p,2)}, {v(Cr[bi],2)}, {v(A0+2*p,2)} op_sel_hi:[1,0,1]")
            for p in range(8):
                a(f"v_pk_mul_f32 {v(A0+2*p,2)}, {v(A0+2*p,2)}, {v(RR+ai*16+2*p,2)}")
            for p in range(8):
                a(f"v_cvt_pk_bf16_f32 v{A0+p}, v{A0+2*p}, v{A0+2*p+1}")
            for g in range(2):
                a(f"buffer_store_dwordx4 {v(A0+4*g,4)}, v{eaddr[bi]}, s[{SO}:{SO+3}], s{so0 if ai==0 else so1} offen offset:{640*g}")
    P.stamp(4)
    P.flush(8, 20, wv)
    a(f"{done}:")
    a("s_endpgm")
    a(f"{spare}:")
    a(f"v_lshlrev_b32 v1, 2, v0")
    a(f"v_mov_b32 v2, 0")
    a(f"s_lshl_b32 s{t0}, s{rb}, 10")
    a(f"s_waitcnt lgkmcnt(0)")
    srd(a, SO, 20, SZ_FL, WS_FL)
    a(f"buffer_store_dword v2, v1, s[{SO}:{SO+3}], s{t0} offen")
    a("s_endpgm")
    import rp
    RB0 = int(os.environ.get('RB0', '1')); RB1 = int(os.environ.get('RB1', '6')); RFL = os.environ.get('RFL', '')
    a(f"{helper}:")
    a(f"s_load_dwordx2 s[50:51], s[0:1], {KA_WO}")
    a(f"s_load_dwordx4 s[52:55], s[0:1], {KA_WG}")
    a(f"s_load_dwordx2 s[56:57], s[0:1], {KA_WD}")
    a(f"s_lshr_b32 s31, s2, 3")
    a(f"s_lshl_b32 s31, s31, 2")
    a(f"s_add_u32 s31, s31, s{wv}")
    a(f"s_sub_u32 s31, s31, 4")
    a(f"s_and_b32 s38, s2, 7")
    a(f"s_lshl_b32 s30, s31, 3")
    a(f"s_add_u32 s30, s30, s38")
    a(f"s_add_u32 s37, s30, 480")
    a(f"s_sub_u32 s39, s31, 60")
    a(f"s_mul_i32 s40, s39, 205")
    a(f"s_lshr_b32 s40, s40, 10")
    a(f"s_mul_i32 s40, s40, 70")
    a(f"s_lshl_b32 s39, s39, 1")
    a(f"s_add_u32 s40, s40, s39")
    a(f"s_mul_i32 s39, s38, 10")
    a(f"s_add_u32 s40, s40, s39")
    a(f"s_add_u32 s40, s40, 960")
    a(f"s_add_u32 s41, s40, 1")
    a(f"s_cmp_ge_u32 s31, 60")
    a(f"s_cselect_b32 s30, s40, s30")
    a(f"s_cselect_b32 s37, s41, s37")
    idle = a.label("k1idle"); dn = a.label("k1dn"); jn = a.label("k1jn")
    a(f"s_cmp_ge_u32 s30, 1640")
    a(f"s_cbranch_scc1 {idle}")
    a(f"s_waitcnt lgkmcnt(0)")
    srd(a, 8, 20, WS_SPAN)
    rp.rp_addr(a, 30, 50, 12, 32, 33, 34, 35, 36, (40,41,42,43), lane, (2,3,4,5), 6, 7, 8)
    rp.rp_addr(a, 37, 50, 16, 44, 45, 46, 47, 36, (40,41,42,43), lane, (2,3,4,5), 9, 10, 11)
    a("s_mov_b32 s40, 0x05040100"); a("s_mov_b32 s41, 0x07060302")
    RS = [int(c, 36) for c in os.environ.get('RS', '02222222200')]
    RB1 = len(RS) - 1
    lds_ = rp.rp_loads(12, 32, 33, 34, 6, 7, 16) + rp.rp_loads(16, 44, 45, 46, 9, 10, 48)
    assert sum(RS) == 16
    for i, n in enumerate(RS):
        if i: a("s_barrier")
        for x in lds_[:n]: a(x)
        lds_ = lds_[n:]
    a(f"s_cmp_ge_u32 s31, 60")
    a("s_waitcnt vmcnt(0)")
    a(f"s_cbranch_scc1 {dn}")
    for x in rp.rp_finish(8, 40, 41, [(16,0), (16,1), (48,0), (48,1)], 32, 8, 0, RFL): a(x)
    if RB1 < 12: a("s_barrier")
    for x in rp.rp_finish(8, 40, 41, [(16,2), (16,3), (48,2), (48,3)], 64, 8, 64, RFL): a(x)
    a(f"s_branch {jn}")
    a(f"{idle}:")
    for i in range(min(RB1+1, 12)): a("s_barrier")
    a(f"s_branch {jn}")
    a(f"{dn}:")
    for x in rp.rp_finish(8, 40, 41, [(16,c) for c in range(4)], 32, 8, 0, RFL): a(x)
    if RB1 < 12: a("s_barrier")
    for x in rp.rp_finish(8, 40, 41, [(48,c) for c in range(4)], 64, 11, 0, RFL): a(x)
    a(f"{jn}:")
    for i in range(RB1+1, 11): a("s_barrier")
    LASTB = RB1 < 11
    if not os.environ.get('NOCP'):
        a(f"s_sub_u32 s{t0}, 127, s31")
        code_prefetch(a, "mk_attn_ffn_kernel", "L_mk_end", t0, 44, t1, lane, tmp)
    if LASTB: a("s_barrier")
    a("s_endpgm")
    kernel_desc(a, name, 256 if PROF else 224, 96)
    return dict(name=name, grid=256, block=512, lds=K1_LDS)
```

```python
from asmlib import *
from layout import *

def ag(i, n=1):
    return f"a{i}" if n == 1 else f"a[{i}:{i+n-1}]"

UPTO = int(os.environ.get('UPTO', '5'))
SPIN = int(os.environ.get('SPIN', '200000'))
IMPURE = int(os.environ.get('IMPURE', '0'))
WSTART = int(os.environ.get('WSTART', '19'))

def gen_mk(a, name="mk_attn_ffn_kernel"):
    kernel_begin(a, name)
    P = Prof(a, 0, 64, 9)
    SW, SX, SOUT, SR = 8, 12, 16, 20
    WS = 24
    g, m, wv, kvo, pure, spin, myid = 26, 27, 28, 29, 30, 31, 32
    t0, t1, t2, t3 = 33, 34, 35, 36
    fbk = 37
    hd, qb, wdp = 50, 51, 52
    vmask = 38
    st1, st2, st3, ssh, task = 40, 41, 42, 43, 44
    sX = [45, 46]
    wo_, wgu_ = 47, 58
    kvb = 59
    so = [60, 61, 62, 63]
    lane, voff = 1, 2
    kb = [3, 4, 5]; vb = [6, 7, 8]
    tmp, tmp2, tmp3, tmp4 = 9, 10, 11, 12
    Q = [14, 20]; K = [26, 32]; V = [38, 46]; PP = 54
    NEG = [64, 80]; S_ = [96, 112]; O = [128, 144]
    RO = [160, 176]; RJ = [204, 205]; nonce, rpj = 100, 101
    RES = 244
    raddr = 13
    WOF = lambda n: (ag(240 + 4*n, 4) if n < 4 else v(160 + 4*(n-4), 4))
    done = a.label("mkdone")
    def poll(off_sreg, nl, vt, lanes_ready=False):
        lp = a.label("poll"); out = a.label("pout")
        a(f"v_and_b32 v{vt+1}, {nl-1}, v{lane}")
        a(f"s_mov_b32 s{spin}, {SPIN}")
        a(f"v_lshlrev_b32 v{vt+1}, 2, v{vt+1}")
        a(f"{lp}:")
        a(f"buffer_load_dword v{vt}, v{vt+1}, s[{SW}:{SW+3}], s{off_sreg} offen sc1")
        a(f"s_sub_u32 s{spin}, s{spin}, 1")
        a(f"s_waitcnt vmcnt(0)")
        a(f"v_cmp_ne_u32 vcc, s{nonce}, v{vt}")
        a(f"s_cbranch_scc1 {out}")
        a(f"s_cbranch_vccnz {lp}")
        a(f"{out}:")
    def both(stores, wt=False):
        if wt:
            for x in stores: a(x + " sc0 sc1" if x.startswith("buffer_store") else x)
            return
        l0 = a.label("wt"); l1 = a.label("wj")
        a(f"s_cmp_eq_u32 s{pure}, 0")
        a(f"s_cbranch_scc1 {l0}")
        for x in stores: a(x)
        a(f"{l1}:")
        tail.append((l0, [x + " sc0 sc1" if x.startswith("buffer_store") else x for x in stores], l1))
    def flag(off_sreg, vt, wt=False):
        a(f"v_mov_b32 v{vt}, s{nonce}")
        a(f"v_mov_b32 v{vt+1}, 0")
        a(f"s_mov_b64 exec, 1")
        a(f"s_waitcnt vmcnt(0)")
        both([f"buffer_store_dword v{vt}, v{vt+1}, s[{SW}:{SW+3}], s{off_sreg} offen"], wt)
        a(f"s_mov_b64 exec, -1")
    tail = []

    def pollw(off_sreg, n, vt, va, first=True):
        lp = a.label("poll"); out = a.label("pout"); ck = a.label("pck")
        ld = f"buffer_load_dwordx{n} {v(vt,n)}, v{va}, s[{SW}:{SW+3}], s{off_sreg} offen sc1"
        chk = [f"v_xor_b32 v{vt+i}, s{nonce}, v{vt+i}" for i in range(n)] + (
              [f"v_or3_b32 v{vt}, v{vt}, v{vt+1}, v{vt+2}", f"v_or_b32 v{vt}, v{vt}, v{vt+3}"] if n == 4 else [f"v_or_b32 v{vt}, v{vt}, v{vt+1}"]) + [
              f"v_cmp_ne_u32 vcc, 0, v{vt}"]
        loop = [f"s_mov_b32 s{spin}, {SPIN}", f"{lp}:", ld, f"s_sub_u32 s{spin}, s{spin}, 1", "s_waitcnt vmcnt(0)"] + chk + [f"s_cbranch_scc1 {out}", f"s_cbranch_vccnz {lp}"]
        if first: return loop + [f"{out}:"]
        tail.append((ck, loop, out))
        return [ld], chk + [f"s_cbranch_vccnz {ck}", f"{out}:"]
    P.start()
    a(f"s_load_dwordx4 s[4:7], s[0:1], {KA_X}")
    a(f"s_load_dwordx2 s[48:49], s[0:1], {KA_DBG}")
    a(f"s_load_dwordx2 s[50:51], s[0:1], {KA_WO}")
    a(f"s_load_dwordx4 s[52:55], s[0:1], {KA_WG}")
    a(f"s_load_dwordx2 s[56:57], s[0:1], {KA_WD}")
    a(f"s_memrealtime s[{nonce}:{nonce+1}]")
    a(f"s_load_dwordx2 s[{WS}:{WS+1}], s[0:1], {KA_WS}")
    a(f"s_cmp_ge_u32 s2, 256")
    a(f"s_cbranch_scc1 {done}")
    a(f"v_lshrrev_b32 v{tmp}, 6, v0")
    a(f"v_and_b32 v{lane}, 63, v0")
    a(f"s_and_b32 s{g}, s2, 7")
    a(f"v_readfirstlane_b32 s{wv}, v{tmp}")
    a(f"s_lshr_b32 s{m}, s2, 3")
    import qkv
    rstores = qkv.qkv(dict(locals(), SPIN=SPIN, IMPURE=IMPURE))
    a(f"s_load_dwordx2 s[6:7], s[0:1], {KA_OUT}")
    a("L_att_begin:")
    a(f"v_lshlrev_b32 v{voff}, 4, v{lane}")
    a(f"v_and_b32 v{tmp}, 31, v{lane}")
    a(f"v_lshrrev_b32 v{tmp2}, 5, v{lane}")
    a(f"v_lshlrev_b32 v{kb[0]}, 3, v{tmp}")
    a(f"v_lshl_add_u32 v{kb[0]}, v{tmp2}, 9, v{kb[0]}")
    a(f"s_lshl_b32 s{hd}, s{g}, 2")
    a(f"s_and_b32 s{t0}, s{m}, 3")
    a(f"s_add_u32 s{hd}, s{hd}, s{t0}")
    a(f"s_lshr_b32 s{qb}, s{m}, 2")
    a(f"s_lshl_b32 s{t0}, s{qb}, 2")
    a(f"s_add_u32 s{t0}, s{t0}, s{wv}")
    a(f"s_mul_i32 s{t0}, s{t0}, 5120")
    a(f"s_lshl_b32 s{t1}, s{g}, 2")
    a(f"s_add_u32 s{t1}, s{t1}, s{hd}")
    a(f"s_mul_i32 s{t2}, s{t1}, 163840")
    a(f"s_add_u32 s{task}, s{t2}, s{t0}")
    a(f"s_lshl_b32 s{kvo}, s{wv}, 12")
    a(f"s_mov_b32 m0, s{kvo}")
    a(f"s_add_u32 s{t2}, s{t2}, {4*163840}")
    for x in range(2):
        a(f"v_mov_b32 v{Q[x]+4}, 0")
        a(f"v_mov_b32 v{Q[x]+5}, 0")
    a(f"s_waitcnt lgkmcnt(0)")
    srd(a, SOUT, 6, S*D*2)
    a(f"s_add_u32 s{kvb}, s{t2}, s{kvo}")
    ndma = [0]
    def dma():
        j = ndma[0]; ndma[0] += 1
        out = [f"buffer_load_dwordx4 v{voff}, s[{SW}:{SW+3}], s{kvb} offen offset:{1024*(j&3)} sc1 lds"]
        if j & 3 == 0 and j:
            out = [f"s_add_u32 m0, m0, 16384", f"s_add_u32 s{kvb}, s{kvb}, 16384"] + out
        return out
    srd(a, SX, 4, S*D*2)
    a(f"v_mul_u32_u24 v{vb[0]}, 320, v{tmp2}")
    a(f"v_lshl_add_u32 v{vb[0]}, v{tmp}, 4, v{vb[0]}")
    a(f"v_add_u32 v{vb[0]}, 1280, v{vb[0]}")
    for i in (1, 2):
        a(f"v_add_u32 v{kb[i]}, {61440*i}, v{kb[0]}")
        a(f"v_add_u32 v{vb[i]}, {61440*i}, v{vb[0]}")
    a(f"s_mov_b32 s{vmask}, 0xfffff")
    a(f"s_mov_b32 s{vmask+1}, 0xfffff")
    for i in range(8):
        a(f"v_mov_b32 v{V[0]+i}, 0x3f803f80")
        a(f"v_mov_b32 v{V[1]+i}, 0x3f803f80")
    a(f"s_mov_b32 s{fbk}, 0")
    a(f"s_lshr_b32 s{t0}, s{m}, 2")
    a(f"s_mul_i32 s{wo_}, s{t0}, {20*5120}")
    a(f"s_mul_i32 s{t1}, s{wv}, {5*5120}")
    a(f"s_add_u32 s{wo_}, s{wo_}, s{t1}")
    a(f"s_add_u32 s{wo_}, s{wo_}, {WS_WO}")
    a(f"s_lshl_b32 s{t1}, s{t0}, 1")
    a(f"s_and_b32 s{t2}, s{m}, 1")
    a(f"s_add_u32 s{t1}, s{t1}, s{t2}")
    a(f"s_lshl_b32 s{t1}, s{t1}, 2")
    a(f"s_add_u32 s{t1}, s{t1}, s{wv}")
    a(f"s_mul_i32 s{wgu_}, s{t1}, {3*20480}")
    a(f"s_add_u32 s{wgu_}, s{wgu_}, {WS_WGU}")
    a(f"s_lshl_b32 s{t1}, s{g}, 2")
    a(f"s_and_b32 s{t2}, s{m}, 3")
    a(f"s_add_u32 s{t1}, s{t1}, s{t2}")
    a(f"s_lshl_b32 s{t1}, s{t1}, 2")
    a(f"s_add_u32 s{t1}, s{t1}, s{wv}")
    a(f"s_mul_i32 s{t1}, s{t1}, 20480")
    a(f"s_mul_i32 s{t0}, s{t0}, 160")
    a(f"s_add_u32 s{t0}, s{t0}, s{t1}")
    a(f"v_and_b32 v{tmp}, 15, v{lane}")
    a(f"v_lshrrev_b32 v{tmp2}, 4, v{lane}")
    a(f"v_mul_u32_u24 v{raddr}, 1280, v{tmp}")
    a(f"v_mad_u32_u24 v{raddr}, v{tmp2}, 40, v{raddr}")
    a(f"v_add_u32 v{raddr}, s{t0}, v{raddr}")

    PT, pt20, pt16 = 254, 62, 63
    a(f"s_lshl_b32 s{t0}, s{g}, 5")
    a(f"s_add_u32 s{t0}, s{t0}, s{m}")
    a(f"s_lshl_b32 s{t0}, s{t0}, 2")
    a(f"s_add_u32 s{t0}, s{t0}, s{wv}")
    a(f"s_mul_i32 s{so[0]}, s{t0}, 2560")
    a(f"s_add_u32 s{so[0]}, s{so[0]}, {WS_H}")
    a(f"s_mul_i32 s{so[1]}, s{t0}, 6144")
    a(f"s_add_u32 s{so[1]}, s{so[1]}, {WS_ACT}")
    a(f"s_and_b32 s{wdp}, s{t0}, 127")
    a(f"s_mul_i32 s{wdp}, s{wdp}, 15360")
    a(f"s_add_u32 s{wdp}, s{wdp}, {WS_WD}")
    a(f"v_min_u32 v{pt20}, 19, v{lane}")
    a(f"v_lshlrev_b32 v{pt20}, 7, v{pt20}")
    a(f"v_lshlrev_b32 v{pt16}, 7, v{tmp}")
    a(f"s_lshl_b32 s{so[3]}, s{t0}, 7")
    a(f"s_mov_b32 s{so[2]}, {WS_ST}")

    def ldsb(bases, off):
        i = off // 61440
        return bases[i], off - 61440*i
    def readK(t, Kb, bases=kb):
        b, off = ldsb(bases, t*2560)
        return [f"ds_read_b64 {v(Kb,2)}, v{b} offset:{off}",
                f"ds_read_b64 {v(Kb+2,2)}, v{b} offset:{off+256}",
                f"ds_read_b64 {v(Kb+4,2)}, v{b} offset:{off+1024}"]
    def readV(t, V0, bases=vb):
        b, off = ldsb(bases, t*2560)
        return [f"s_mov_b64 exec, s[{vmask}:{vmask+1}]",
                f"ds_read_b128 {v(V0,4)}, v{b} offset:{off}",
                f"ds_read_b128 {v(V0+4,4)}, v{b} offset:{off+640}",
                f"s_mov_b64 exec, -1"]
    def qk1(x, Kb, C): return f"v_mfma_f32_32x32x16_bf16 {v(S_[x],16)}, {v(Kb,4)}, {v(Q[x],4)}, {C}"
    def qk2(x, Kb): return f"v_mfma_f32_32x32x8_bf16 {v(S_[x],16)}, {v(Kb+4,2)}, {v(Q[x]+4,2)}, {v(S_[x],16)}"
    def max16(Sr, d):
        for i in range(0, 16, 2):
            a(f"v_max3_f32 v{d}, v{Sr+i}, v{Sr+i+1}, v{d}")
    pv = lambda x, Vb, hh: f"v_mfma_f32_32x32x16_bf16 {v(O[x],16)}, {v(Vb+4*hh,4)}, {v(PP+4*hh,4)}, {v(O[x],16)}"
    def prime():
        for x, d in enumerate((tmp, tmp2)):
            a(f"v_mov_b32 v{tmp3+x}, v{d}")
        a("s_nop 1")
        for x, d in enumerate((tmp, tmp2)):
            a(f"v_permlane32_swap_b32 v{tmp3+x}, v{d}")
        a("s_nop 1")
        for x, d in enumerate((tmp, tmp2)):
            a(f"v_max_f32 v{d}, v{d}, v{tmp3+x}")
        for i in range(16):
            a(f"v_sub_f32 v{NEG[0]+i}, 0, v{tmp}")
        for x in readK(1, K[1]): a(x)
        a(qk1(0, K[0], v(NEG[0],16))); a(qk2(0, K[0]))
        for x in readV(0, V[0]): a(x)
        for i in range(16):
            a(f"v_sub_f32 v{NEG[1]+i}, 0, v{tmp2}")
        for i in range(32):
            a(f"v_mov_b32 v{O[0]+i}, 0")
        for i in range(4):
            a(f"v_mov_b32 v{PP+4+i}, 0")
        a(f"s_waitcnt lgkmcnt(0)")
        a(f"v_exp_f32 v{S_[0]}, v{S_[0]}")
        a(f"v_exp_f32 v{S_[0]+1}, v{S_[0]+1}")
    def half(t, x, side, kbs=kb, vbs=vb, last=63):
        Sa, Sb = S_[x], S_[1-x]
        ex = lambda i: f"v_exp_f32 v{Sa+i}, v{Sa+i}" if i < 16 else f"v_exp_f32 v{Sb+i-16}, v{Sb+i-16}"
        cv = lambda j: f"v_cvt_pk_bf16_f32 v{PP+j}, v{Sa+2*j}, v{Sa+2*j+1}"
        Vc = V[t & 1]
        sl = [[], []]
        for i, gp in enumerate(side): sl[i % 2] += gp
        fin = x == 1 and t == last
        if x == 0:
            Kn = K[t & 1]
            rd = readV(t+1, V[(t+1) & 1], vbs) if t < last else []
            P1 = [pv(1, V[(t-1) & 1], 1)]
        else:
            Kn = K[(t+1) & 1]
            rd = readK(t+2, K[t & 1], kbs) if t + 2 <= last else []
            P1 = [pv(0, Vc, 1), "s_waitcnt lgkmcnt(0)"]
        seq = [ex(2)] + P1 + sl[1] + [cv(0), ex(3), ex(4), cv(1), ex(5), None if fin else qk1(1-x, Kn, v(NEG[1-x],16))] + rd + [
               ex(6), cv(2), ex(7), ex(8), None if fin else qk2(1-x, Kn), cv(3), ex(9), ex(10), cv(4), ex(11), ex(12), cv(5), ex(13),
               pv(x, Vc, 0)] + sl[0] + [ex(14), cv(6), ex(15)] + (["s_nop 0", cv(7), "s_nop 1"] if fin else [ex(16), cv(7), ex(17)])
        for s_ in seq:
            if s_: a(s_)
    a(f"s_lshl_b32 s{t0}, s{g}, 9")
    a(f"s_add_u32 s{t0}, s{t0}, {FL0}")
    a(f"v_lshlrev_b32 v{tmp}, 3, v{lane}")
    a(f"s_lshl_b32 s{st1}, s2, 2")
    a(f"s_add_u32 s{st1}, s{st1}, {FLR}")
    a(f"s_mov_b32 s{st2}, {FLR}")
    a(f"v_mov_b32 v192, s{nonce}")
    a(f"v_mov_b32 v193, 0")
    a(f"s_barrier")
    for x in pollw(t0, 2, 64, tmp): a(x)
    P.stamp(3)
    for x in range(2):
        a(f"buffer_load_dwordx2 {v(Q[x],2)}, v{kb[0]}, s[{SW}:{SW+3}], s{task} offen offset:{2560*x} sc1")
        a(f"buffer_load_dwordx2 {v(Q[x]+2,2)}, v{kb[0]}, s[{SW}:{SW+3}], s{task} offen offset:{2560*x+256} sc1")
    a(f"s_mov_b32 exec_hi, 0")
    for x in range(2):
        a(f"buffer_load_dwordx2 {v(Q[x]+4,2)}, v{kb[0]}, s[{SW}:{SW+3}], s{task} offen offset:{2560*x+1024} sc1")
    a(f"s_mov_b64 exec, -1")
    for j in range(8):
        for x in dma(): a(x)
    a(f"s_waitcnt vmcnt(0)")
    a(f"s_barrier")
    P.stamp(4)
    for x in readK(0, K[0]): a(x)
    a(f"v_mov_b32 v{tmp}, 0xff800000")
    a(f"v_mov_b32 v{tmp2}, 0xff800000")
    a(f"s_waitcnt lgkmcnt(0)")
    a(qk1(0, K[0], "0")); a(qk1(1, K[0], "0")); a(qk2(0, K[0])); a(qk2(1, K[0]))
    a("s_nop 7"); a("s_nop 4")
    max16(S_[0], tmp); max16(S_[1], tmp2)
    prime()
    a(f"v_and_b32 v{tmp}, 3, v{lane}")
    a(f"v_bfe_u32 v{tmp2}, v{lane}, 2, 1")
    a(f"v_lshlrev_b32 v{tmp}, 7, v{tmp}")
    a(f"v_lshl_add_u32 v{tmp}, v{tmp2}, 12, v{tmp}")
    a(f"s_lshl_b32 s{t1}, s{g}, 9")
    a(f"s_add_u32 s{t1}, s{t1}, {FL2-WS_ST}")
    a(f"v_add_u32 v{tmp4}, s{t1}, v{tmp}")
    a(f"v_writelane_b32 v{tmp4}, s{so[3]}, 63")
    Wd_ = f"s[{SW}:{SW+3}]"
    wo_l, gu_l = [], []
    for n in range(25):
        gp = [f"buffer_load_dwordx4 {WOF(n)}, v{voff}, {Wd_}, s{wo_} offen offset:{1024*(n&3)} sc1"]
        if n & 3 == 0 and n: gp.insert(0, f"s_add_u32 s{wo_}, s{wo_}, 4096")
        wo_l.append((8, gp))
    for f in range(3):
        for ks in range(20):
            gp = [f"buffer_load_dwordx4 {ag((ks*3+f)*4,4)}, v{voff}, {Wd_}, s{wgu_} offen offset:{1024*(ks&3)} sc1"]
            if ks & 3 == 0 and (ks or f): gp.insert(0, f"s_add_u32 s{wgu_}, s{wgu_}, 4096")
            gu_l.append((8, gp))
    CW = float(os.environ.get('CW', '2'))
    x_l = [(24, [f"buffer_load_dwordx4 {v(RES,4)}, v{raddr}, s[{SX}:{SX+3}], 0 offen"]),
           (8, [f"buffer_load_dwordx4 {v(RES+4,4)}, v{raddr}, s[{SX}:{SX+3}], 0 offen offset:16"]),
           (8, [f"buffer_load_dwordx2 {v(RES+8,2)}, v{raddr}, s[{SX}:{SX+3}], 0 offen offset:32"])]
    pt = lambda va, sr, off=0: f"buffer_load_dword v{PT}, v{va}, {Wd_}, s{sr} offen offset:{off} sc1"
    pt_l = [(20*CW, [pt(pt20, so[0])]), (16*CW, [pt(pt16, so[1])]), (16*CW, [pt(pt16, so[1], 2048)]),
            (16*CW, [f"s_add_u32 s{so[1]}, s{so[1]}, 4096", pt(pt16, so[1])]), (9, [pt(tmp4, so[2])])]
    if os.environ.get('NOPT'): pt_l = []
    early = x_l + pt_l
    items = gu_l[:40] + wo_l + gu_l[40:]
    CAP = float(os.environ.get('CAP', '10')); HEND = int(os.environ.get('HEND', '122'))
    HF = int(os.environ.get('HF', '16')); HP = int(os.environ.get('HP', '28')); HC = HP + 4
    l0 = a.label("nfl")
    flagr = [f"s_cmp_lg_u32 s{wv}, 0", f"s_cbranch_scc1 {l0}", "s_mov_b64 exec, 1",
             f"buffer_store_dword v192, v193, {Wd_}, s{st1} offen sc0 sc1", "s_mov_b64 exec, -1", f"{l0}:"]
    pld, pck = pollw(st2, 4, 196, voff, False)
    if not os.environ.get('NOCP2'):
        b = Asm(); b.uid = a.uid + 1000; a.uid += 2000
        code_prefetch(b, "L_fin_begin", "L_mk_end", rpj, 54, t1, lane, 255)
        items.insert(len(items) - 16, (16, [x.strip() for x in b.lines]))
    side = {}; issued = []
    kvq = list(range(8, 40)); rs = list(rstores)
    budget = 0.0; k = 0
    bars = {HF: 16, 46: 28, 84: 40}
    kvh = {j: (j-8 if j < 16 else HF + 1 + 2*(j-16) if j < 28 else 44 + 3*(j-28)) for j in range(8, 40)}
    for h in range(128):
        sd = []
        budget = min(budget + CAP, 2*CAP)
        if h in bars:
            idx = [i for i, x in enumerate(issued) if x == bars[h]-1]
            after = len(issued) - 1 - idx[0] if idx else len(issued)
            assert idx or bars[h] == 8
            if h == HF: sd.append(["s_waitcnt vmcnt(0)", "s_barrier"] + flagr)
            else: sd.append([f"s_waitcnt vmcnt({after})", "s_barrier"])
        if h == HP: sd.append(pld); issued.append(-2)
        if h == HC: sd.append([f"s_waitcnt vmcnt({len(issued) - 1 - issued.index(-2)})"] + pck)
        if kvq and h >= kvh[kvq[0]] and len(sd) < 2:
            sd.append(dma()); issued.append(kvq.pop(0)); budget -= float(os.environ.get('KVW', '4'))
        if h < 8: sd.append([rs.pop(0)])
        if h > HF and early and len(sd) < 2 and budget > 0 and not (HP - 6 <= h <= HP):
            w_, gp = early.pop(0); budget -= w_; sd.append(gp); issued.append(-1)
        while HC < h < HEND and k < len(items) and budget > 0 and len(sd) < 2:
            budget -= items[k][0]; sd.append(items[k][1]); issued.append(-1); k += 1
        side[h] = sd[::-1]
    assert not early and not rs
    late = [gp for w_, gp in items[k:]]
    print("late items", len(late))
    assert ndma[0] == 40
    for t in range(64):
        for x in range(2):
            half(t, x, side[2*t+x])
            P.stamp(f"h{2*t+x}")
    fin0 = a.label("fin0")
    a(f"{fin0}:")
    a("L_fin_begin:")
    a(pv(1, V[1], 1))
    P.stamp(5)
    a(f"v_bfe_u32 v{tmp}, v{lane}, 4, 1")
    a(f"v_mul_u32_u24 v{tmp}, 20480, v{tmp}")
    a(f"v_and_b32 v{tmp2}, 15, v{lane}")
    a(f"v_lshl_add_u32 v{tmp}, v{tmp2}, 4, v{tmp}")
    a(f"v_lshrrev_b32 v{tmp2}, 5, v{lane}")
    a(f"v_lshl_add_u32 v{tmp2}, v{tmp2}, 8, v{tmp}")
    a(f"v_rcp_f32 v{tmp3}, v{O[0]+12}")
    a(f"s_mov_b32 s{t3}, 0x5f800000")
    a(f"s_lshr_b32 s{t0}, s{hd}, 1")
    a(f"s_mul_i32 s{t0}, s{t0}, 1280")
    a(f"s_lshl_b32 s{t1}, s{qb}, 2")
    a(f"s_add_u32 s{t1}, s{t1}, s{wv}")
    a(f"s_mul_i32 s{t1}, s{t1}, 81920")
    a(f"s_add_u32 s{t0}, s{t0}, s{t1}")
    a(f"s_add_u32 s{t0}, s{t0}, {WS_OF}")
    a(f"s_and_b32 s{t1}, s{hd}, 1")
    a(f"v_add_f32 v{S_[0]}, v{O[0]+12}, v{O[1]+12}")
    a(f"s_lshl_b32 s{t2}, s{t1}, 9")
    a(f"s_add_u32 s{so[0]}, s{t2}, s{t0}")
    a(f"v_cmp_nlt_f32 vcc, v{S_[0]}, s{t3}")
    a(f"s_lshl_b32 s{t1}, s{t1}, 3")
    a(f"s_add_u32 s{so[1]}, s{t1}, s{t0}")
    a(f"s_add_u32 s{so[2]}, s{so[0]}, 40960")
    a(f"s_add_u32 s{so[3]}, s{so[1]}, 40960")
    fb = a.label("fb"); fin = a.label("fin")
    a(f"s_cbranch_vccnz {fb}")
    a(f"{fin}:")
    a(f"v_rcp_f32 v{tmp4}, v{O[1]+12}")
    a("s_waitcnt vmcnt(0)")
    for x in range(2):
        for i in range(12):
            a(f"v_mul_f32 v{O[x]+i}, v{O[x]+i}, v{tmp3+x}")
        for i in range(6):
            a(f"v_cvt_pk_bf16_f32 v{O[x]+i}, v{O[x]+2*i}, v{O[x]+2*i+1}")
    both([f"buffer_store_dwordx4 {v(O[x],4)}, v{tmp2}, s[{SW}:{SW+3}], s{so[2*x]} offen" for x in range(2)] + ["s_mov_b32 exec_hi, 0"] +
         [f"buffer_store_dwordx2 {v(O[x]+4,2)}, v{tmp}, s[{SW}:{SW+3}], s{so[2*x+1]} offen offset:1024" for x in range(2)] + ["s_mov_b64 exec, -1"], True)
    ctx = dict(locals())
    if UPTO >= 3:
        import mg2
        mg2.rest(ctx)
    l0 = a.label("ntag")
    a(f"s_or_b32 s{t0}, s2, s{wv}")
    a(f"s_cbranch_scc1 {l0}")
    a(f"s_load_dwordx2 s[48:49], s[0:1], {KA_DBG}")
    a(f"v_mov_b32 v{tmp}, 0")
    a(f"s_mov_b64 exec, 1")
    a(f"s_waitcnt lgkmcnt(0)")
    a(f"global_store_dword v{tmp}, v{tmp}, s[48:49]")
    a(f"{l0}:")
    P.flush(12, WS, wv)
    a(f"{done}:")
    a("s_endpgm")
    a(f"{fb}:")
    a(f"s_cmp_lg_u32 s{fbk}, 0")
    a(f"s_cbranch_scc1 {fin}")
    a(f"s_mov_b32 s{fbk}, 1")
    ka, va = 62, 63
    a(f"v_add_u32 v{ka}, {63*2560}, v{kb[0]}")
    a(f"v_mov_b32 v{tmp}, 0xff800000")
    a(f"v_mov_b32 v{tmp2}, 0xff800000")
    a(f"s_mov_b32 s{t0}, 64")
    fl = a.label("fl")
    a(f"{fl}:")
    for x in readK(0, K[0], [ka]): a(x)
    a(f"s_waitcnt lgkmcnt(0)")
    a(qk1(0, K[0], "0")); a(qk1(1, K[0], "0")); a(qk2(0, K[0])); a(qk2(1, K[0]))
    a(f"v_subrev_u32 v{ka}, 2560, v{ka}")
    a(f"s_sub_u32 s{t0}, s{t0}, 1")
    a("s_nop 7"); a("s_nop 4")
    max16(S_[0], tmp); max16(S_[1], tmp2)
    a(f"s_cmp_lg_u32 s{t0}, 0")
    a(f"s_cbranch_scc1 {fl}")
    prime()
    a(f"v_mov_b32 v{ka}, v{kb[0]}")
    a(f"v_mov_b32 v{va}, v{vb[0]}")
    a(f"s_mov_b32 s{t0}, 31")
    fl = a.label("fl2")
    a(f"{fl}:")
    for t in range(2):
        for x in range(2): half(t, x, [], [ka], [va])
    a(f"v_add_u32 v{ka}, 5120, v{ka}")
    a(f"v_add_u32 v{va}, 5120, v{va}")
    a(f"s_sub_u32 s{t0}, s{t0}, 1")
    a(f"s_cmp_lg_u32 s{t0}, 0")
    a(f"s_cbranch_scc1 {fl}")
    for t in range(2):
        for x in range(2): half(t, x, [], [ka], [va], last=1)
    a(f"s_branch {fin0}")
    for l0, ins, l1 in tail:
        a(f"{l0}:")
        for x in ins: a(x)
        a(f"s_branch {l1}")
    a("L_mk_end:")
    kernel_desc(a, name, 512, 102, accum=256)
    return dict(name=name, grid=256, block=256, lds=163840)
```

```python
from asmlib import *
from layout import *

def rest(c):
    a, P = c['a'], c['P']
    ag, both, flag, poll, WOF = c['ag'] if 'ag' in c else None, c['both'], c['flag'], c['poll'], c['WOF']
    import mg as mk
    ag = mk.ag; UPTO = mk.UPTO
    SW, SOUT, g, m, wv = c['SW'], c['SOUT'], c['g'], c['m'], c['wv']
    t0, t1, t2, t3, so = c['t0'], c['t1'], c['t2'], c['t3'], c['so']
    lane, voff, RES, raddr = c['lane'], c['voff'], c['RES'], c['raddr']
    tmp, tmp2, tmp3, tmp4 = c['tmp'], c['tmp2'], c['tmp3'], c['tmp4']
    W = f"s[{SW}:{SW+3}]"
    rb64, nb, rbg, sfl, spl, wd_ = 40, 41, 42, 43, 44, 47
    hs = [45, 46]; hl = [48, 49]; chunk, rt = 50, 51
    CS = [136, 140, 152]; ONES = 156
    wr = [3, 4, 5]; rdv = 6; voff2 = 7
    mf16 = lambda D_, A_, B_, C_: f"v_mfma_f32_16x16x32_bf16 {v(D_,4)}, {A_}, {B_}, {C_}"
    def colsum(k0, k1):
        for ks in range(k0, k1):
            for f in range(3):
                a(mf16(CS[f], ag((ks*3+f)*4,4), v(ONES,4), "0" if ks == 0 else v(CS[f],4)))
    for i in range(4): a(f"v_mov_b32 v{ONES+i}, 0x3f803f80")
    a(f"s_and_b32 s{rb64}, s{m}, 3")
    a(f"s_lshr_b32 s{nb}, s{m}, 2")
    a(f"s_lshl_b32 s{rbg}, s{g}, 2")
    a(f"s_add_u32 s{rbg}, s{rbg}, s{rb64}")
    a(f"s_lshl_b32 s{rbg}, s{rbg}, 2")
    a(f"s_lshl_b32 s{t3}, s{c['qb']}, 9")
    a(f"s_add_u32 s{t3}, s{t3}, {FL1}")
    a(f"s_lshl_b32 s{t0}, s{wv}, 5")
    a(f"s_add_u32 s{t1}, s{t0}, s{c['hd']}")
    a(f"s_lshl_b32 s{t1}, s{t1}, 2")
    a(f"s_add_u32 s{sfl}, s{t3}, s{t1}")
    a(f"s_lshl_b32 s{t3}, s{g}, 9")
    a(f"s_add_u32 s{t3}, s{t3}, {FL1}")
    a(f"s_lshl_b32 s{t1}, s{rb64}, 7")
    a(f"s_add_u32 s{t1}, s{t1}, s{t0}")
    a(f"s_add_u32 s{spl}, s{t3}, s{t1}")
    if not c['late']: colsum(0, 10)
    def rowsel(stride, kq, base):
        a(f"s_mul_i32 s{t2}, s{wv}, {kq}")
        a(f"s_add_u32 s{t2}, s{t2}, {base}")
        for j in range(4):
            a(f"s_add_u32 s{t0}, s{wv}, {j}")
            a(f"s_and_b32 s{t0}, s{t0}, 3")
            a(f"s_add_u32 s{t0}, s{t0}, s{rbg}")
            a(f"s_mul_i32 s{t0}, s{t0}, {stride}")
            a(f"s_add_u32 s{so[j]}, s{t0}, s{t2}")
    flag(sfl, tmp3, True)
    P.stamp(6)
    rowsel(20480, 5120, WS_OF)
    for j in range(1, 4):
        a(f"s_add_u32 s{t0}, s{wv}, {j}")
        a(f"s_and_b32 s{t0}, s{t0}, 3")
        a(f"s_mul_i32 s{t0}, s{t0}, 15360")
        a(f"s_add_u32 s{t0}, s{t0}, {(j-1)*5120}")
        a(f"v_add_u32 v{wr[j-1]}, s{t0}, v{voff}")
    a(f"s_mul_i32 s{t0}, s{wv}, 15360")
    a(f"v_add_u32 v{rdv}, s{t0}, v{voff}")
    for gp in c['late']:
        for x in gp: a(x)
    if c['late']: a('s_waitcnt vmcnt(0)')
    if c['late']: colsum(0, 20)
    else: colsum(10, 20)
    a("s_barrier")
    poll(spl, 8, tmp3)
    P.stamp(7)
    def xgemm(KS, A0, NR, ACC, RD, wf, lead, pre):
        order = [(j, s) for j in (1, 2, 3, 0) for s in range(KS)]
        N = len(order)
        accs = {1: ACC[0], 2: ACC[1], 3: ACC[2], 0: ACC[0]}
        def ld(n):
            j, s = order[n]
            out = [f"buffer_load_dwordx4 {v(A0+4*(n%NR),4)}, v{voff}, {W}, s{so[j]} offen offset:{1024*(s&3)} sc1"]
            if s & 3 == 3 and s + 1 < KS: out.append(f"s_add_u32 s{so[j]}, s{so[j]}, 4096")
            return out
        for n in range(lead):
            for x in ld(n): a(x)
        for x in pre: a(x)
        for n, (j, s) in enumerate(order):
            a(f"s_waitcnt vmcnt({min(lead-1, N-1-n)})")
            pj = {2: 1, 3: 2, 0: 3}.get(j)
            for i in range(5):
                D_ = accs[j] + 4*i
                a(mf16(D_, wf(s*5+i), v(A0+4*(n%NR),4), "0" if s == 0 else v(D_,4)))
                if i == 0 and n + lead < N:
                    for x in ld(n+lead): a(x)
                if pj and s == 2:
                    a(f"ds_write_b128 v{wr[pj-1]}, {v(accs[pj]+4*i,4)} offset:{1024*i}")
            if j == 0 and s == KS - 2:
                a("s_waitcnt lgkmcnt(0)")
                a("s_barrier")
        for q in range(15):
            a(f"ds_read_b128 {v(RD+4*q,4)}, v{rdv} offset:{1024*q}")
    def addres(ACC0, RD, U0):
        for j in range(10):
            a(f"v_lshlrev_b32 v{U0+2*j}, 16, v{RES+j}")
            a(f"v_and_b32 v{U0+2*j+1}, 0xffff0000, v{RES+j}")
        for j in range(10):
            a(f"v_pk_add_f32 {v(ACC0+2*j,2)}, {v(ACC0+2*j,2)}, {v(U0+2*j,2)}")
        a("s_waitcnt lgkmcnt(5)")
        for j in range(10):
            a(f"v_pk_add_f32 {v(RD+2*j,2)}, {v(RD+2*j,2)}, {v(RD+20+2*j,2)}")
        a("s_waitcnt lgkmcnt(0)")
        for j in range(10):
            a(f"v_pk_add_f32 {v(ACC0+2*j,2)}, {v(ACC0+2*j,2)}, {v(RD+40+2*j,2)}")
        for j in range(10):
            a(f"v_pk_add_f32 {v(ACC0+2*j,2)}, {v(ACC0+2*j,2)}, {v(RD+2*j,2)}")
        for j in range(10):
            a(f"v_cvt_pk_bf16_f32 v{RES+j}, v{ACC0+2*j}, v{ACC0+2*j+1}")
    ACC = [64, 84, 104]
    ha, ha2, sta = 124, 125, 126
    pre = [f"v_and_b32 v{tmp}, 15, v{lane}", f"v_lshrrev_b32 v{tmp2}, 5, v{lane}", f"v_mul_u32_u24 v{tmp2}, 1280, v{tmp2}",
           f"v_lshl_add_u32 v{ha2}, v{tmp}, 4, v{tmp2}", f"v_bfe_u32 v{tmp2}, v{lane}, 4, 1",
           f"v_lshl_add_u32 v{ha}, v{tmp2}, 9, v{ha2}", f"v_lshl_add_u32 v{ha2}, v{tmp2}, 3, v{ha2}", f"v_lshlrev_b32 v{sta}, 6, v{tmp}",
           f"s_add_u32 s{t0}, s{rbg}, s{wv}", f"s_mul_i32 s{t1}, s{t0}, 20480", f"s_mul_i32 s{t2}, s{nb}, 2560",
           f"s_add_u32 s{t1}, s{t1}, s{t2}", f"s_add_u32 s{hs[0]}, s{t1}, {WS_H}",
           f"s_lshl_b32 s{t1}, s{t0}, 10", f"s_lshl_b32 s{t2}, s{nb}, 3", f"s_add_u32 s{t1}, s{t1}, s{t2}", f"s_add_u32 s{hs[1]}, s{t1}, {WS_ST}",
           f"s_lshl_b32 s{t0}, s{t0}, 3", f"s_add_u32 s{t0}, s{t0}, s{nb}", f"s_lshl_b32 s{t0}, s{t0}, 2", f"s_add_u32 s{sfl}, s{t0}, {FL2}"]
    xgemm(5, 14, 12, ACC, 160, WOF, 6, pre)
    U0 = 14
    addres(ACC[0], 160, U0)
    A0 = ACC[0]
    both([f"buffer_store_dwordx4 {v(RES,4)}, v{ha}, {W}, s{hs[0]} offen",
          f"buffer_store_dwordx4 {v(RES+4,4)}, v{ha}, {W}, s{hs[0]} offen offset:256",
          f"buffer_store_dwordx2 {v(RES+8,2)}, v{ha2}, {W}, s{hs[0]} offen offset:1024"])
    sm, sq = U0, U0+2
    a(f"v_pk_add_f32 {v(sm,2)}, {v(A0,2)}, {v(A0+2,2)}")
    a(f"v_pk_mul_f32 {v(sq,2)}, {v(A0,2)}, {v(A0,2)}")
    for j in range(1, 10):
        if j > 1: a(f"v_pk_add_f32 {v(sm,2)}, {v(sm,2)}, {v(A0+2*j,2)}")
        a(f"v_pk_fma_f32 {v(sq,2)}, {v(A0+2*j,2)}, {v(A0+2*j,2)}, {v(sq,2)}")
    a(f"v_add_f32 v{sm}, v{sm}, v{sm+1}")
    a(f"v_add_f32 v{sm+1}, v{sq}, v{sq+1}")
    for op in ("v_permlane32_swap_b32", "v_permlane16_swap_b32"):
        a(f"v_mov_b32 v{sq}, v{sm}")
        a(f"v_mov_b32 v{sq+1}, v{sm+1}")
        a("s_nop 1")
        a(f"{op} v{sq}, v{sm}")
        a(f"{op} v{sq+1}, v{sm+1}")
        a("s_nop 1")
        a(f"v_pk_add_f32 {v(sm,2)}, {v(sm,2)}, {v(sq,2)}")
    a(f"s_mov_b64 exec, 0xffff")
    both([f"buffer_store_dwordx2 {v(sm,2)}, v{sta}, {W}, s{hs[1]} offen"])
    a(f"s_mov_b64 exec, -1")
    if UPTO < 4: return
    a(f"s_bfe_u32 s{rt}, s{m}, 0x10001")
    a(f"s_lshl_b32 s{t0}, s{g}, 1")
    a(f"s_add_u32 s{rt}, s{rt}, s{t0}")
    a(f"s_lshl_b32 s{chunk}, s{nb}, 1")
    a(f"s_and_b32 s{t0}, s{m}, 1")
    a(f"s_add_u32 s{chunk}, s{chunk}, s{t0}")
    a(f"s_lshl_b32 s{chunk}, s{chunk}, 2")
    a(f"s_add_u32 s{chunk}, s{chunk}, s{wv}")
    a(f"s_lshl_b32 s{t0}, s{rt}, 8")
    a(f"s_lshl_b32 s{t1}, s{wv}, 6")
    a(f"s_add_u32 s{t0}, s{t0}, s{t1}")
    a(f"s_add_u32 s{spl}, s{t0}, {FL2}")
    a(f"s_mul_i32 s{hl[0]}, s{wv}, 40960")
    a(f"s_add_u32 s{hl[1]}, s{hl[0]}, 20480")
    a(f"s_mul_i32 s{t0}, s{rt}, 163840")
    a(f"s_add_u32 s{t0}, s{t0}, {WS_H}")
    flag(sfl, tmp3)
    a(f"s_add_u32 s{hs[0]}, s{hl[0]}, s{t0}")
    a(f"s_add_u32 s{hs[1]}, s{hl[1]}, s{t0}")
    a(f"s_mul_i32 s{wd_}, s{nb}, {48*5120}")
    a(f"s_mul_i32 s{t0}, s{wv}, {12*5120}")
    a(f"s_add_u32 s{wd_}, s{wd_}, s{t0}")
    a(f"s_add_u32 s{wd_}, s{wd_}, {WS_WD}")
    rdb = [92, 93, 94]; oaddr = 95; sta = 8
    HF = lambda b, i: 14 + b*32 + i*4
    def AC(i, f):
        n = i*3 + f
        return 160 + 4*n if n < 21 else 80 + 4*(n-21)
    ST = 96
    for i in range(3):
        a(f"v_add_u32 v{rdb[i]}, {i*61440}, v{voff}")
    a(f"v_and_b32 v{tmp}, 15, v{lane}")
    a(f"v_lshrrev_b32 v{tmp2}, 4, v{lane}")
    a(f"v_lshlrev_b32 v{sta}, 6, v{tmp}")
    a(f"v_lshl_add_u32 v{sta}, v{tmp2}, 11, v{sta}")
    a(f"v_mul_u32_u24 v{oaddr}, 49152, v{tmp2}")
    a(f"v_lshl_add_u32 v{oaddr}, v{tmp}, 4, v{oaddr}")
    a("s_barrier")
    poll(spl, 16, tmp3)
    P.stamp(8)
    def hgrp(u):
        o = (u & 1)*2048
        dm = lambda b, s: f"buffer_load_dwordx4 v{voff}, {W}, s{hs[b]} offen offset:{o+1024*s} sc1 lds"
        out = []
        for b in range(2):
            out.append([f"s_mov_b32 m0, s{hl[b]}", "s_nop 0", dm(b, 0)])
            last = [dm(b, 1)]
            if u & 1: last += [f"s_add_u32 s{hs[b]}, s{hs[b]}, 4096", f"s_add_u32 s{hl[b]}, s{hl[b]}, 4096"]
            out.append(last)
        return out
    def wdl(n):
        out = [f"buffer_load_dwordx4 {ag(4*n,4)}, v{voff}, {W}, s{wd_} offen offset:{1024*(n&3)} sc1"]
        if n & 3 == 3: out.append(f"s_add_u32 s{wd_}, s{wd_}, 4096")
        return out
    for u in range(3):
        for gp in hgrp(u):
            for x in gp: a(x)
    a(f"s_lshl_b32 s{t0}, s{rt}, 13")
    a(f"s_add_u32 s{t0}, s{t0}, {WS_ST}")
    def reads(ks, b):
        return [f"ds_read_b128 {v(HF(b,i),4)}, v{rdb[i//3]} offset:{(i%3)*20480 + ks*1024}" for i in range(8)]
    a(f"s_waitcnt vmcnt(8)")
    a(f"s_barrier")
    for x in reads(0, 0): a(x)
    NIN = 48
    loads = {ks: [] for ks in range(20)}
    for u in range(3, 10): loads[u-3] += hgrp(u)
    loads[7] += [[f"buffer_load_dwordx4 {v(ST+16*j+4*q,4)}, v{sta}, {W}, s{t0} offen offset:{1024*j+16*q} sc1"] for j in range(2) for q in range(4)]
    for n in range(NIN):
        ks = 8 + n*12//NIN
        assert n < 3*ks
        loads[ks].append(wdl(n))
    for ks in range(20):
        b = ks & 1
        mf = [mf16(AC(i,f), ag((ks*3+f)*4,4), v(HF(b,i),4), "0" if ks == 0 else v(AC(i,f),4)) for i in range(8) for f in range(3)]
        rd = reads(ks+1, b^1) if ks < 19 else []
        ld = loads[ks]
        if os.environ.get('NOWD') and ks >= 8: ld = []
        a("s_waitcnt lgkmcnt(0)")
        seq = []
        bar = {1: 4, 5: 8, 11: 8 + sum(len(loads[k]) for k in range(8, 11))}.get(ks)
        if bar is not None:
            seq += mf[:2] + [f"s_waitcnt vmcnt({bar})", "s_barrier"]
            k0 = 2
        else:
            k0 = 0
        for i in range(8):
            seq.append(mf[k0+i])
            if rd: seq.append(rd[i])
        rest_ = mf[k0+8:]
        k = 0
        for i, x in enumerate(rest_):
            seq.append(x)
            while k < len(ld) and k*len(rest_) <= i*len(ld):
                seq += ld[k]; k += 1
        assert k == len(ld)
        for x in seq: a(x)
    P.stamp(11)
    a(f"s_waitcnt vmcnt({min(NIN,63)})")
    for j in range(2):
        b = ST + 16*j
        for d in (8, 4, 2):
            for q in range(0, d, 2):
                a(f"v_pk_add_f32 {v(b+q,2)}, {v(b+q,2)}, {v(b+q+d,2)}")
    NM = 14; R2 = 30; T = 48
    for j in range(2):
        b = ST + 16*j
        a(f"v_mul_f32 v{b}, {f32(-1.0/D)}, v{b}")
        a(f"v_mul_f32 v{b+1}, {f32(1.0/D)}, v{b+1}")
        a(f"v_fma_f32 v{b+1}, -v{b}, v{b}, v{b+1}")
        a(f"v_max_f32 v{b+1}, 0, v{b+1}")
        a(f"v_add_f32 v{b+1}, {f32(EPS)}, v{b+1}")
        a(f"v_rcp_f32 v{b+1}, v{b+1}")
    a("s_nop 0")
    rr = lambda dst, j: [dst + 2*(2*q + j) for q in range(4)]
    for j in range(2):
        for (src, dst) in ((ST+16*j, NM), (ST+16*j+1, R2)):
            r = rr(dst, j)
            a(f"v_mov_b32 v{r[0]}, v{src}")
            a(f"v_mov_b32 v{r[1]}, v{src}")
    a("s_nop 1")
    for j in range(2):
        for dst in (NM, R2):
            r = rr(dst, j)
            a(f"v_permlane16_swap_b32 v{r[0]}, v{r[1]}")
    a("s_nop 0")
    for j in range(2):
        for dst in (NM, R2):
            r = rr(dst, j)
            a(f"v_mov_b32 v{r[2]}, v{r[0]}")
            a(f"v_mov_b32 v{r[3]}, v{r[1]}")
    a("s_nop 1")
    for j in range(2):
        for dst in (NM, R2):
            r = rr(dst, j)
            a(f"v_permlane32_swap_b32 v{r[0]}, v{r[2]}")
            a(f"v_permlane32_swap_b32 v{r[1]}, v{r[3]}")
    a(f"s_mul_i32 s{t0}, s{rt}, {8*49152}")
    a(f"s_mul_i32 s{t1}, s{chunk}, 768")
    a(f"s_add_u32 s{t0}, s{t0}, s{t1}")
    a(f"s_add_u32 s{t0}, s{t0}, {WS_ACT}")
    for h in range(2):
        for I in range(4):
            i = 4*h + I
            for f in range(3):
                A = AC(i,f)
                a(f"v_pk_fma_f32 {v(A,2)}, {v(CS[f],2)}, {v(NM+2*i,2)}, {v(A,2)} op_sel_hi:[1,0,1]")
                a(f"v_pk_fma_f32 {v(A+2,2)}, {v(CS[f]+2,2)}, {v(NM+2*i,2)}, {v(A+2,2)} op_sel_hi:[1,0,1]")
            for f in range(3):
                A = AC(i,f)
                a(f"v_pk_mul_f32 {v(A,2)}, {v(A,2)}, {v(R2+2*i,2)} op_sel_hi:[1,0]")
            for f in range(3):
                A = AC(i,f)
                a(f"v_pk_mul_f32 {v(A,2)}, {v(A,2)}, {v(A+2,2)}")
            for f in range(3):
                A = AC(i,f)
                a(f"v_cvt_pk_bf16_f32 v{T+12*h+4*f+I}, v{A}, v{A+1}")
        a("s_nop 1")
        for f in range(3):
            r = T + 12*h + 4*f
            a(f"v_permlane16_swap_b32 v{r}, v{r+1}")
            a(f"v_permlane16_swap_b32 v{r+2}, v{r+3}")
        a("s_nop 1")
        for f in range(3):
            r = T + 12*h + 4*f
            a(f"v_permlane32_swap_b32 v{r}, v{r+2}")
            a(f"v_permlane32_swap_b32 v{r+1}, v{r+3}")
        both([f"buffer_store_dwordx4 {v(T+12*h+4*f,4)}, v{oaddr}, {W}, s{t0} offen offset:{256*f}" for f in range(3)])
        if h == 0: a(f"s_add_u32 s{t0}, s{t0}, {4*49152}")
    if UPTO < 5: return
    a(f"s_lshl_b32 s{t0}, s{rt}, 8")
    a(f"s_add_u32 s{t0}, s{t0}, {FL3}")
    a(f"s_lshl_b32 s{t1}, s{chunk}, 2")
    a(f"s_add_u32 s{sfl}, s{t0}, s{t1}")
    a(f"s_lshl_b32 s{t1}, s{wv}, 6")
    a(f"s_add_u32 s{spl}, s{t0}, s{t1}")
    rowsel(49152, 12288, WS_ACT)
    flag(sfl, tmp3)
    P.stamp(9)
    for n in range(NIN, 60):
        for x in wdl(n): a(x)
    a("s_barrier")
    poll(spl, 16, tmp3)
    ACC = [112, 132, 152]
    xgemm(12, 14, 24, ACC, 176, lambda n: ag(4*n,4), 8, [])
    P.stamp(10)
    addres(ACC[0], 176, 14)
    O_ = f"s[{SOUT}:{SOUT+3}]"
    a(f"buffer_store_dwordx4 {v(RES,4)}, v{raddr}, {O_}, 0 offen")
    a(f"buffer_store_dwordx4 {v(RES+4,4)}, v{raddr}, {O_}, 0 offen offset:16")
    a(f"buffer_store_dwordx2 {v(RES+8,2)}, v{raddr}, {O_}, 0 offen offset:32")
```

```python
from asmlib import *
from layout import *
import rp
STAGE = 16*1040 + 16384
BOFF = 16*1040
STATS = 4*STAGE

def qkv(c):
    a, P, both, flag = c['a'], c['P'], c['both'], c['flag']
    SW, SX, SQ, WS = c['SW'], c['SX'], c['SOUT'], c['WS']
    g, m, wv, pure, myid, spin, nonce, rpj = c['g'], c['m'], c['wv'], c['pure'], c['myid'], c['spin'], c['nonce'], c['rpj']
    t0, t1, t2, t3 = c['t0'], c['t1'], c['t2'], c['t3']
    lane = c['lane']; RJ = c['RJ']; RO = c['RO']
    soffA, soffB, dst_st, rd_st, cnt, wr, wc = 37, 38, 39, 40, 41, 42, 43
    so0, so1, m0A, m0B, kc, baseA, baseB, himask, rb, cbk = 58, 59, 60, 61, 62, 63, 29, 3, 92, 93
    R0, R1 = 20, 44; pto = 30; vst = 136
    vA = [4,5,6,7]; vB = [8,9,10,11]
    aBase = [12,13]; bBase = [14,15]; aCur = [16,17]; bCur = [18,19]
    vsq, vsum, vcs, vones, utmp = 206, 208, 212, 20, 216
    eaddr = list(range(24, 32))
    FA = lambda st, i: 32 + st*8 + i*4
    FB = lambda st, i: 48 + st*8 + i*4
    ACC = lambda ai, bi: 64 + (ai*2 + bi)*16
    r, h, tmp, tmp2, tmp3, tmp4 = 129, 130, 131, 132, 133, 134
    vn, vid, vz, vpt = 135, 137, 139, 128
    RL = [224, 240]
    W = f"s[{SW}:{SW+3}]"
    if not os.environ.get('NOCP0'):
        a(f"s_xor_b32 s{t0}, s{wv}, 3")
        a(f"s_lshl_b32 s{t0}, s{t0}, 5")
        a(f"s_add_u32 s{t0}, s{t0}, s{m}")
        code_prefetch(a, c['name'], "L_mk_end", t0, 94, t1, lane, 2, True)
    a(f"s_lshr_b32 s{rb}, s{m}, 1")
    a(f"s_and_b32 s{cbk}, s{m}, 1")
    a(f"v_lshrrev_b32 v{tmp}, 5, v{lane}")
    a(f"v_lshlrev_b32 v{tmp}, 5, v{tmp}")
    a(f"v_bfe_u32 v{tmp2}, v{lane}, 3, 1")
    a(f"v_add_u32 v{tmp}, v{tmp}, v{tmp2}")
    a(f"v_and_b32 v{tmp2}, 16, v{lane}")
    a(f"v_add_u32 v{tmp}, v{tmp}, v{tmp2}")
    a(f"s_lshr_b32 s{wr}, s{wv}, 1")
    a(f"s_and_b32 s{wc}, s{wv}, 1")
    a(f"s_lshl_b32 s{t0}, s{wr}, 6")
    a(f"s_lshl_b32 s{t1}, s{wc}, 3")
    a(f"s_add_u32 s{t0}, s{t0}, s{t1}")
    a(f"v_add_u32 v{tmp}, s{t0}, v{tmp}")
    a(f"v_mul_u32_u24 v{tmp}, 1280, v{tmp}")
    a(f"v_and_b32 v{tmp2}, 7, v{lane}")
    a(f"v_lshl_add_u32 v{vA[0]}, v{tmp2}, 4, v{tmp}")
    for i in range(1, 4):
        a(f"v_add_u32 v{vA[i]}, {i*(2*1280 - 1040)}, v{vA[0]}")
    a(f"v_lshrrev_b32 v{tmp}, 4, v{lane}")
    a(f"v_lshlrev_b32 v{tmp2}, 2, v{tmp}")
    a(f"v_and_b32 v{tmp3}, 15, v{lane}")
    a(f"v_xor_b32 v{tmp2}, v{tmp2}, v{tmp3}")
    a(f"s_cmp_eq_u32 s{cbk}, 0")
    a(f"s_cselect_b32 s{t1}, 10, 4")
    a(f"s_cselect_b32 s{t2}, 15, 13")
    a(f"s_lshl_b32 s{t0}, s{wv}, 4")
    a(f"v_add_u32 v{tmp}, s{t0}, v{tmp}")
    a(f"v_mul_u32_u24 v{tmp}, 3840, v{tmp}")
    a(f"v_cmp_le_u32 vcc, s{t1}, v{tmp2}")
    a(f"v_add_u32 v{tmp3}, 1120, v{tmp}")
    a(f"v_min_u32 v{tmp2}, s{t2}, v{tmp2}")
    a(f"v_cndmask_b32 v{tmp}, v{tmp}, v{tmp3}, vcc")
    a(f"v_lshl_add_u32 v{vB[0]}, v{tmp2}, 4, v{tmp}")
    for i in range(1, 4):
        a(f"v_add_u32 v{vB[i]}, {i*(4*3840 - 1024)}, v{vB[0]}")
    KR = [int(x) for x in os.environ.get('KR', '3,5,1').split(',')]
    a(f"s_mul_i32 s{kc}, s{rb}, {KR[0]}")
    a(f"s_mul_i32 s{t0}, s{cbk}, {KR[1]}")
    a(f"s_add_u32 s{kc}, s{kc}, s{t0}")
    a(f"s_mul_i32 s{t0}, s{g}, {KR[2]}")
    a(f"s_add_u32 s{kc}, s{kc}, s{t0}")
    a(f"s_mul_i32 s{t0}, s{kc}, 205")
    a(f"s_lshr_b32 s{t0}, s{t0}, 11")
    a(f"s_mul_i32 s{t0}, s{t0}, 10")
    a(f"s_sub_u32 s{kc}, s{kc}, s{t0}")
    a(f"s_mul_i32 s{baseA}, s{rb}, {128*1280}")
    a(f"s_mul_i32 s{baseB}, s{g}, 160")
    a(f"s_mul_i32 s{t0}, s{cbk}, 1376")
    a(f"s_add_u32 s{baseB}, s{baseB}, s{t0}")
    a(f"s_mul_i32 s{m0A}, s{wv}, {4*1040}")
    a(f"s_lshl_b32 s{m0B}, s{wv}, 12")
    a(f"s_add_u32 s{m0B}, s{m0B}, {BOFF}")
    a(f"v_mov_b32 v{vz}, 0")
    a(f"s_waitcnt lgkmcnt(0)")
    srd(a, SX, 4, S*D*2)
    srd(a, SQ, 6, D*3*D*2)
    l0 = a.label("ntag")
    a(f"s_or_b32 s{t0}, s2, s{wv}")
    a(f"s_cbranch_scc1 {l0}")
    a(f"s_lshl_b32 s{nonce}, s{nonce}, 5")
    a(f"s_or_b32 s{nonce}, s{nonce}, 16")
    a(f"v_mov_b32 v{tmp}, s{nonce}")
    a(f"s_mov_b64 exec, 1")
    a(f"global_store_dword v{vz}, v{tmp}, s[48:49] sc0 sc1")
    a(f"s_mov_b64 exec, -1")
    a(f"{l0}:")
    dmaA = lambda: [f"buffer_load_dwordx4 v{vA[i]}, s[{SX}:{SX+3}], s{soffA} offen offset:{1040*i} lds" for i in range(4)]
    dmaB = lambda: [f"buffer_load_dwordx4 v{vB[i]}, s[{SQ}:{SQ+3}], s{soffB} offen offset:{1024*i} lds" for i in range(4)]
    def offs():
        return [f"s_lshl_b32 s{soffA}, s{kc}, 7", f"s_add_u32 s{soffA}, s{soffA}, s{baseA}",
                f"s_mul_i32 s{soffB}, s{kc}, {64*3840}", f"s_add_u32 s{soffB}, s{soffB}, s{baseB}",
                f"s_add_u32 s{kc}, s{kc}, 1", f"s_cmp_eq_u32 s{kc}, 10", f"s_cselect_b32 s{kc}, 0, s{kc}"]
    def chunk(cc):
        a(f"s_add_u32 m0, s{m0A}, {cc*STAGE}")
        for x in offs(): a(x)
        for x in dmaA(): a(x)
        a(f"s_add_u32 m0, s{m0B}, {cc*STAGE}")
        a("s_nop 0")
        for x in dmaB(): a(x)
    chunk(0)
    srd(a, SW, WS, WS_SPAN)
    a(f"s_lshl_b32 s{rpj}, s{m}, 2")
    a(f"s_add_u32 s{rpj}, s{rpj}, s{wv}")
    a(f"s_lshl_b32 s{so0}, s{rpj}, 3")
    a(f"s_add_u32 s{so0}, s{so0}, s{g}")
    a(f"s_add_u32 s{so1}, s{so0}, 480")
    a(f"s_sub_u32 s{t0}, s{rpj}, 60")
    a(f"s_mul_i32 s{t1}, s{t0}, 205")
    a(f"s_lshr_b32 s{t1}, s{t1}, 10")
    a(f"s_mul_i32 s{t1}, s{t1}, 70")
    a(f"s_lshl_b32 s{t0}, s{t0}, 1")
    a(f"s_add_u32 s{t1}, s{t1}, s{t0}")
    a(f"s_mul_i32 s{t0}, s{g}, 10")
    a(f"s_add_u32 s{t1}, s{t1}, s{t0}")
    a(f"s_add_u32 s{t1}, s{t1}, 960")
    a(f"s_add_u32 s{t2}, s{t1}, 1")
    a(f"s_cmp_ge_u32 s{rpj}, 60")
    a(f"s_cselect_b32 s{so0}, s{t1}, s{so0}")
    a(f"s_cselect_b32 s{so1}, s{t2}, s{so1}")
    tv = (tmp, tmp2, tmp3, tmp4)
    rp.rp_addr(a, so0, 50, R0, 94, 95, 96, spin, pure, (t0,t1,t2,t3), lane, tv, 140, 141, RJ[0])
    chunk(1)
    rp.rp_addr(a, so1, 50, R1, 97, 98, 99, spin, pure, (t0,t1,t2,t3), lane, tv, 142, 143, RJ[1])
    a(f"s_cmp_ge_u32 s{rpj}, 60")
    a(f"s_cselect_b64 vcc, 0, -1")
    a(f"v_add_u32 v{tmp}, 64, v{RJ[0]}")
    a(f"s_cmp_ge_u32 s{so0}, 1640")
    a(f"s_cselect_b32 s{R0+2}, 0, s{R0+2}")
    a(f"s_cselect_b32 s{R1+2}, 0, s{R1+2}")
    a(f"s_cselect_b32 s{t0}, {WS_SPAN}, 0")
    a(f"v_cndmask_b32 v{RJ[1]}, v{RJ[1]}, v{tmp}, vcc")
    a(f"v_or_b32 v{RJ[0]}, s{t0}, v{RJ[0]}")
    a(f"v_or_b32 v{RJ[1]}, s{t0}, v{RJ[1]}")
    a(f"v_min_u32 v{tmp}, 9, v{lane}")
    a(f"v_add_u32 v{tmp2}, {4*163840//128 - 4}, v{tmp}")
    a(f"v_and_b32 v{tmp3}, 1, v{lane}")
    a(f"v_mul_u32_u24 v{tmp3}, 7, v{tmp3}")
    a(f"v_mul_u32_u24 v{tmp}, 10, v{tmp}")
    a(f"v_sub_u32 v{tmp}, v{tmp}, v{tmp3}")
    a(f"v_cmp_lt_u32 vcc, 3, v{lane}")
    a(f"v_mov_b32 v{tmp3}, 768")
    a(f"v_mov_b32 v{vst}, 128")
    a(f"v_cndmask_b32 v{tmp}, v{tmp}, v{tmp2}, vcc")
    a(f"v_cndmask_b32 v{vst}, v{vst}, v{tmp3}, vcc")
    a(f"v_lshlrev_b32 v{vpt}, 7, v{tmp}")
    a(f"s_mul_i32 s{t0}, s{rpj}, 5120")
    a(f"s_mul_i32 s{t1}, s{g}, {GS}")
    a(f"s_add_u32 s{pto}, s{t0}, s{t1}")
    if os.environ.get('QPT', '0') == '0':
        a(f"v_min_u32 v{tmp}, 31, v{lane}")
        a(f"v_cmp_lt_u32 vcc, 9, v{lane}")
        a(f"v_add_u32 v{tmp2}, 10, v{tmp}")
        a(f"v_cndmask_b32 v{tmp2}, v{tmp}, v{tmp2}, vcc")
        a(f"v_lshl_add_u32 v{vpt}, v{tmp2}, 7, s{pto}")
        a(f"s_add_u32 s{t0}, s{wv}, 4")
        a(f"s_mul_i32 s{t0}, s{t0}, 163840")
        a(f"s_add_u32 s{t0}, s{t0}, s{t1}")
        a(f"s_lshl_b32 s{t2}, s{m}, 10")
        a(f"s_add_u32 s{t0}, s{t0}, s{t2}")
        a(f"s_sub_u32 s{t0}, s{t0}, {20*128}")
        a(f"v_lshl_add_u32 v{tmp2}, v{tmp}, 7, s{t0}")
        a(f"v_cmp_lt_u32 vcc, 19, v{lane}")
        a(f"s_lshl_b32 s{t0}, s{g}, 9")
        a(f"s_add_u32 s{t0}, s{t0}, {FL0 - 28*128}")
        a(f"v_cndmask_b32 v{vpt}, v{vpt}, v{tmp2}, vcc")
        if os.environ.get('NOQPT'): a(f"v_max_u32 v{tmp}, 28, v{tmp}")
        a(f"v_lshl_add_u32 v{tmp2}, v{tmp}, 7, s{t0}")
        a(f"v_cmp_lt_u32 vcc, 27, v{tmp}")
        a(f"v_cndmask_b32 v{vpt}, v{vpt}, v{tmp2}, vcc")
    chunk(2)
    for x in offs(): a(x)
    a(f"global_load_dword v{vn}, v{vz}, s[48:49] sc1")
    TW = int(os.environ.get('TW', '0'))
    if TW:
        l1 = a.label("ntw")
        a(f"s_cmp_lg_u32 s{wv}, 2")
        a(f"s_cbranch_scc1 {l1}")
        a(f"s_load_dwordx2 s[6:7], s[0:1], {KA_OUT}")
        a(f"v_lshlrev_b32 v{tmp}, {19 if TW == 2 else 21}, v{lane}")
        a(f"v_and_b32 v{tmp2}, 0x200000, v{tmp}")
        a(f"buffer_load_dword v3, v{tmp}, {W}, 0 offen sc1")
        for p_ in (50, 52, 54, 56): a(f"global_load_dword v3, v{vz}, s[{p_}:{p_+1}]")
        a(f"s_waitcnt lgkmcnt(0)")
        a(f"global_load_dword v3, v{tmp2}, s[6:7] sc1")
        a(f"{l1}:")
    a(f"s_mov_b32 s{dst_st}, {3*STAGE}")
    a(f"s_mov_b32 s{rd_st}, 0")
    a(f"v_and_b32 v{r}, 31, v{lane}")
    a(f"v_lshrrev_b32 v{h}, 5, v{lane}")
    a(f"s_lshl_b32 s{t1}, s{g}, 7")
    a(f"s_add_u32 s{t1}, s{t1}, {WS_FL}")
    a(f"v_lshl_add_u32 v{vid}, v{r}, 2, s{t1}")
    a(f"v_bfe_u32 v{tmp}, v{r}, 1, 3")
    a(f"v_mul_u32_u24 v{tmp}, 1040, v{tmp}")
    a(f"v_and_b32 v{tmp2}, 1, v{r}")
    a(f"v_lshl_add_u32 v{tmp}, v{tmp2}, 7, v{tmp}")
    a(f"v_lshrrev_b32 v{tmp2}, 4, v{r}")
    a(f"v_lshl_add_u32 v{tmp}, v{tmp2}, 8, v{tmp}")
    a(f"v_lshl_add_u32 v{tmp}, v{h}, 4, v{tmp}")
    a(f"s_mul_i32 s{t0}, s{wr}, {8*1040}")
    a(f"s_lshl_b32 s{t1}, s{wc}, 9")
    a(f"s_add_u32 s{t2}, s{t0}, s{t1}")
    a(f"v_add_u32 v{aBase[0]}, s{t2}, v{tmp}")
    a(f"s_xor_b32 s{t1}, s{t1}, 512")
    a(f"s_add_u32 s{t2}, s{t0}, s{t1}")
    a(f"v_add_u32 v{aBase[1]}, s{t2}, v{tmp}")
    a(f"v_bfe_u32 v{tmp}, v{lane}, 2, 2")
    a(f"v_lshl_add_u32 v{tmp2}, v{h}, 3, v{tmp}")
    a(f"v_lshlrev_b32 v{tmp2}, 8, v{tmp2}")
    a(f"v_bfe_u32 v{tmp3}, v{lane}, 4, 1")
    a(f"v_lshl_add_u32 v{tmp2}, v{tmp3}, 5, v{tmp2}")
    a(f"v_and_b32 v{tmp3}, 3, v{lane}")
    a(f"v_lshl_add_u32 v{tmp2}, v{tmp3}, 3, v{tmp2}")
    a(f"v_add_u32 v{tmp2}, {BOFF}, v{tmp2}")
    a(f"s_lshl_b32 s{t0}, s{wc}, 1")
    a(f"s_add_u32 s{t0}, s{t0}, s{wr}")
    a(f"v_xor_b32 v{tmp3}, s{t0}, v{tmp}")
    a(f"v_lshl_add_u32 v{bBase[0]}, v{tmp3}, 6, v{tmp2}")
    a(f"v_xor_b32 v{tmp3}, 1, v{tmp3}")
    a(f"v_lshl_add_u32 v{bBase[1]}, v{tmp3}, 6, v{tmp2}")
    for i in range(2):
        a(f"v_mov_b32 v{aCur[i]}, v{aBase[i]}")
        a(f"v_mov_b32 v{bCur[i]}, v{bBase[i]}")
    for i in range(10):
        a(f"v_mov_b32 v{vsq+i}, 0")
    a(f"v_lshrrev_b32 v{tmp}, 2, v{lane}")
    a(f"v_xor_b32 v{tmp}, v{tmp}, v{lane}")
    a(f"v_bfe_i32 v{tmp}, v{tmp}, 2, 1")
    a(f"v_mov_b32 v{vones}, 0x3f803f80")
    a(f"v_bfi_b32 v{vones}, v{tmp}, 0, v{vones}")
    for i in range(1, 4):
        a(f"v_mov_b32 v{vones+i}, v{vones}")
    a(f"s_mov_b32 s{himask}, 0xffff0000")
    for i in range(64):
        a(f"v_mov_b32 v{64+i}, 0")
    a(f"s_getreg_b32 s{myid}, hwreg(HW_REG_XCC_ID)")
    a(f"s_and_b32 s{myid}, s{myid}, 15")
    a(f"s_lshl_b32 s{t0}, s{rb}, 2")
    a(f"s_add_u32 s{so0}, s{t0}, s{wv}")
    a(f"s_xor_b32 s{so1}, s{so0}, 1")
    a(f"s_mul_i32 s{t1}, s{g}, {GS}")
    a(f"s_mul_i32 s{so0}, s{so0}, 2560")
    a(f"s_mul_i32 s{so1}, s{so1}, 2560")
    a(f"s_add_u32 s{so0}, s{so0}, s{t1}")
    a(f"s_add_u32 s{so1}, s{so1}, s{t1}")
    a(f"s_mov_b32 s{cnt}, 0")
    a(f"s_lshl_b32 s{t3}, s{cbk}, 1")
    a(f"s_add_u32 s{t3}, s{t3}, s{wc}")
    a(f"s_lshl_b32 s{t3}, s{t3}, 1")
    a(f"s_add_u32 s{t3}, s{t3}, s{wr}")

    def reads(step, st):
        out = []
        for i in range(2):
            out.append(f"ds_read_b128 {v(FA(st,i),4)}, v{aCur[i]} offset:{step*32}")
            for t in range(2):
                out.append(f"ds_read_b64_tr_b16 {v(FB(st,i)+2*t,2)}, v{bCur[i]} offset:{(16*step+4*t)*256}")
        return out
    def dots(st):
        out = []; o2 = []
        for k in range(4):
            u = utmp + 2*k
            out += [f"v_lshlrev_b32 v{u}, 16, v{FA(st,0)+k}", f"v_and_b32 v{u+1}, s{himask}, v{FA(st,0)+k}"]
            o2 += [f"v_fmac_f32 v{vsq}, v{u}, v{u}", f"v_fmac_f32 v{vsq+1}, v{u+1}, v{u+1}"]
        return out[:4] + o2[:2] + out[4:6] + o2[2:4] + out[6:] + o2[4:]
    join = a.label("qjoin")
    def path(md):
        for bi in range(2):
            if bi: a(f"s_xor_b32 s{t3}, s{t3}, 1")
            if md[bi] == 'q':
                a(f"s_lshl_b32 s{t0}, s{t3}, 3")
                a(f"s_mov_b32 s{t2}, {163840-1280}")
                a(f"v_lshlrev_b32 v{tmp3}, 3, v{r}")
                for g4 in range(4):
                    e = eaddr[bi*4+g4]
                    a(f"v_add3_u32 v{tmp}, s{t0}, v{h}, {2*g4}")
                    a(f"v_mul_u32_u24 v{tmp2}, 205, v{tmp}")
                    a(f"v_lshrrev_b32 v{tmp2}, 10, v{tmp2}")
                    a(f"v_lshl_add_u32 v{e}, v{tmp}, 8, v{tmp3}")
                    a(f"v_mad_u32_u24 v{e}, v{tmp2}, s{t2}, v{e}")
            else:
                e = eaddr[bi*4]
                a(f"s_lshl_b32 s{t0}, s{t3}, 5")
                a(f"s_sub_u32 s{t0}, s{t0}, 160")
                a(f"s_mov_b32 s{t2}, {163840-320}")
                a(f"v_mul_u32_u24 v{tmp3}, 320, v{h}")
                a(f"v_add_u32 v{tmp3}, {4*163840+1280}, v{tmp3}")
                a(f"v_add_u32 v{tmp}, s{t0}, v{r}")
                a(f"v_mul_u32_u24 v{tmp2}, 205, v{tmp}")
                a(f"v_lshrrev_b32 v{tmp2}, 12, v{tmp2}")
                a(f"v_lshl_add_u32 v{e}, v{tmp}, 4, v{tmp3}")
                a(f"v_mad_u32_u24 v{e}, v{tmp2}, s{t2}, v{e}")
                a(f"v_lshrrev_b32 v{tmp2}, 2, v{tmp2}")
                a(f"v_lshl_or_b32 v{e}, v{tmp2}, 25, v{e}")
        lp = a.label("qloop"); lp2 = a.label("qloop"); hook = a.label("qhook"); hb = a.label("qhb"); hc = a.label("qhc")
        a(f"s_waitcnt vmcnt(17)")
        a(f"s_barrier")
        P.stamp(0)
        for x in reads(0, 0): a(x)
        PT = int(os.environ.get('QPT', '0'))
        def body(dma_):
            dA, dB = (dmaA(), dmaB()) if dma_ else ([None]*4, [None]*4)
            for step in range(4):
                st = step & 1
                mf = []
                for ai in range(2):
                    for bi in range(2):
                        A_, B_ = (FA(st,ai), FB(st,bi)) if md[bi] == 'v' else (FB(st,bi), FA(st,ai))
                        mf.append(f"v_mfma_f32_32x32x16_bf16 {v(ACC(ai,bi),16)}, {v(A_,4)}, {v(B_,4)}, {v(ACC(ai,bi),16)}")
                cs = f"v_mfma_f32_16x16x32_bf16 {v(vcs,4)}, {v(vones,4)}, {v(FB(st,0),4)}, {v(vcs,4)}"
                sm = f"v_mfma_f32_16x16x32_bf16 {v(vsum,4)}, {v(vones,4)}, {v(FA(st,0),4)}, {v(vsum,4)}"
                d = dots(st)
                a("s_waitcnt lgkmcnt(0)")
                if step == 0:
                    e0 = [f"s_add_u32 m0, s{m0A}, s{dst_st}"] if dma_ else []
                    e1, e2 = [dA[0]], [dA[1]]
                elif step == 1:
                    e0 = [dA[2]]; e1 = [f"buffer_load_dword v3, v{vpt}, {W}, s{pto} offen sc1", f"v_add_u32 v{vpt}, v{vst}, v{vpt}"] if dma_ and PT else []
                    e2 = [dA[3], f"s_add_u32 m0, s{m0B}, s{dst_st}", f"s_mov_b32 s{dst_st}, s{rd_st}"] if dma_ else []
                elif step == 2:
                    e0 = [dB[0], f"s_add_u32 s{rd_st}, s{rd_st}, {STAGE}", f"s_cmp_eq_u32 s{rd_st}, {4*STAGE}", f"s_cselect_b32 s{rd_st}, 0, s{rd_st}"]
                    e1 = [dB[1], f"s_add_u32 s{cnt}, s{cnt}, 1"]
                    e2 = [dB[2]] + [f"v_add_u32 v{aCur[i]}, s{rd_st}, v{aBase[i]}" for i in range(2)] + [f"v_add_u32 v{bCur[i]}, s{rd_st}, v{bBase[i]}" for i in range(2)]
                    if not dma_: e2 += [f"s_cmp_eq_u32 s{cnt}, 10"]
                if step < 3:
                    rd = reads(step+1, st^1)
                    seq = [mf[0]] + rd[:3] + d[:3] + [mf[1]] + rd[3:] + e0 + d[3:5] + [cs] + d[5:7] + [mf[2]] + e1 + d[7:12] + [mf[3]] + d[12:] + e2 + [sm]
                else:
                    rd = reads(0, st^1)
                    w2 = a.label("qw")
                    seq = [mf[0]] + ([dB[3], f"s_waitcnt vmcnt({16+2*PT})", "s_barrier"] if dma_ else [f"s_cbranch_scc1 {w2}", f"s_waitcnt vmcnt({8+PT})", "s_barrier", f"{w2}:"]) + rd[:3] + [mf[1]] + rd[3:] + d[:4] + [cs] + d[4:6] + [mf[2]] + d[6:12] + [mf[3]] + d[12:] + [sm]
                for x in seq:
                    if x: a(x)
        a(f".p2align 6")
        a(f"{lp}:")
        body(True)
        for x in offs() + [f"s_cmp_eq_u32 s{cnt}, 2", f"s_cbranch_scc1 {hook}", f"s_cmp_lt_u32 s{cnt}, 7", f"s_cbranch_scc1 {lp}"]: a(x)
        a(f"{lp2}:")
        body(False)
        for x in [f"s_cmp_lt_u32 s{cnt}, 10", f"s_cbranch_scc1 {hb}"]: a(x)
        sp = a.label("qsp"); ok = a.label("qok"); np_ = a.label("qnp")
        hk = [f"s_mov_b32 s{spin}, {c['SPIN']}",
              f"{sp}:", f"v_readfirstlane_b32 s{nonce}, v{vn}", f"s_cmp_lg_u32 s{nonce}, 0", f"s_cbranch_scc1 {ok}",
              f"global_load_dword v{vn}, v{vz}, s[48:49] sc1", f"s_sub_u32 s{spin}, s{spin}, 1", "s_waitcnt vmcnt(0)", f"s_cbranch_scc0 {sp}",
              f"{ok}:", f"s_or_b32 s{myid}, s{myid}, s{nonce}", f"s_lshl_b32 s{t1}, s{g}, 7", f"s_add_u32 s{t1}, s{t1}, {WS_FL}",
              f"s_cmp_lg_u32 s{wv}, 0", f"s_cbranch_scc1 {lp}",
              f"s_lshl_b32 s{t0}, s{m}, 2", f"s_add_u32 s{t0}, s{t0}, s{t1}", f"v_mov_b32 v{vn}, s{myid}", "s_mov_b64 exec, 1",
              f"buffer_store_dword v{vn}, v{vz}, {W}, s{t0} offen sc0 sc1", "s_mov_b64 exec, -1", f"s_branch {lp}",
              ]
        rl = rp.rp_loads(R0, 94, 95, 96, 140, 141, RL[0]) + rp.rp_loads(R1, 97, 98, 99, 142, 143, RL[1])
        if not PT: rl = [f"buffer_load_dword v3, v{vpt}, {W}, 0 offen sc1"] + rl
        n1 = 7 + PT
        hk += [f"{hb}:", f"s_cmp_eq_u32 s{cnt}, 9", f"s_cbranch_scc1 {hc}", f"buffer_load_dword v{vn}, v{vid}, {W}, 0 offen sc1"] + rl[:n1] + [f"s_branch {lp2}", f"{hc}:"] + rl[n1:]
        b = Asm(); b.uid = a.uid + 1000; a.uid += 2000
        if not os.environ.get('NOCP'):
            b(f"s_sub_u32 s{t0}, 127, s{rpj}")
            code_prefetch(b, "L_att_begin", "L_mk_end", t0, 50, t1, lane, 2, True)
        c['tail'].append((hook, hk + [x.strip() for x in b.lines], lp2))
        a(f"s_waitcnt vmcnt({len(rl)})")
        P.stamp(1)
        a(f"s_mov_b32 s{spin}, {c['SPIN']}")
        pl = a.label("idp"); pk = a.label("idk")
        a(f"{pl}:")
        a(f"v_xor_b32 v{tmp}, s{myid}, v{vn}")
        a(f"v_cmp_lt_u32 vcc, 15, v{tmp}")
        a(f"s_cbranch_vccz {pk}")
        a(f"buffer_load_dword v{vn}, v{vid}, {W}, 0 offen sc1")
        a(f"s_sub_u32 s{spin}, s{spin}, 1")
        a(f"s_waitcnt vmcnt(0)")
        a(f"s_cbranch_scc0 {pl}")
        a(f"{pk}:")
        a(f"v_cmp_ne_u32 vcc, 0, v{tmp}")
        a(f"v_add_f32 v{vsq}, v{vsq}, v{vsq+1}")
        a(f"v_mov_b32 v{tmp}, v{vsq}")
        a(f"s_cmp_lg_u64 vcc, 0")
        a(f"s_cselect_b32 s{pure}, 0, {0 if c['IMPURE'] else 1}")
        a(f"v_permlane32_swap_b32 v{tmp}, v{vsq}")
        a("s_nop 1")
        a(f"v_add_f32 v{vsq}, v{vsq}, v{tmp}")
        a(f"v_mul_f32 v{vsum}, {f32(1.0/D)}, v{vsum}")
        a(f"v_mul_f32 v{vsq}, {f32(1.0/D)}, v{vsq}")
        a(f"v_fma_f32 v{vsq}, -v{vsum}, v{vsum}, v{vsq}")
        a(f"v_max_f32 v{vsq}, 0, v{vsq}")
        a(f"v_add_f32 v{vsq}, {f32(EPS)}, v{vsq}")
        a(f"v_rsq_f32 v{vsq}, v{vsq}")
        a(f"v_sub_f32 v{vsum}, 0, v{vsum}")
        a(f"s_lshl_b32 s{t2}, s{wv}, 7")
        a(f"s_add_u32 s{t2}, s{t2}, {STATS}")
        a(f"v_lshl_add_u32 v{tmp}, v{r}, 2, s{t2}")
        a(f"s_lshl_b32 s{t0}, s{wc}, 8")
        a(f"s_lshl_b32 s{t1}, s{wr}, 7")
        a(f"s_add_u32 s{t0}, s{t0}, s{t1}")
        a(f"s_add_u32 s{t0}, s{t0}, {STATS+1024}")
        a(f"v_lshl_add_u32 v{tmp2}, v{r}, 2, s{t0}")
        a(f"ds_write_b32 v{tmp}, v{vsq}")
        a(f"ds_write_b32 v{tmp}, v{vsum} offset:512")
        a(f"ds_write_b32 v{tmp2}, v{vcs}")
        Rr = [134, 138]; Mr = [136, 206]; Cr = [216, 218]; RR, MM = 140, 172
        x1, x2, x3, x4, x5, x6 = 4, 5, 6, 7, 8, 9
        a(f"v_xor_b32 v{x1}, 128, v{tmp}")
        a(f"v_xor_b32 v{x2}, 128, v{tmp2}")
        a(f"v_lshl_add_u32 v{x3}, v{h}, 4, s{t0}")
        a(f"v_xor_b32 v{x4}, 128, v{x3}")
        a(f"v_lshl_add_u32 v{x5}, v{h}, 4, s{t2}")
        a(f"v_xor_b32 v{x6}, 128, v{x5}")
        a(f"s_waitcnt lgkmcnt(0)")
        a(f"s_barrier")
        if 'q' in md:
            for ai, ad in enumerate((tmp, x1)):
                a(f"ds_read_b32 v{Rr[ai]}, v{ad}")
                a(f"ds_read_b32 v{Mr[ai]}, v{ad} offset:512")
        for bi in range(2):
            if md[bi] == 'q':
                for g4 in range(4): a(f"ds_read_b128 {v(32+bi*16+g4*4,4)}, v{(x3,x4)[bi]} offset:{g4*32}")
            else:
                a(f"ds_read_b32 v{Cr[bi]}, v{(tmp2,x2)[bi]}")
        if 'v' in md:
            for ai in range(2):
                for g4 in range(4): a(f"ds_read_b128 {v(MM+ai*16+g4*4,4)}, v{(x5,x6)[ai]} offset:{512+g4*32}")
                for g4 in range(4): a(f"ds_read_b128 {v(RR+ai*16+g4*4,4)}, v{(x5,x6)[ai]} offset:{g4*32}")
        a(f"s_waitcnt lgkmcnt(0)")
        if 'q' in md:
            for ai in range(2): a(f"v_mul_f32 v{Rr[ai]}, {f32(QS2)}, v{Rr[ai]}")
        for ai in range(2):
            for bi in range(2):
                A0 = ACC(ai,bi); sof = (so0, so1)[ai]
                if md[bi] == 'q':
                    for p in range(8): a(f"v_pk_fma_f32 {v(A0+2*p,2)}, {v(32+bi*16+2*p,2)}, {v(Mr[ai],2)}, {v(A0+2*p,2)} op_sel_hi:[1,0,1]")
                    for p in range(8): a(f"v_pk_mul_f32 {v(A0+2*p,2)}, {v(A0+2*p,2)}, {v(Rr[ai],2)} op_sel_hi:[1,0]")
                else:
                    for p in range(8): a(f"v_pk_fma_f32 {v(A0+2*p,2)}, {v(MM+ai*16+2*p,2)}, {v(Cr[bi],2)}, {v(A0+2*p,2)} op_sel_hi:[1,0,1]")
                    for p in range(8): a(f"v_pk_mul_f32 {v(A0+2*p,2)}, {v(A0+2*p,2)}, {v(RR+ai*16+2*p,2)}")
                for p in range(8): a(f"v_cvt_pk_bf16_f32 v{A0+p}, v{A0+2*p}, v{A0+2*p+1}")
                if md[bi] == 'q':
                    both([f"buffer_store_dwordx2 {v(A0+2*g4,2)}, v{eaddr[bi*4+g4]}, {W}, s{sof} offen" for g4 in range(4)])
                else:
                    both([f"buffer_store_dwordx4 {v(A0+4*g2,4)}, v{eaddr[bi*4]}, {W}, s{sof} offen offset:{640*g2}" for g2 in range(2)])
    lv = a.label("pv"); lqv = a.label("pqv"); lvq = a.label("pvq")
    a(f"s_cmp_ge_u32 s{t3}, 6")
    a(f"s_cbranch_scc1 {lv}")
    a(f"s_cmp_eq_u32 s{t3}, 4")
    a(f"s_cbranch_scc1 {lqv}")
    a(f"s_cmp_eq_u32 s{t3}, 5")
    a(f"s_cbranch_scc1 {lvq}")
    path('qq'); a(f"s_branch {join}")
    a(f"{lqv}:"); path('qv'); a(f"s_branch {join}")
    a(f"{lvq}:"); path('vq'); a(f"s_branch {join}")
    a(f"{lv}:"); path('vv')
    a(f"{join}:")
    a(f"s_lshl_b32 s{t0}, s{g}, 7")
    a(f"s_add_u32 s{t0}, s{t0}, s{rpj}")
    a(f"s_lshl_b32 s{t0}, s{t0}, 2")
    a(f"s_add_u32 s{t0}, s{t0}, {FL0}")
    flag(t0, 132)
    P.stamp(2)
    dn = a.label("rdn"); jn = a.label("rjn")
    a(f"s_mov_b32 s{t0}, 0x05040100"); a(f"s_mov_b32 s{t1}, 0x07060302")
    a(f"s_cmp_ge_u32 s{rpj}, 60")
    a(f"s_cbranch_scc1 {dn}")
    f0 = rp.rp_finish(SW, t0, t1, [(RL[0],0), (RL[0],1), (RL[1],0), (RL[1],1)], RO[0], RJ[0], 0, "sc0 sc1")
    f1 = rp.rp_finish(SW, t0, t1, [(RL[0],2), (RL[0],3), (RL[1],2), (RL[1],3)], RO[1], RJ[1], 0, "sc0 sc1")
    for x in f0[:16] + f1[:16]: a(x)
    a(f"s_branch {jn}")
    a(f"{dn}:")
    for k in range(2):
        for x in rp.rp_finish(SW, t0, t1, [(RL[k],cc) for cc in range(4)], RO[k], RJ[k], 0)[:16]: a(x)
    a(f"{jn}:")
    for x in f0[16:-4] + f1[17:-4]: a(x)
    return f0[-4:] + f1[-4:]
```

```python
from asmlib import *
from layout import *
def rp_addr(a, task, pw, SR, st1, st2, st3, sX, ssh, ts, lane, tv, ra, rb_, rj):
    t0, t1, t2, t3 = ts
    tmp, tmp2, tmp3, tmp4 = tv
    lod = a.label("lod"); lwd = a.label("wd"); lperm = a.label("perm"); lld = a.label("ld")
    a(f"v_lshrrev_b32 v{tmp}, 4, v{lane}")
    a(f"v_and_b32 v{tmp2}, 15, v{lane}")
    a(f"s_cmp_ge_u32 s{task}, 960")
    a(f"s_cbranch_scc1 {lod}")
    a(f"s_cmp_ge_u32 s{task}, 480")
    a(f"s_cselect_b32 s{SR}, s{pw+4}, s{pw+2}")
    a(f"s_cselect_b32 s{SR+1}, s{pw+5}, s{pw+3}")
    a(f"s_cselect_b32 s{t3}, 32, 0")
    a(f"s_cselect_b32 s{t0}, 480, 0")
    a(f"s_sub_u32 s{t0}, s{task}, s{t0}")
    a(f"s_mul_i32 s{t1}, s{t0}, 2731")
    a(f"s_lshr_b32 s{t1}, s{t1}, 16")
    a(f"s_mul_i32 s{t2}, s{t1}, 24")
    a(f"s_sub_u32 s{t0}, s{t0}, s{t2}")
    a(f"s_mov_b32 s{SR+2}, {D*F*2}")
    a(f"s_mov_b32 s{st1}, 3072")
    a(f"s_mov_b32 s{sX}, 64")
    a(f"s_mov_b32 s{ssh}, 3")
    a(f"s_add_u32 s{t3}, s{t3}, {WS_WGU}")
    a(f"v_lshrrev_b32 v{tmp3}, 1, v{tmp2}")
    a(f"v_mul_u32_u24 v{rj}, 20480, v{tmp3}")
    a(f"v_and_b32 v{tmp3}, 1, v{tmp2}")
    a(f"v_lshl_add_u32 v{rj}, v{tmp3}, 7, v{rj}")
    a(f"s_mul_i32 s{t2}, s{t0}, {8*20480}")
    a(f"s_add_u32 s{t3}, s{t3}, s{t2}")
    a(f"s_lshl_b32 s{t2}, s{t1}, 10")
    a(f"s_add_u32 s{t3}, s{t3}, s{t2}")
    a(f"s_branch {lperm}")
    a(f"{lod}:")
    a(f"s_cmp_ge_u32 s{task}, 1440")
    a(f"s_cselect_b32 s{SR}, s{pw}, s{pw+6}")
    a(f"s_cselect_b32 s{SR+1}, s{pw+1}, s{pw+7}")
    a(f"s_cselect_b32 s{t0}, 480, 0")
    a(f"s_cselect_b32 s{t3}, 20, 48")
    a(f"s_cselect_b32 s{st2}, 0, {WS_WD-WS_WO}")
    a(f"s_sub_u32 s{t0}, s{task}, s{t0}")
    a(f"s_sub_u32 s{t0}, s{t0}, 960")
    a(f"s_mul_i32 s{SR+2}, s{t3}, {32*1280}")
    a(f"s_mul_i32 s{t1}, s{t0}, 6554")
    a(f"s_lshr_b32 s{t1}, s{t1}, 16")
    a(f"s_mul_i32 s{t2}, s{t1}, 10")
    a(f"s_sub_u32 s{t0}, s{t0}, s{t2}")
    a(f"s_mov_b32 s{st1}, 1280")
    a(f"s_mov_b32 s{sX}, 32")
    a(f"s_mov_b32 s{ssh}, 2")
    a(f"s_lshl_b32 s{t2}, s{t0}, 4")
    a(f"v_add_u32 v{tmp3}, s{t2}, v{tmp2}")
    a(f"v_mul_u32_u24 v{tmp4}, 205, v{tmp3}")
    a(f"v_lshrrev_b32 v{tmp4}, 10, v{tmp4}")
    a(f"v_mad_i32_i24 v{tmp3}, v{tmp4}, -5, v{tmp3}")
    a(f"v_lshlrev_b32 v{rj}, 10, v{tmp3}")
    a(f"v_and_b32 v{tmp3}, 3, v{tmp4}")
    a(f"v_lshl_add_u32 v{rj}, v{tmp3}, 6, v{rj}")
    a(f"v_lshrrev_b32 v{tmp4}, 2, v{tmp4}")
    a(f"s_mul_i32 s{t3}, s{t3}, 5120")
    a(f"v_mad_u32_u24 v{rj}, v{tmp4}, s{t3}, v{rj}")
    a(f"s_mul_i32 s{t3}, s{t1}, 5120")
    a(f"s_add_u32 s{t3}, s{t3}, s{st2}")
    a(f"s_add_u32 s{t3}, s{t3}, {WS_WO}")
    a(f"s_cmp_lt_u32 s{task}, 1440")
    a(f"s_cbranch_scc1 {lwd}")
    a(f"{lperm}:")
    a(f"s_lshl_b32 s{t1}, s{t1}, 2")
    a(f"v_add_u32 v{tmp3}, s{t1}, v{tmp}")
    a(f"v_mul_u32_u24 v{tmp4}, 205, v{tmp3}")
    a(f"v_lshrrev_b32 v{tmp4}, 10, v{tmp4}")
    a(f"v_mad_i32_i24 v{tmp3}, v{tmp4}, -5, v{tmp3}")
    a(f"v_mul_u32_u24 v{ra}, 40, v{tmp4}")
    a(f"v_lshrrev_b32 v{tmp4}, 1, v{tmp3}")
    a(f"v_mad_u32_u24 v{ra}, v{tmp4}, 20, v{ra}")
    a(f"v_and_b32 v{tmp4}, 1, v{tmp3}")
    a(f"v_lshl_add_u32 v{ra}, v{tmp4}, s{ssh}, v{ra}")
    a(f"v_lshrrev_b32 v{tmp4}, 2, v{tmp3}")
    a(f"v_mul_u32_u24 v{tmp3}, 24, v{tmp4}")
    a(f"v_sub_u32 v{ra}, v{ra}, v{tmp3}")
    a(f"s_lshl_b32 s{t1}, 1, s{ssh}")
    a(f"s_add_u32 s{t2}, s{t1}, 8")
    a(f"s_sub_u32 s{t1}, 12, s{t1}")
    a(f"v_mad_u32_u24 v{rb_}, v{tmp4}, s{t2}, v{ra}")
    a(f"v_add_u32 v{rb_}, s{t1}, v{rb_}")
    a(f"s_branch {lld}")
    a(f"{lwd}:")
    a(f"s_lshl_b32 s{t1}, s{t1}, 5")
    a(f"v_lshl_add_u32 v{ra}, v{tmp}, 3, s{t1}")
    a(f"v_add_u32 v{rb_}, 4, v{ra}")
    a(f"{lld}:")
    a(f"s_mov_b32 s{SR+3}, 0x20000")
    a(f"s_lshl_b32 s{t0}, s{t0}, 7")
    a(f"v_lshl_add_u32 v{tmp2}, v{tmp2}, 3, s{t0}")
    a(f"v_mad_u32_u24 v{ra}, v{ra}, s{st1}, v{tmp2}")
    a(f"v_mad_u32_u24 v{rb_}, v{rb_}, s{st1}, v{tmp2}")
    a(f"v_lshl_add_u32 v{rj}, v{tmp}, 4, v{rj}")
    a(f"v_add_u32 v{rj}, s{t3}, v{rj}")
    a(f"s_lshl_b32 s{st2}, s{st1}, 1")
    a(f"s_add_u32 s{st3}, s{st2}, s{st1}")

def rp_loads(SR, st1, st2, st3, ra, rb_, RL, fl=""):
    return [f"buffer_load_dwordx2 {v(RL+2*r,2)}, v{ra if r < 4 else rb_}, s[{SR}:{SR+3}], {['0', f's{st1}', f's{st2}', f's{st3}'][r & 3]} offen {fl}" for r in range(8)]
def rp_finish(SW, p0, p1, src, RO, rj, off, fl=""):
    out = []
    for c, (RL, col) in enumerate(src):
        out += [f"v_perm_b32 v{RO+4*c+q}, v{RL+4*q+2+(col>>1)}, v{RL+4*q+(col>>1)}, s{p0 if col%2==0 else p1}" for q in range(4)]
    out.append("s_nop 1")
    for q in range(4):
        out += [f"v_permlane16_swap_b32 v{RO+q}, v{RO+4+q}", f"v_permlane16_swap_b32 v{RO+8+q}, v{RO+12+q}"]
    out.append("s_nop 1")
    for q in range(4):
        out += [f"v_permlane32_swap_b32 v{RO+q}, v{RO+8+q}", f"v_permlane32_swap_b32 v{RO+4+q}, v{RO+12+q}"]
    out += [f"buffer_store_dwordx4 {v(RO+4*k,4)}, v{rj}, s[{SW}:{SW+3}], 0 offen offset:{256*k+off} {fl}" for k in range(4)]
    return out
```

```python
class Asm:
    def __init__(self):
        self.lines = []
        self.uid = 0
    def __call__(self, s):
        for l in s.split("\n"):
            l = l.strip()
            if not l: continue
            if l.endswith(":") or l.startswith("."):
                self.lines.append(l)
            else:
                self.lines.append("  " + l)
    def label(self, base):
        self.uid += 1
        return f"L_{base}_{self.uid}"
    def text(self):
        return "\n".join(self.lines) + "\n"

def v(i, n=1):
    return f"v{i}" if n == 1 else f"v[{i}:{i+n-1}]"
def s(i, n=1):
    return f"s{i}" if n == 1 else f"s[{i}:{i+n-1}]"

def kernel_begin(a, name, align=8):
    a(f".text\n.globl {name}\n.p2align {align}\n.type {name},@function\n{name}:")

def kernel_desc(a, name, nvgpr, nsgpr=96, accum=None):
    if accum is None:
        accum = min(256, (nvgpr + 3) // 4 * 4)
    a(f""".section .rodata,"a"
.p2align 6
.amdhsa_kernel {name}
.amdhsa_next_free_vgpr {nvgpr}
.amdhsa_next_free_sgpr {nsgpr}
.amdhsa_accum_offset {accum}
.amdhsa_group_segment_fixed_size 0
.amdhsa_kernarg_size 80
.amdhsa_user_sgpr_count 2
.amdhsa_user_sgpr_kernarg_segment_ptr 1
.amdhsa_system_sgpr_workgroup_id_x 1
.end_amdhsa_kernel""")

def srd(a, d, base, nbytes, off=0):
    if off:
        a(f"s_add_u32 s{d}, s{base}, {off}")
        a(f"s_addc_u32 s{d+1}, s{base+1}, 0")
    else:
        a(f"s_mov_b32 s{d}, s{base}")
        a(f"s_mov_b32 s{d+1}, s{base+1}")
    a(f"s_mov_b32 s{d+2}, {nbytes}")
    a(f"s_mov_b32 s{d+3}, 0x20000")

import struct
def f32(x):
    return "0x%08x" % struct.unpack("<I", struct.pack("<f", x))[0]

def interleave(main, fill):
    out = []
    n, m = len(main), len(fill)
    k = 0
    for i, x in enumerate(main):
        out.append(x)
        want = (i + 1) * m // n
        while k < want:
            out.append(fill[k]); k += 1
    return out

import os
PROF = int(os.environ.get("PROF", "0"))
WS_PROF = 0x3000000
class Prof:
    def __init__(self, a, kid, base=64, vtmp=250):
        self.a, self.kid, self.base, self.n, self.vtmp = a, kid, base, 0, vtmp
    def start(self):
        if not PROF: return
        self.a(f"s_memrealtime s[{self.base}:{self.base+1}]")
        self.a(f"s_memtime s[{self.base+2}:{self.base+3}]")
        self.n = 2
    def stamp(self, idx):
        if not PROF: return
        if isinstance(idx, str):
            mp = dict(x.split('=') for x in os.environ.get('ST', '').split(',') if x)
            if idx not in mp: return
            idx = int(mp[idx])
        elif str(idx) in [x.split('=')[1] for x in os.environ.get('ST', '').split(',') if x]: return
        b = self.base + 4 + 2*idx
        self.a(f"s_memtime s[{b}:{b+1}]")
        self.a("s_waitcnt lgkmcnt(0)")
    def flush(self, nst, wsreg, wavereg=None):
        if not PROF: return
        a = self.a; b = self.base; t = self.vtmp
        e = b + 4 + 2*nst
        a("s_waitcnt vmcnt(0)")
        a(f"s_memtime s[{e}:{e+1}]")
        a(f"s_memrealtime s[{e+2}:{e+3}]")
        a("s_waitcnt lgkmcnt(0)")
        a(f"s_mov_b64 exec, -1")
        if PROF == 2:
            sk = a.label("nodbg")
            a(f"s_lshl_b32 s{e+4}, s2, 2")
            a(f"s_add_u32 s{e+4}, s{e+4}, s{wavereg}")
            a(f"s_cmp_lg_u32 s{e+4}, {int(os.environ.get('DW', '309'))}")
            a(f"s_cbranch_scc1 {sk}")
            a(f"s_load_dwordx2 s[{e+4}:{e+5}], s[0:1], 64")
            a(f"v_mov_b32 v{t}, 0")
            a(f"s_mov_b64 exec, 1")
            a("s_waitcnt lgkmcnt(0)")
            for i in range(nst + 1):
                a(f"s_sub_u32 s{e+6}, s{b+4+2*i}, s{b+2}")
                a(f"v_mov_b32 v{t+1}, s{e+6}")
                a(f"global_store_dword v{t}, v{t+1}, s[{e+4}:{e+5}] offset:{4*i+4}")
            a(f"s_sub_u32 s{e+6}, s{e+2}, s{b}")
            a(f"v_mov_b32 v{t+1}, s{e+6}")
            a(f"global_store_dword v{t}, v{t+1}, s[{e+4}:{e+5}] offset:{4*nst+8}")
            a(f"{sk}:")
            return
        a(f"s_lshl_b32 s{e+4}, s2, 3")
        a(f"s_add_u32 s{e+4}, s{e+4}, s{wavereg}")
        a(f"s_lshl_b32 s{e+4}, s{e+4}, 7")
        a(f"s_add_u32 s{e+4}, s{e+4}, {WS_PROF + self.kid*0x40000}")
        a(f"s_add_u32 s{e+4}, s{e+4}, s{wsreg}")
        a(f"s_addc_u32 s{e+5}, s{wsreg+1}, 0")
        a(f"v_mov_b32 v{t}, 0")
        for i in range(nst + 4):
            a(f"v_mov_b32 v{t+1}, s{b+2*i}")
            a(f"global_store_dword v{t}, v{t+1}, s[{e+4}:{e+5}] offset:{4*i}")
        a(f"s_getreg_b32 s{e+6}, hwreg(HW_REG_XCC_ID)")
        a(f"v_mov_b32 v{t+1}, s{e+6}")
        a(f"global_store_dword v{t}, v{t+1}, s[{e+4}:{e+5}] offset:124")
        a("s_waitcnt vmcnt(0)")

def code_prefetch(a, l0, l1, idx, sp, st, lane, vt, back=False):
    here = a.label("pc"); skip = a.label("npf")
    a(f"s_lshl_b32 s{st}, s{idx}, 13")
    a(f"s_cmp_ge_u32 s{st}, {l1}-{l0}")
    a(f"s_cbranch_scc1 {skip}")
    a(f"s_getpc_b64 s[{sp}:{sp+1}]")
    a(f"{here}:")
    if back:
        a(f"s_sub_u32 s{sp}, s{sp}, {here}-{l0}")
        a(f"s_subb_u32 s{sp+1}, s{sp+1}, 0")
    else:
        a(f"s_add_u32 s{sp}, s{sp}, {l0}-{here}")
        a(f"s_addc_u32 s{sp+1}, s{sp+1}, 0")
    a(f"v_lshl_add_u32 v{vt}, v{lane}, 7, s{st}")
    a(f"v_min_u32 v{vt}, {l1}-{l0}-4, v{vt}")
    a(f"global_load_dword v{vt}, v{vt}, s[{sp}:{sp+1}]")
    a(f"{skip}:")
```

```python
from asmlib import *
from layout import *

def ag(i, n=1):
    return f"a{i}" if n == 1 else f"a[{i}:{i+n-1}]"

UPTO = int(os.environ.get('UPTO', '5'))
SPIN = int(os.environ.get('SPIN', '200000'))
IMPURE = int(os.environ.get('IMPURE', '0'))
WSTART = int(os.environ.get('WSTART', '19'))

def gen_mk(a, name="mk_attn_ffn_kernel"):
    kernel_begin(a, name)
    P = Prof(a, 0, 64, 9)
    SW, SX, SOUT, SR = 8, 12, 16, 20
    WS = 24
    g, m, wv, kvo, pure, spin, myid = 26, 27, 28, 29, 30, 31, 32
    t0, t1, t2, t3 = 33, 34, 35, 36
    fbk = 37
    hd, qb, ob = 50, 51, 52
    vmask = 38
    st1, st2, task = 40, 41, 42
    sX = [45, 46]
    wo_, wgu_ = 43, 58
    kvb = 59
    so = [60, 61, 62, 63]
    lane, voff = 1, 2
    kb = [3, 4, 5]; vb = [6, 7, 8]
    tmp, tmp2, tmp3, tmp4 = 9, 10, 11, 12
    Q = [14, 20]; K = [26, 32]; V = [38, 46]; PP = 54
    NEG = [64, 80]; S_ = [96, 112]; O = [128, 144]
    RO = [160, 176]; RJ = [204, 205]; nonce, rpj = 100, 101
    RES = 244
    raddr = 13
    WOF = lambda n: (ag(240 + 4*n, 4) if n < 4 else v(160 + 4*(n-4), 4))
    done = a.label("mkdone")
    def poll(off_sreg, nl, vt, lanes_ready=False):
        lp = a.label("poll"); out = a.label("pout")
        a(f"v_and_b32 v{vt+1}, {nl-1}, v{lane}")
        a(f"s_mov_b32 s{spin}, {SPIN}")
        a(f"v_lshlrev_b32 v{vt+1}, 2, v{vt+1}")
        a(f"{lp}:")
        a(f"buffer_load_dword v{vt}, v{vt+1}, s[{SW}:{SW+3}], s{off_sreg} offen sc1")
        a(f"s_sub_u32 s{spin}, s{spin}, 1")
        a(f"s_waitcnt vmcnt(0)")
        a(f"v_cmp_ne_u32 vcc, s{nonce}, v{vt}")
        a(f"s_cbranch_scc1 {out}")
        a(f"s_cbranch_vccnz {lp}")
        a(f"{out}:")
    def both(stores, wt=False):
        if wt:
            for x in stores: a(x + " sc0 sc1" if x.startswith("buffer_store") else x)
            return
        l0 = a.label("wt"); l1 = a.label("wj")
        a(f"s_cmp_eq_u32 s{pure}, 0")
        a(f"s_cbranch_scc1 {l0}")
        for x in stores: a(x)
        a(f"{l1}:")
        tail.append((l0, [x + " sc0 sc1" if x.startswith("buffer_store") else x for x in stores], l1))
    def flag(off_sreg, vt, wt=False):
        a(f"v_mov_b32 v{vt}, s{nonce}")
        a(f"v_mov_b32 v{vt+1}, 0")
        a(f"s_mov_b64 exec, 1")
        a(f"s_waitcnt vmcnt(0)")
        both([f"buffer_store_dword v{vt}, v{vt+1}, s[{SW}:{SW+3}], s{off_sreg} offen"], wt)
        a(f"s_mov_b64 exec, -1")
    tail = []

    def pollw(off_sreg, n, vt, va, first=True):
        lp = a.label("poll"); out = a.label("pout"); ck = a.label("pck")
        ld = f"buffer_load_dwordx{n} {v(vt,n)}, v{va}, s[{SW}:{SW+3}], s{off_sreg} offen sc1"
        chk = [f"v_xor_b32 v{vt+i}, s{nonce}, v{vt+i}" for i in range(n)] + (
              [f"v_or3_b32 v{vt}, v{vt}, v{vt+1}, v{vt+2}", f"v_or_b32 v{vt}, v{vt}, v{vt+3}"] if n == 4 else [f"v_or_b32 v{vt}, v{vt}, v{vt+1}"]) + [
              f"v_cmp_ne_u32 vcc, 0, v{vt}"]
        loop = [f"s_mov_b32 s{spin}, {SPIN}", f"{lp}:", ld, f"s_sub_u32 s{spin}, s{spin}, 1", "s_waitcnt vmcnt(0)"] + chk + [f"s_cbranch_scc1 {out}", f"s_cbranch_vccnz {lp}"]
        if first: return loop + [f"{out}:"]
        tail.append((ck, loop, out))
        return [ld], chk + [f"s_cbranch_vccnz {ck}", f"{out}:"]
    P.start()
    a(f"s_load_dwordx4 s[4:7], s[0:1], {KA_X}")
    a(f"s_load_dwordx2 s[48:49], s[0:1], {KA_DBG}")
    a(f"s_load_dwordx2 s[50:51], s[0:1], {KA_WO}")
    a(f"s_load_dwordx4 s[52:55], s[0:1], {KA_WG}")
    a(f"s_load_dwordx2 s[56:57], s[0:1], {KA_WD}")
    a(f"s_memrealtime s[{nonce}:{nonce+1}]")
    a(f"s_load_dwordx2 s[{WS}:{WS+1}], s[0:1], {KA_WS}")
    a(f"s_cmp_ge_u32 s2, 256")
    a(f"s_cbranch_scc1 {done}")
    a(f"v_lshrrev_b32 v{tmp}, 6, v0")
    a(f"v_and_b32 v{lane}, 63, v0")
    a(f"s_and_b32 s{g}, s2, 7")
    a(f"v_readfirstlane_b32 s{wv}, v{tmp}")
    a(f"s_lshr_b32 s{m}, s2, 3")
    import qkv
    rloads, rperm, rstores = qkv.qkv(dict(locals(), SPIN=SPIN, IMPURE=IMPURE))
    a(f"s_load_dwordx2 s[6:7], s[0:1], {KA_OUT}")
    a("L_att_begin:")
    a(f"v_lshlrev_b32 v{voff}, 4, v{lane}")
    a(f"v_and_b32 v{tmp}, 31, v{lane}")
    a(f"v_lshrrev_b32 v{tmp2}, 5, v{lane}")
    a(f"v_lshlrev_b32 v{kb[0]}, 3, v{tmp}")
    a(f"v_lshl_add_u32 v{kb[0]}, v{tmp2}, 9, v{kb[0]}")
    a(f"s_lshl_b32 s{hd}, s{g}, 2")
    a(f"s_and_b32 s{t0}, s{m}, 3")
    a(f"s_add_u32 s{hd}, s{hd}, s{t0}")
    a(f"s_lshr_b32 s{qb}, s{m}, 2")
    a(f"s_lshl_b32 s{t0}, s{qb}, 2")
    a(f"s_add_u32 s{t0}, s{t0}, s{wv}")
    a(f"s_mul_i32 s{t0}, s{t0}, 5120")
    a(f"s_mul_i32 s{t2}, s{g}, {GS}")
    a(f"s_add_u32 s{t0}, s{t0}, s{t2}")
    a(f"s_bfe_u32 s{t1}, s{m}, 0x10001")
    a(f"s_mul_i32 s{t1}, s{t1}, 163840")
    a(f"s_add_u32 s{ob}, s{t0}, s{t1}")
    a(f"s_and_b32 s{t1}, s{m}, 1")
    a(f"s_mul_i32 s{t1}, s{t1}, 1280")
    a(f"s_add_u32 s{task}, s{ob}, s{t1}")
    a(f"s_and_b32 s{t1}, s{m}, 3")
    a(f"s_mul_i32 s{t1}, s{t1}, 163840")
    a(f"s_add_u32 s{t2}, s{t2}, s{t1}")
    a(f"s_lshl_b32 s{kvo}, s{wv}, 12")
    a(f"s_mov_b32 m0, s{kvo}")
    a(f"s_add_u32 s{t2}, s{t2}, {KVO}")
    for x in range(2):
        a(f"v_mov_b32 v{Q[x]+4}, 0")
        a(f"v_mov_b32 v{Q[x]+5}, 0")
    a(f"s_waitcnt lgkmcnt(0)")
    srd(a, SOUT, 6, S*D*2)
    a(f"s_add_u32 s{kvb}, s{t2}, s{kvo}")
    ndma = [0]
    def dma():
        j = ndma[0]; ndma[0] += 1
        out = [f"buffer_load_dwordx4 v{voff}, s[{SW}:{SW+3}], s{kvb} offen offset:{1024*(j&3)} sc1 lds"]
        if j & 3 == 0 and j:
            out = [f"s_add_u32 m0, m0, 16384", f"s_add_u32 s{kvb}, s{kvb}, 16384"] + out
        return out
    srd(a, SX, 4, S*D*2)
    a(f"v_mul_u32_u24 v{vb[0]}, 320, v{tmp2}")
    a(f"v_lshl_add_u32 v{vb[0]}, v{tmp}, 4, v{vb[0]}")
    a(f"v_add_u32 v{vb[0]}, 1280, v{vb[0]}")
    for i in (1, 2):
        a(f"v_add_u32 v{kb[i]}, {61440*i}, v{kb[0]}")
        a(f"v_add_u32 v{vb[i]}, {61440*i}, v{vb[0]}")
    a(f"s_mov_b32 s{vmask}, 0xfffff")
    a(f"s_mov_b32 s{vmask+1}, 0xfffff")
    for i in range(8):
        a(f"v_mov_b32 v{V[0]+i}, 0x3f803f80")
        a(f"v_mov_b32 v{V[1]+i}, 0x3f803f80")
    a(f"s_mov_b32 s{fbk}, 0")
    a(f"s_lshr_b32 s{t0}, s{m}, 2")
    a(f"s_mul_i32 s{wo_}, s{t0}, {20*5120}")
    a(f"s_mul_i32 s{t1}, s{wv}, {5*5120}")
    a(f"s_add_u32 s{wo_}, s{wo_}, s{t1}")
    a(f"s_add_u32 s{wo_}, s{wo_}, {WS_WO}")
    a(f"s_lshl_b32 s{t1}, s{t0}, 1")
    a(f"s_and_b32 s{t2}, s{m}, 1")
    a(f"s_add_u32 s{t1}, s{t1}, s{t2}")
    a(f"s_lshl_b32 s{t1}, s{t1}, 2")
    a(f"s_add_u32 s{t1}, s{t1}, s{wv}")
    a(f"s_mul_i32 s{wgu_}, s{t1}, {3*20480}")
    a(f"s_add_u32 s{wgu_}, s{wgu_}, {WS_WGU}")
    a(f"s_lshl_b32 s{t1}, s{g}, 2")
    a(f"s_and_b32 s{t2}, s{m}, 3")
    a(f"s_add_u32 s{t1}, s{t1}, s{t2}")
    a(f"s_lshl_b32 s{t1}, s{t1}, 2")
    a(f"s_add_u32 s{t1}, s{t1}, s{wv}")
    a(f"s_mul_i32 s{t1}, s{t1}, 20480")
    a(f"s_mul_i32 s{t0}, s{t0}, 160")
    a(f"s_add_u32 s{t0}, s{t0}, s{t1}")
    a(f"v_and_b32 v{tmp}, 15, v{lane}")
    a(f"v_lshrrev_b32 v{tmp2}, 4, v{lane}")
    a(f"v_mul_u32_u24 v{raddr}, 1280, v{tmp}")
    a(f"v_mad_u32_u24 v{raddr}, v{tmp2}, 40, v{raddr}")
    a(f"v_add_u32 v{raddr}, s{t0}, v{raddr}")

    PT, pt20, pt16 = 254, 62, 63
    a(f"s_lshl_b32 s{t0}, s{g}, 5")
    a(f"s_add_u32 s{t0}, s{t0}, s{m}")
    a(f"s_lshl_b32 s{t0}, s{t0}, 2")
    a(f"s_add_u32 s{t0}, s{t0}, s{wv}")
    a(f"s_mul_i32 s{so[0]}, s{t0}, 2560")
    a(f"s_mul_i32 s{so[1]}, s{rpj}, 6144")
    a(f"s_mul_i32 s{t1}, s{g}, {GS}")
    a(f"s_add_u32 s{so[1]}, s{so[1]}, s{t1}")
    a(f"s_add_u32 s{so[1]}, s{so[1]}, {KVO}")
    a(f"v_min_u32 v{pt20}, 19, v{lane}")
    a(f"v_lshlrev_b32 v{pt20}, 7, v{pt20}")
    a(f"v_lshlrev_b32 v{pt16}, 7, v{tmp}")
    a(f"s_lshl_b32 s{so[3]}, s{t0}, 7")
    a(f"s_mov_b32 s{so[2]}, {WS_ST}")

    def ldsb(bases, off):
        i = off // 61440
        return bases[i], off - 61440*i
    def readK(t, Kb, bases=kb):
        b, off = ldsb(bases, t*2560)
        return [f"ds_read_b64 {v(Kb,2)}, v{b} offset:{off}",
                f"ds_read_b64 {v(Kb+2,2)}, v{b} offset:{off+256}",
                f"ds_read_b64 {v(Kb+4,2)}, v{b} offset:{off+1024}"]
    def readV(t, V0, bases=vb):
        b, off = ldsb(bases, t*2560)
        return [f"s_mov_b64 exec, s[{vmask}:{vmask+1}]",
                f"ds_read_b128 {v(V0,4)}, v{b} offset:{off}",
                f"ds_read_b128 {v(V0+4,4)}, v{b} offset:{off+640}",
                f"s_mov_b64 exec, -1"]
    def qk1(x, Kb, C): return f"v_mfma_f32_32x32x16_bf16 {v(S_[x],16)}, {v(Kb,4)}, {v(Q[x],4)}, {C}"
    def qk2(x, Kb): return f"v_mfma_f32_32x32x8_bf16 {v(S_[x],16)}, {v(Kb+4,2)}, {v(Q[x]+4,2)}, {v(S_[x],16)}"
    def max16(Sr, d):
        for i in range(0, 16, 2):
            a(f"v_max3_f32 v{d}, v{Sr+i}, v{Sr+i+1}, v{d}")
    pv = lambda x, Vb, hh: f"v_mfma_f32_32x32x16_bf16 {v(O[x],16)}, {v(Vb+4*hh,4)}, {v(PP+4*hh,4)}, {v(O[x],16)}"
    def prime():
        for x, d in enumerate((tmp, tmp2)):
            a(f"v_mov_b32 v{tmp3+x}, v{d}")
        a("s_nop 1")
        for x, d in enumerate((tmp, tmp2)):
            a(f"v_permlane32_swap_b32 v{tmp3+x}, v{d}")
        a("s_nop 1")
        for x, d in enumerate((tmp, tmp2)):
            a(f"v_max_f32 v{d}, v{d}, v{tmp3+x}")
        for i in range(16):
            a(f"v_sub_f32 v{NEG[0]+i}, 0, v{tmp}")
        for x in readK(1, K[1]): a(x)
        a(qk1(0, K[0], v(NEG[0],16))); a(qk2(0, K[0]))
        for x in readV(0, V[0]): a(x)
        for i in range(16):
            a(f"v_sub_f32 v{NEG[1]+i}, 0, v{tmp2}")
        for i in range(32):
            a(f"v_mov_b32 v{O[0]+i}, 0")
        for i in range(4):
            a(f"v_mov_b32 v{PP+4+i}, 0")
        a(f"s_waitcnt lgkmcnt(0)")
        a(f"v_exp_f32 v{S_[0]}, v{S_[0]}")
        a(f"v_exp_f32 v{S_[0]+1}, v{S_[0]+1}")
    def half(t, x, side, kbs=kb, vbs=vb, last=63):
        Sa, Sb = S_[x], S_[1-x]
        ex = lambda i: f"v_exp_f32 v{Sa+i}, v{Sa+i}" if i < 16 else f"v_exp_f32 v{Sb+i-16}, v{Sb+i-16}"
        cv = lambda j: f"v_cvt_pk_bf16_f32 v{PP+j}, v{Sa+2*j}, v{Sa+2*j+1}"
        Vc = V[t & 1]
        sl = [[], []]
        for i, gp in enumerate(side): sl[i % 2] += gp
        fin = x == 1 and t == last
        if x == 0:
            Kn = K[t & 1]
            rd = readV(t+1, V[(t+1) & 1], vbs) if t < last else []
            P1 = [pv(1, V[(t-1) & 1], 1)]
        else:
            Kn = K[(t+1) & 1]
            rd = readK(t+2, K[t & 1], kbs) if t + 2 <= last else []
            P1 = [pv(0, Vc, 1), "s_waitcnt lgkmcnt(0)"]
        seq = [ex(2)] + P1 + sl[1] + [cv(0), ex(3), ex(4), cv(1), ex(5), None if fin else qk1(1-x, Kn, v(NEG[1-x],16))] + rd + [
               ex(6), cv(2), ex(7), ex(8), None if fin else qk2(1-x, Kn), cv(3), ex(9), ex(10), cv(4), ex(11), ex(12), cv(5), ex(13),
               pv(x, Vc, 0)] + sl[0] + [ex(14), cv(6), ex(15)] + (["s_nop 0", cv(7), "s_nop 1"] if fin else [ex(16), cv(7), ex(17)])
        for s_ in seq:
            if s_: a(s_)
    a(f"s_lshl_b32 s{t0}, s{g}, 9")
    a(f"s_add_u32 s{t0}, s{t0}, {FL0}")
    a(f"v_lshlrev_b32 v{tmp}, 3, v{lane}")
    a(f"s_lshl_b32 s{st1}, s2, 2")
    a(f"s_add_u32 s{st1}, s{st1}, {FLR}")
    a(f"s_mov_b32 s{st2}, {FLR}")
    a(f"v_mov_b32 v192, s{nonce}")
    a(f"v_mov_b32 v193, 0")
    a(f"s_barrier")
    for x in pollw(t0, 2, 64, tmp): a(x)
    P.stamp(3)
    for x in range(2):
        a(f"buffer_load_dwordx2 {v(Q[x],2)}, v{kb[0]}, s[{SW}:{SW+3}], s{task} offen offset:{2560*x} sc1")
        a(f"buffer_load_dwordx2 {v(Q[x]+2,2)}, v{kb[0]}, s[{SW}:{SW+3}], s{task} offen offset:{2560*x+256} sc1")
    a(f"s_mov_b32 exec_hi, 0")
    for x in range(2):
        a(f"buffer_load_dwordx2 {v(Q[x]+4,2)}, v{kb[0]}, s[{SW}:{SW+3}], s{task} offen offset:{2560*x+1024} sc1")
    a(f"s_mov_b64 exec, -1")
    for j in range(16):
        for x in dma(): a(x)
    a(f"s_waitcnt vmcnt(8)")
    a(f"s_barrier")
    P.stamp(4)
    for x in readK(0, K[0]): a(x)
    a(f"v_mov_b32 v{tmp}, 0xff800000")
    a(f"v_mov_b32 v{tmp2}, 0xff800000")
    a(f"s_waitcnt lgkmcnt(0)")
    a(qk1(0, K[0], "0")); a(qk1(1, K[0], "0")); a(qk2(0, K[0])); a(qk2(1, K[0]))
    a("s_nop 7"); a("s_nop 4")
    max16(S_[0], tmp); max16(S_[1], tmp2)
    prime()
    a(f"v_and_b32 v{tmp}, 3, v{lane}")
    a(f"v_bfe_u32 v{tmp2}, v{lane}, 2, 1")
    a(f"v_lshlrev_b32 v{tmp}, 7, v{tmp}")
    a(f"v_lshl_add_u32 v{tmp}, v{tmp2}, 12, v{tmp}")
    a(f"s_lshl_b32 s{t1}, s{g}, 9")
    a(f"s_add_u32 s{t1}, s{t1}, {FL2-WS_ST}")
    a(f"v_add_u32 v{tmp4}, s{t1}, v{tmp}")
    a(f"v_writelane_b32 v{tmp4}, s{so[3]}, 63")
    Wd_ = f"s[{SW}:{SW+3}]"
    wo_l, gu_l = [], []
    for n in range(25):
        gp = [f"buffer_load_dwordx4 {WOF(n)}, v{voff}, {Wd_}, s{wo_} offen offset:{1024*(n&3)} sc1"]
        if n & 3 == 0 and n: gp.insert(0, f"s_add_u32 s{wo_}, s{wo_}, 4096")
        wo_l.append((8, gp))
    for f in range(3):
        for ks in range(20):
            gp = [f"buffer_load_dwordx4 {ag((ks*3+f)*4,4)}, v{voff}, {Wd_}, s{wgu_} offen offset:{1024*(ks&3)} sc1"]
            if ks & 3 == 0 and (ks or f): gp.insert(0, f"s_add_u32 s{wgu_}, s{wgu_}, 4096")
            gu_l.append((8, gp))
    CW = float(os.environ.get('CW', '2'))
    x_l = [(24, [f"buffer_load_dwordx4 {v(RES,4)}, v{raddr}, s[{SX}:{SX+3}], 0 offen"]),
           (8, [f"buffer_load_dwordx4 {v(RES+4,4)}, v{raddr}, s[{SX}:{SX+3}], 0 offen offset:16"]),
           (8, [f"buffer_load_dwordx2 {v(RES+8,2)}, v{raddr}, s[{SX}:{SX+3}], 0 offen offset:32"])]
    pt = lambda va, sr, off=0: f"buffer_load_dword v{PT}, v{va}, {Wd_}, s{sr} offen offset:{off} sc1"
    pt_l = [(20*CW, [pt(pt20, so[0]).replace(Wd_, f"s[{SOUT}:{SOUT+3}]")]), (9, [pt(tmp4, so[2])])]
    pa_l = [(16, [pt(pt16, so[1])]), (16, [pt(pt16, so[1], 2048)]), (16, [f"s_add_u32 s{so[1]}, s{so[1]}, 4096", pt(pt16, so[1])])]
    if os.environ.get('NOPT'): pt_l = []
    early = x_l + pt_l
    items = gu_l[:40] + wo_l + gu_l[40:]
    if not os.environ.get('NOPA'):
        for k, it_ in enumerate(pa_l): items.insert(len(items) - 24 + 6*k, it_)
    CAP = float(os.environ.get('CAP', '12')); HEND = int(os.environ.get('HEND', '122'))
    HW = int(os.environ.get('HW', '20')); HF = HW + int(os.environ.get('DF', '20')); HP = HF + int(os.environ.get('DP', '10')); HC = HP + 4
    l0 = a.label("nfl")
    flagr = [f"s_cmp_lg_u32 s{wv}, 0", f"s_cbranch_scc1 {l0}", "s_mov_b64 exec, 1",
             f"buffer_store_dword v192, v193, {Wd_}, s{st1} offen sc0 sc1", "s_mov_b64 exec, -1", f"{l0}:"]
    pld, pck = pollw(st2, 4, 196, voff, False)
    if not os.environ.get('NOCP2'):
        b = Asm(); b.uid = a.uid + 1000; a.uid += 2000
        code_prefetch(b, "L_fin_begin", "L_mk_end", rpj, 54, t1, lane, 255)
        items.insert(len(items) - 16, (16, [x.strip() for x in b.lines]))
    side = {}; issued = []
    kvq = list(range(16, 40)); rs = list(rstores); rl = list(rloads)
    budget = 0.0; k = 0
    kvh = {j: (HW + 1 + (j-16)*2//3 if j < 28 else HF + 1 + 2*(j-28)) for j in range(16, 40)}
    assert HW <= 21 and kvh[27] < HF <= 46
    for h in range(128):
        sd = []
        budget = min(budget + CAP, 2*CAP)
        if h == HW: sd += [[f"s_waitcnt vmcnt({len(issued)-16})", "s_barrier"], rperm]
        if h == HF: sd.append(["s_waitcnt vmcnt(0)", "s_barrier"] + flagr)
        if h == 84: sd.append([f"s_waitcnt vmcnt({min(63, len(issued) - 1 - issued.index(39))})", "s_barrier"])
        if h == HP: sd.append(pld); issued.append(-2)
        if h == HC: sd.append([f"s_waitcnt vmcnt({len(issued) - 1 - issued.index(-2)})"] + pck)
        while rl and len(sd) < 2: sd.append([rl.pop(0)]); issued.append(-3)
        while h > HW and rs and len(sd) < int(os.environ.get('SR', '1')): sd.append([rs.pop(0)])
        while kvq and h >= kvh[kvq[0]] and len(sd) < 2:
            sd.append(dma()); issued.append(kvq.pop(0)); budget -= float(os.environ.get('KVW', '4'))
        if h >= int(os.environ.get('HE', '52')) and h % 2 == 0 and early and len(sd) < 2:
            w_, gp = early.pop(0); sd.append(gp); issued.append(-1)
        while HC < h < HEND and k < len(items) and budget > 0 and len(sd) < 2:
            budget -= items[k][0]; sd.append(items[k][1]); issued.append(-1); k += 1
        side[h] = sd[::-1]
    assert not early and not rs
    late = [gp for w_, gp in items[k:]]
    print("late items", len(late))
    assert ndma[0] == 40
    for t in range(64):
        for x in range(2):
            half(t, x, side[2*t+x])
            P.stamp(f"h{2*t+x}")
    fin0 = a.label("fin0")
    a(f"{fin0}:")
    a("L_fin_begin:")
    a(pv(1, V[1], 1))
    P.stamp(5)
    a(f"v_bfe_u32 v{tmp}, v{lane}, 4, 1")
    a(f"v_mul_u32_u24 v{tmp}, 1280, v{tmp}")
    a(f"v_and_b32 v{tmp2}, 15, v{lane}")
    a(f"v_lshl_add_u32 v{tmp}, v{tmp2}, 4, v{tmp}")
    a(f"v_lshrrev_b32 v{tmp2}, 5, v{lane}")
    a(f"v_lshl_add_u32 v{tmp2}, v{tmp2}, 8, v{tmp}")
    a(f"v_rcp_f32 v{tmp3}, v{O[0]+12}")
    a(f"s_mov_b32 s{t3}, 0x5f800000")
    a(f"s_mov_b32 s{t0}, s{ob}")
    a("s_nop 5")
    a(f"s_and_b32 s{t1}, s{hd}, 1")
    a(f"v_add_f32 v{S_[0]}, v{O[0]+12}, v{O[1]+12}")
    a(f"s_lshl_b32 s{t2}, s{t1}, 9")
    a(f"s_add_u32 s{so[0]}, s{t2}, s{t0}")
    a(f"v_cmp_nlt_f32 vcc, v{S_[0]}, s{t3}")
    a(f"s_lshl_b32 s{t1}, s{t1}, 3")
    a(f"s_add_u32 s{so[1]}, s{t1}, s{t0}")
    a(f"s_add_u32 s{so[2]}, s{so[0]}, 2560")
    a(f"s_add_u32 s{so[3]}, s{so[1]}, 2560")
    fb = a.label("fb"); fin = a.label("fin")
    a(f"s_cbranch_vccnz {fb}")
    a(f"{fin}:")
    a(f"v_rcp_f32 v{tmp4}, v{O[1]+12}")
    a("s_waitcnt vmcnt(0)")
    for x in range(2):
        for i in range(12):
            a(f"v_mul_f32 v{O[x]+i}, v{O[x]+i}, v{tmp3+x}")
        for i in range(6):
            a(f"v_cvt_pk_bf16_f32 v{O[x]+i}, v{O[x]+2*i}, v{O[x]+2*i+1}")
    both([f"buffer_store_dwordx4 {v(O[x],4)}, v{tmp2}, s[{SW}:{SW+3}], s{so[2*x]} offen" for x in range(2)] + ["s_mov_b32 exec_hi, 0"] +
         [f"buffer_store_dwordx2 {v(O[x]+4,2)}, v{tmp}, s[{SW}:{SW+3}], s{so[2*x+1]} offen offset:1024" for x in range(2)] + ["s_mov_b64 exec, -1"], True)
    ctx = dict(locals())
    if UPTO >= 3:
        import mg2
        mg2.rest(ctx)
    l0 = a.label("ntag")
    a(f"s_or_b32 s{t0}, s2, s{wv}")
    a(f"s_cbranch_scc1 {l0}")
    a(f"s_load_dwordx2 s[48:49], s[0:1], {KA_DBG}")
    a(f"v_mov_b32 v{tmp}, 0")
    a(f"s_mov_b64 exec, 1")
    a(f"s_waitcnt lgkmcnt(0)")
    a(f"global_store_dword v{tmp}, v{tmp}, s[48:49]")
    a(f"{l0}:")
    P.flush(12, WS, wv)
    a(f"{done}:")
    a("s_endpgm")
    a(f"{fb}:")
    a(f"s_cmp_lg_u32 s{fbk}, 0")
    a(f"s_cbranch_scc1 {fin}")
    a(f"s_mov_b32 s{fbk}, 1")
    ka, va = 62, 63
    a(f"v_add_u32 v{ka}, {63*2560}, v{kb[0]}")
    a(f"v_mov_b32 v{tmp}, 0xff800000")
    a(f"v_mov_b32 v{tmp2}, 0xff800000")
    a(f"s_mov_b32 s{t0}, 64")
    fl = a.label("fl")
    a(f"{fl}:")
    for x in readK(0, K[0], [ka]): a(x)
    a(f"s_waitcnt lgkmcnt(0)")
    a(qk1(0, K[0], "0")); a(qk1(1, K[0], "0")); a(qk2(0, K[0])); a(qk2(1, K[0]))
    a(f"v_subrev_u32 v{ka}, 2560, v{ka}")
    a(f"s_sub_u32 s{t0}, s{t0}, 1")
    a("s_nop 7"); a("s_nop 4")
    max16(S_[0], tmp); max16(S_[1], tmp2)
    a(f"s_cmp_lg_u32 s{t0}, 0")
    a(f"s_cbranch_scc1 {fl}")
    prime()
    a(f"v_mov_b32 v{ka}, v{kb[0]}")
    a(f"v_mov_b32 v{va}, v{vb[0]}")
    a(f"s_mov_b32 s{t0}, 31")
    fl = a.label("fl2")
    a(f"{fl}:")
    for t in range(2):
        for x in range(2): half(t, x, [], [ka], [va])
    a(f"v_add_u32 v{ka}, 5120, v{ka}")
    a(f"v_add_u32 v{va}, 5120, v{va}")
    a(f"s_sub_u32 s{t0}, s{t0}, 1")
    a(f"s_cmp_lg_u32 s{t0}, 0")
    a(f"s_cbranch_scc1 {fl}")
    for t in range(2):
        for x in range(2): half(t, x, [], [ka], [va], last=1)
    a(f"s_branch {fin0}")
    for l0, ins, l1 in tail:
        a(f"{l0}:")
        for x in ins: a(x)
        a(f"s_branch {l1}")
    a("L_mk_end:")
    kernel_desc(a, name, 512, 102, accum=256)
    return dict(name=name, grid=256, block=256, lds=163840)
```

```python
from asmlib import *
from layout import *

def rest(c):
    a, P = c['a'], c['P']
    ag, both, flag, poll, WOF = c['ag'] if 'ag' in c else None, c['both'], c['flag'], c['poll'], c['WOF']
    import mg as mk
    ag = mk.ag; UPTO = mk.UPTO
    SW, SOUT, g, m, wv = c['SW'], c['SOUT'], c['g'], c['m'], c['wv']
    t0, t1, t2, t3, so = c['t0'], c['t1'], c['t2'], c['t3'], c['so']
    lane, voff, RES, raddr = c['lane'], c['voff'], c['RES'], c['raddr']
    tmp, tmp2, tmp3, tmp4 = c['tmp'], c['tmp2'], c['tmp3'], c['tmp4']
    W = f"s[{SW}:{SW+3}]"
    rb64, nb, rbg, sfl, spl, wd_ = 40, 41, 42, 43, 44, 47
    hs = [45, 46]; hl = [48, 49]; chunk, rt = 50, 51
    CS = [136, 140, 152]; ONES = 156
    wr = [3, 4, 5]; rdv = 6; voff2 = 7
    mf16 = lambda D_, A_, B_, C_: f"v_mfma_f32_16x16x32_bf16 {v(D_,4)}, {A_}, {B_}, {C_}"
    def colsum(k0, k1):
        for ks in range(k0, k1):
            for f in range(3):
                a(mf16(CS[f], ag((ks*3+f)*4,4), v(ONES,4), "0" if ks == 0 else v(CS[f],4)))
    for i in range(4): a(f"v_mov_b32 v{ONES+i}, 0x3f803f80")
    a(f"s_and_b32 s{rb64}, s{m}, 3")
    a(f"s_lshr_b32 s{nb}, s{m}, 2")
    a(f"s_lshl_b32 s{rbg}, s{g}, 2")
    a(f"s_add_u32 s{rbg}, s{rbg}, s{rb64}")
    a(f"s_lshl_b32 s{rbg}, s{rbg}, 2")
    a(f"s_lshl_b32 s{t3}, s{c['qb']}, 9")
    a(f"s_add_u32 s{t3}, s{t3}, {FL1}")
    a(f"s_lshl_b32 s{t0}, s{wv}, 5")
    a(f"s_add_u32 s{t1}, s{t0}, s{c['hd']}")
    a(f"s_lshl_b32 s{t1}, s{t1}, 2")
    a(f"s_add_u32 s{sfl}, s{t3}, s{t1}")
    a(f"s_lshl_b32 s{t3}, s{g}, 9")
    a(f"s_add_u32 s{t3}, s{t3}, {FL1}")
    a(f"s_lshl_b32 s{t1}, s{rb64}, 7")
    a(f"s_add_u32 s{t1}, s{t1}, s{t0}")
    a(f"s_add_u32 s{spl}, s{t3}, s{t1}")
    if not c['late']: colsum(0, 10)
    O_ = f"s[{SOUT}:{SOUT+3}]"
    def rowsel(stride, kq, base, gs=0):
        a(f"s_mul_i32 s{t2}, s{wv}, {kq}")
        if base: a(f"s_add_u32 s{t2}, s{t2}, {base}")
        if gs:
            a(f"s_mul_i32 s{t0}, s{g}, {gs}")
            a(f"s_add_u32 s{t2}, s{t2}, s{t0}")
        for j in range(4):
            a(f"s_add_u32 s{t0}, s{wv}, {j}")
            a(f"s_and_b32 s{t0}, s{t0}, 3")
            a(f"s_add_u32 s{t0}, s{t0}, s{rbg}")
            a(f"s_mul_i32 s{t0}, s{t0}, {stride}")
            a(f"s_add_u32 s{so[j]}, s{t0}, s{t2}")
    flag(sfl, tmp3, True)
    P.stamp(6)
    rowsel(1280, 2*GS, 0)
    OA = [128, 129, 130, 131, 132]
    a(f"v_lshrrev_b32 v{tmp}, 4, v{lane}")
    a(f"s_mov_b32 s{t0}, {163840-1280}")
    a(f"s_mov_b32 s{t1}, {GS-2*163840}")
    for s_ in range(5):
        a(f"v_add_u32 v{tmp2}, {4*s_}, v{tmp}")
        a(f"v_mul_u32_u24 v{tmp2}, 205, v{tmp2}")
        a(f"v_lshrrev_b32 v{tmp2}, 10, v{tmp2}")
        a(f"v_mad_u32_u24 v{OA[s_]}, v{tmp2}, s{t0}, v{voff}")
        a(f"v_lshrrev_b32 v{tmp2}, 1, v{tmp2}")
        a(f"v_mad_u32_u24 v{OA[s_]}, v{tmp2}, s{t1}, v{OA[s_]}")
    a(f"v_add_u32 v{OA[4]}, 4096, v{OA[4]}")
    for j in range(1, 4):
        a(f"s_add_u32 s{t0}, s{wv}, {j}")
        a(f"s_and_b32 s{t0}, s{t0}, 3")
        a(f"s_mul_i32 s{t0}, s{t0}, 15360")
        a(f"s_add_u32 s{t0}, s{t0}, {(j-1)*5120}")
        a(f"v_add_u32 v{wr[j-1]}, s{t0}, v{voff}")
    a(f"s_mul_i32 s{t0}, s{wv}, 15360")
    a(f"v_add_u32 v{rdv}, s{t0}, v{voff}")
    for gp in c['late']:
        for x in gp: a(x)
    if c['late']: a('s_waitcnt vmcnt(0)')
    if c['late']: colsum(0, 20)
    else: colsum(10, 20)
    a("s_barrier")
    poll(spl, 8, tmp3)
    P.stamp(7)
    def xgemm(KS, A0, NR, ACC, RD, wf, lead, pre, va=None):
        order = [(j, s) for j in (1, 2, 3, 0) for s in range(KS)]
        N = len(order)
        accs = {1: ACC[0], 2: ACC[1], 3: ACC[2], 0: ACC[0]}
        def ld(n):
            j, s = order[n]
            out = [f"buffer_load_dwordx4 {v(A0+4*(n%NR),4)}, v{va[s] if va else voff}, {W}, s{so[j]} offen offset:{1024*(s&3)} sc1"]
            if s & 3 == 3 and s + 1 < KS and not va: out.append(f"s_add_u32 s{so[j]}, s{so[j]}, 4096")
            return out
        for n in range(lead):
            for x in ld(n): a(x)
        for x in pre: a(x)
        for n, (j, s) in enumerate(order):
            a(f"s_waitcnt vmcnt({min(lead-1, N-1-n)})")
            pj = {2: 1, 3: 2, 0: 3}.get(j)
            for i in range(5):
                D_ = accs[j] + 4*i
                a(mf16(D_, wf(s*5+i), v(A0+4*(n%NR),4), "0" if s == 0 else v(D_,4)))
                if i == 0 and n + lead < N:
                    for x in ld(n+lead): a(x)
                if pj and s == 2:
                    a(f"ds_write_b128 v{wr[pj-1]}, {v(accs[pj]+4*i,4)} offset:{1024*i}")
            if j == 0 and s == KS - 2:
                a("s_waitcnt lgkmcnt(0)")
                a("s_barrier")
        for q in range(15):
            a(f"ds_read_b128 {v(RD+4*q,4)}, v{rdv} offset:{1024*q}")
    def addres(ACC0, RD, U0):
        for j in range(10):
            a(f"v_lshlrev_b32 v{U0+2*j}, 16, v{RES+j}")
            a(f"v_and_b32 v{U0+2*j+1}, 0xffff0000, v{RES+j}")
        for j in range(10):
            a(f"v_pk_add_f32 {v(ACC0+2*j,2)}, {v(ACC0+2*j,2)}, {v(U0+2*j,2)}")
        a("s_waitcnt lgkmcnt(5)")
        for j in range(10):
            a(f"v_pk_add_f32 {v(RD+2*j,2)}, {v(RD+2*j,2)}, {v(RD+20+2*j,2)}")
        a("s_waitcnt lgkmcnt(0)")
        for j in range(10):
            a(f"v_pk_add_f32 {v(ACC0+2*j,2)}, {v(ACC0+2*j,2)}, {v(RD+40+2*j,2)}")
        for j in range(10):
            a(f"v_pk_add_f32 {v(ACC0+2*j,2)}, {v(ACC0+2*j,2)}, {v(RD+2*j,2)}")
        for j in range(10):
            a(f"v_cvt_pk_bf16_f32 v{RES+j}, v{ACC0+2*j}, v{ACC0+2*j+1}")
    ACC = [64, 84, 104]
    ha, ha2, sta = 124, 125, 126
    pre = [f"v_and_b32 v{tmp}, 15, v{lane}", f"v_lshrrev_b32 v{tmp2}, 5, v{lane}", f"v_mul_u32_u24 v{tmp2}, 1280, v{tmp2}",
           f"v_lshl_add_u32 v{ha2}, v{tmp}, 4, v{tmp2}", f"v_bfe_u32 v{tmp2}, v{lane}, 4, 1",
           f"v_lshl_add_u32 v{ha}, v{tmp2}, 9, v{ha2}", f"v_lshl_add_u32 v{ha2}, v{tmp2}, 3, v{ha2}", f"v_lshlrev_b32 v{sta}, 6, v{tmp}",
           f"s_add_u32 s{t0}, s{rbg}, s{wv}", f"s_mul_i32 s{t1}, s{t0}, 20480", f"s_mul_i32 s{t2}, s{nb}, 2560",
           f"s_add_u32 s{hs[0]}, s{t1}, s{t2}",
           f"s_lshl_b32 s{t1}, s{t0}, 10", f"s_lshl_b32 s{t2}, s{nb}, 3", f"s_add_u32 s{t1}, s{t1}, s{t2}", f"s_add_u32 s{hs[1]}, s{t1}, {WS_ST}",
           f"s_lshl_b32 s{t0}, s{t0}, 3", f"s_add_u32 s{t0}, s{t0}, s{nb}", f"s_lshl_b32 s{t0}, s{t0}, 2", f"s_add_u32 s{sfl}, s{t0}, {FL2}"]
    xgemm(5, 14, 12, ACC, 160, WOF, 6, pre, OA)
    U0 = 14
    addres(ACC[0], 160, U0)
    A0 = ACC[0]
    both([f"buffer_store_dwordx4 {v(RES,4)}, v{ha}, {O_}, s{hs[0]} offen",
          f"buffer_store_dwordx4 {v(RES+4,4)}, v{ha}, {O_}, s{hs[0]} offen offset:256",
          f"buffer_store_dwordx2 {v(RES+8,2)}, v{ha2}, {O_}, s{hs[0]} offen offset:1024"])
    sm, sq = U0, U0+2
    a(f"v_pk_add_f32 {v(sm,2)}, {v(A0,2)}, {v(A0+2,2)}")
    a(f"v_pk_mul_f32 {v(sq,2)}, {v(A0,2)}, {v(A0,2)}")
    for j in range(1, 10):
        if j > 1: a(f"v_pk_add_f32 {v(sm,2)}, {v(sm,2)}, {v(A0+2*j,2)}")
        a(f"v_pk_fma_f32 {v(sq,2)}, {v(A0+2*j,2)}, {v(A0+2*j,2)}, {v(sq,2)}")
    a(f"v_add_f32 v{sm}, v{sm}, v{sm+1}")
    a(f"v_add_f32 v{sm+1}, v{sq}, v{sq+1}")
    for op in ("v_permlane32_swap_b32", "v_permlane16_swap_b32"):
        a(f"v_mov_b32 v{sq}, v{sm}")
        a(f"v_mov_b32 v{sq+1}, v{sm+1}")
        a("s_nop 1")
        a(f"{op} v{sq}, v{sm}")
        a(f"{op} v{sq+1}, v{sm+1}")
        a("s_nop 1")
        a(f"v_pk_add_f32 {v(sm,2)}, {v(sm,2)}, {v(sq,2)}")
    a(f"s_mov_b64 exec, 0xffff")
    both([f"buffer_store_dwordx2 {v(sm,2)}, v{sta}, {W}, s{hs[1]} offen"])
    a(f"s_mov_b64 exec, -1")
    if UPTO < 4: return
    a(f"s_bfe_u32 s{rt}, s{m}, 0x10001")
    a(f"s_lshl_b32 s{t0}, s{g}, 1")
    a(f"s_add_u32 s{rt}, s{rt}, s{t0}")
    a(f"s_lshl_b32 s{chunk}, s{nb}, 1")
    a(f"s_and_b32 s{t0}, s{m}, 1")
    a(f"s_add_u32 s{chunk}, s{chunk}, s{t0}")
    a(f"s_lshl_b32 s{chunk}, s{chunk}, 2")
    a(f"s_add_u32 s{chunk}, s{chunk}, s{wv}")
    a(f"s_lshl_b32 s{t0}, s{rt}, 8")
    a(f"s_lshl_b32 s{t1}, s{wv}, 6")
    a(f"s_add_u32 s{t0}, s{t0}, s{t1}")
    a(f"s_add_u32 s{spl}, s{t0}, {FL2}")
    a(f"s_mul_i32 s{hl[0]}, s{wv}, 40960")
    a(f"s_add_u32 s{hl[1]}, s{hl[0]}, 20480")
    a(f"s_mul_i32 s{t0}, s{rt}, 163840")
    flag(sfl, tmp3)
    a(f"s_add_u32 s{hs[0]}, s{hl[0]}, s{t0}")
    a(f"s_add_u32 s{hs[1]}, s{hl[1]}, s{t0}")
    a(f"s_mul_i32 s{wd_}, s{nb}, {48*5120}")
    a(f"s_mul_i32 s{t0}, s{wv}, {12*5120}")
    a(f"s_add_u32 s{wd_}, s{wd_}, s{t0}")
    a(f"s_add_u32 s{wd_}, s{wd_}, {WS_WD}")
    rdb = [92, 93, 94]; oaddr = 95; sta = 8
    HF = lambda b, i: 14 + b*32 + i*4
    def AC(i, f):
        n = i*3 + f
        return 160 + 4*n if n < 21 else 80 + 4*(n-21)
    ST = 96
    for i in range(3):
        a(f"v_add_u32 v{rdb[i]}, {i*61440}, v{voff}")
    a(f"v_and_b32 v{tmp}, 15, v{lane}")
    a(f"v_lshrrev_b32 v{tmp2}, 4, v{lane}")
    a(f"v_lshlrev_b32 v{sta}, 6, v{tmp}")
    a(f"v_lshl_add_u32 v{sta}, v{tmp2}, 11, v{sta}")
    a(f"v_mul_u32_u24 v{oaddr}, 49152, v{tmp2}")
    a(f"v_lshl_add_u32 v{oaddr}, v{tmp}, 4, v{oaddr}")
    a("s_barrier")
    poll(spl, 16, tmp3)
    P.stamp(8)
    def hgrp(u):
        o = (u & 1)*2048
        dm = lambda b, s: f"buffer_load_dwordx4 v{voff}, {O_}, s{hs[b]} offen offset:{o+1024*s} sc1 lds"
        out = []
        for b in range(2):
            out.append([f"s_mov_b32 m0, s{hl[b]}", "s_nop 0", dm(b, 0)])
            last = [dm(b, 1)]
            if u & 1: last += [f"s_add_u32 s{hs[b]}, s{hs[b]}, 4096", f"s_add_u32 s{hl[b]}, s{hl[b]}, 4096"]
            out.append(last)
        return out
    def wdl(n):
        out = [f"buffer_load_dwordx4 {ag(4*n,4)}, v{voff}, {W}, s{wd_} offen offset:{1024*(n&3)} sc1"]
        if n & 3 == 3: out.append(f"s_add_u32 s{wd_}, s{wd_}, 4096")
        return out
    for u in range(3):
        for gp in hgrp(u):
            for x in gp: a(x)
    a(f"s_lshl_b32 s{t0}, s{rt}, 13")
    a(f"s_add_u32 s{t0}, s{t0}, {WS_ST}")
    def reads(ks, b):
        return [f"ds_read_b128 {v(HF(b,i),4)}, v{rdb[i//3]} offset:{(i%3)*20480 + ks*1024}" for i in range(8)]
    a(f"s_waitcnt vmcnt(8)")
    a(f"s_barrier")
    for x in reads(0, 0): a(x)
    NIN = 48
    loads = {ks: [] for ks in range(20)}
    for u in range(3, 10): loads[u-3] += hgrp(u)
    a(f"v_and_b32 v{tmp}, 31, v{lane}")
    a(f"v_lshlrev_b32 v{tmp}, 7, v{tmp}")
    a(f"s_lshl_b32 s{t3}, s{g}, 4")
    a(f"s_add_u32 s{t3}, s{t3}, {FL1}")
    kld, kck = c['pollw'](t3, 4, 128, tmp, False)
    loads[7] += [kld]
    loads[7] += [[f"buffer_load_dwordx4 {v(ST+16*j+4*q,4)}, v{sta}, {W}, s{t0} offen offset:{1024*j+16*q} sc1"] for j in range(2) for q in range(4)]
    for n in range(NIN):
        ks = 8 + n*12//NIN
        assert n < 3*ks
        loads[ks].append(wdl(n))
    for ks in range(20):
        b = ks & 1
        mf = [mf16(AC(i,f), ag((ks*3+f)*4,4), v(HF(b,i),4), "0" if ks == 0 else v(AC(i,f),4)) for i in range(8) for f in range(3)]
        rd = reads(ks+1, b^1) if ks < 19 else []
        ld = loads[ks]
        if os.environ.get('NOWD') and ks >= 8: ld = []
        a("s_waitcnt lgkmcnt(0)")
        seq = []
        bar = {1: 4, 5: 8, 11: 9 + sum(len(loads[k]) for k in range(8, 11))}.get(ks)
        if bar is not None:
            seq += mf[:2] + [f"s_waitcnt vmcnt({bar})", "s_barrier"]
            k0 = 2
        else:
            k0 = 0
        for i in range(8):
            seq.append(mf[k0+i])
            if rd: seq.append(rd[i])
        rest_ = mf[k0+8:]
        k = 0
        for i, x in enumerate(rest_):
            seq.append(x)
            while k < len(ld) and k*len(rest_) <= i*len(ld):
                seq += ld[k]; k += 1
        assert k == len(ld)
        for x in seq: a(x)
    P.stamp(11)
    a(f"s_waitcnt vmcnt({min(NIN,63)})")
    for x in kck: a(x)
    for j in range(2):
        b = ST + 16*j
        for d in (8, 4, 2):
            for q in range(0, d, 2):
                a(f"v_pk_add_f32 {v(b+q,2)}, {v(b+q,2)}, {v(b+q+d,2)}")
    NM = 14; R2 = 30; T = 48
    for j in range(2):
        b = ST + 16*j
        a(f"v_mul_f32 v{b}, {f32(-1.0/D)}, v{b}")
        a(f"v_mul_f32 v{b+1}, {f32(1.0/D)}, v{b+1}")
        a(f"v_fma_f32 v{b+1}, -v{b}, v{b}, v{b+1}")
        a(f"v_max_f32 v{b+1}, 0, v{b+1}")
        a(f"v_add_f32 v{b+1}, {f32(EPS)}, v{b+1}")
        a(f"v_rcp_f32 v{b+1}, v{b+1}")
    a("s_nop 0")
    rr = lambda dst, j: [dst + 2*(2*q + j) for q in range(4)]
    for j in range(2):
        for (src, dst) in ((ST+16*j, NM), (ST+16*j+1, R2)):
            r = rr(dst, j)
            a(f"v_mov_b32 v{r[0]}, v{src}")
            a(f"v_mov_b32 v{r[1]}, v{src}")
    a("s_nop 1")
    for j in range(2):
        for dst in (NM, R2):
            r = rr(dst, j)
            a(f"v_permlane16_swap_b32 v{r[0]}, v{r[1]}")
    a("s_nop 0")
    for j in range(2):
        for dst in (NM, R2):
            r = rr(dst, j)
            a(f"v_mov_b32 v{r[2]}, v{r[0]}")
            a(f"v_mov_b32 v{r[3]}, v{r[1]}")
    a("s_nop 1")
    for j in range(2):
        for dst in (NM, R2):
            r = rr(dst, j)
            a(f"v_permlane32_swap_b32 v{r[0]}, v{r[2]}")
            a(f"v_permlane32_swap_b32 v{r[1]}, v{r[3]}")
    a(f"s_mul_i32 s{t0}, s{rt}, {8*49152}")
    a(f"s_mul_i32 s{t1}, s{chunk}, 768")
    a(f"s_add_u32 s{t0}, s{t0}, s{t1}")
    a(f"s_mul_i32 s{t1}, s{g}, {GS-16*49152}")
    a(f"s_add_u32 s{t0}, s{t0}, s{t1}")
    a(f"s_add_u32 s{t0}, s{t0}, {KVO}")
    for h in range(2):
        for I in range(4):
            i = 4*h + I
            for f in range(3):
                A = AC(i,f)
                a(f"v_pk_fma_f32 {v(A,2)}, {v(CS[f],2)}, {v(NM+2*i,2)}, {v(A,2)} op_sel_hi:[1,0,1]")
                a(f"v_pk_fma_f32 {v(A+2,2)}, {v(CS[f]+2,2)}, {v(NM+2*i,2)}, {v(A+2,2)} op_sel_hi:[1,0,1]")
            for f in range(3):
                A = AC(i,f)
                a(f"v_pk_mul_f32 {v(A,2)}, {v(A,2)}, {v(R2+2*i,2)} op_sel_hi:[1,0]")
            for f in range(3):
                A = AC(i,f)
                a(f"v_pk_mul_f32 {v(A,2)}, {v(A,2)}, {v(A+2,2)}")
            for f in range(3):
                A = AC(i,f)
                a(f"v_cvt_pk_bf16_f32 v{T+12*h+4*f+I}, v{A}, v{A+1}")
        a("s_nop 1")
        for f in range(3):
            r = T + 12*h + 4*f
            a(f"v_permlane16_swap_b32 v{r}, v{r+1}")
            a(f"v_permlane16_swap_b32 v{r+2}, v{r+3}")
        a("s_nop 1")
        for f in range(3):
            r = T + 12*h + 4*f
            a(f"v_permlane32_swap_b32 v{r}, v{r+2}")
            a(f"v_permlane32_swap_b32 v{r+1}, v{r+3}")
        both([f"buffer_store_dwordx4 {v(T+12*h+4*f,4)}, v{oaddr}, {W}, s{t0} offen offset:{256*f}" for f in range(3)])
        if h == 0: a(f"s_add_u32 s{t0}, s{t0}, {4*49152}")
    if UPTO < 5: return
    a(f"s_lshl_b32 s{t0}, s{rt}, 8")
    a(f"s_add_u32 s{t0}, s{t0}, {FL3}")
    a(f"s_lshl_b32 s{t1}, s{chunk}, 2")
    a(f"s_add_u32 s{sfl}, s{t0}, s{t1}")
    a(f"s_lshl_b32 s{t1}, s{wv}, 6")
    a(f"s_add_u32 s{spl}, s{t0}, s{t1}")
    rowsel(49152, 12288, KVO, GS-16*49152)
    flag(sfl, tmp3)
    P.stamp(9)
    for n in range(NIN, 60):
        for x in wdl(n): a(x)
    a("s_barrier")
    poll(spl, 16, tmp3)
    ACC = [112, 132, 152]
    xgemm(12, 14, 24, ACC, 176, lambda n: ag(4*n,4), 8, [])
    P.stamp(10)
    addres(ACC[0], 176, 14)
    both([f"buffer_store_dwordx4 {v(RES,4)}, v{raddr}, {O_}, 0 offen",
          f"buffer_store_dwordx4 {v(RES+4,4)}, v{raddr}, {O_}, 0 offen offset:16",
          f"buffer_store_dwordx2 {v(RES+8,2)}, v{raddr}, {O_}, 0 offen offset:32"])
```

```python
from asmlib import *
from layout import *
import rp
STAGE = 16*1040 + 16384
BOFF = 16*1040
STATS = 4*STAGE

def qkv(c):
    a, P, both, flag = c['a'], c['P'], c['both'], c['flag']
    SW, SX, SQ, WS = c['SW'], c['SX'], c['SOUT'], c['WS']
    g, m, wv, pure, myid, spin, nonce, rpj = c['g'], c['m'], c['wv'], c['pure'], c['myid'], c['spin'], c['nonce'], c['rpj']
    t0, t1, t2, t3 = c['t0'], c['t1'], c['t2'], c['t3']
    lane = c['lane']; RJ = c['RJ']; RO = c['RO']
    soffA, soffB, dst_st, rd_st, cnt, wr, wc = 37, 38, 39, 40, 41, 42, 43
    so0, so1, m0A, m0B, kc, baseA, baseB, himask, rb, cbk = 58, 59, 60, 61, 62, 63, 29, 3, 92, 93
    R0, R1 = 20, 44; pto = 30; vst = 136
    vA = [4,5,6,7]; vB = [8,9,10,11]
    aBase = [12,13]; bBase = [14,15]; aCur = [16,17]; bCur = [18,19]
    vsq, vsum, vcs, vones, utmp = 206, 208, 212, 20, 216
    eaddr = list(range(24, 32))
    FA = lambda st, i: 32 + st*8 + i*4
    FB = lambda st, i: 48 + st*8 + i*4
    ACC = lambda ai, bi: 64 + (ai*2 + bi)*16
    r, h, tmp, tmp2, tmp3, tmp4 = 129, 130, 131, 132, 133, 134
    vn, vid, vz, vpt = 135, 137, 139, 128
    RL = [208, 224]
    W = f"s[{SW}:{SW+3}]"
    if not os.environ.get('NOCP0'):
        a(f"s_xor_b32 s{t0}, s{wv}, 3")
        a(f"s_lshl_b32 s{t0}, s{t0}, 5")
        a(f"s_add_u32 s{t0}, s{t0}, s{m}")
        code_prefetch(a, c['name'], "L_mk_end", t0, 94, t1, lane, 2, True)
    a(f"s_lshr_b32 s{rb}, s{m}, 1")
    a(f"s_and_b32 s{cbk}, s{m}, 1")
    a(f"v_lshrrev_b32 v{tmp}, 5, v{lane}")
    a(f"v_lshlrev_b32 v{tmp}, 5, v{tmp}")
    a(f"v_bfe_u32 v{tmp2}, v{lane}, 3, 1")
    a(f"v_add_u32 v{tmp}, v{tmp}, v{tmp2}")
    a(f"v_and_b32 v{tmp2}, 16, v{lane}")
    a(f"v_add_u32 v{tmp}, v{tmp}, v{tmp2}")
    a(f"s_lshr_b32 s{wr}, s{wv}, 1")
    a(f"s_and_b32 s{wc}, s{wv}, 1")
    a(f"s_lshl_b32 s{t0}, s{wr}, 6")
    a(f"s_lshl_b32 s{t1}, s{wc}, 3")
    a(f"s_add_u32 s{t0}, s{t0}, s{t1}")
    a(f"v_add_u32 v{tmp}, s{t0}, v{tmp}")
    a(f"v_mul_u32_u24 v{tmp}, 1280, v{tmp}")
    a(f"v_and_b32 v{tmp2}, 7, v{lane}")
    a(f"v_lshl_add_u32 v{vA[0]}, v{tmp2}, 4, v{tmp}")
    for i in range(1, 4):
        a(f"v_add_u32 v{vA[i]}, {i*(2*1280 - 1040)}, v{vA[0]}")
    a(f"v_lshrrev_b32 v{tmp}, 4, v{lane}")
    a(f"v_lshlrev_b32 v{tmp2}, 2, v{tmp}")
    a(f"v_and_b32 v{tmp3}, 15, v{lane}")
    a(f"v_xor_b32 v{tmp2}, v{tmp2}, v{tmp3}")
    a(f"s_cmp_eq_u32 s{cbk}, 0")
    a(f"s_cselect_b32 s{t1}, 10, 4")
    a(f"s_cselect_b32 s{t2}, 15, 13")
    a(f"s_lshl_b32 s{t0}, s{wv}, 4")
    a(f"v_add_u32 v{tmp}, s{t0}, v{tmp}")
    a(f"v_mul_u32_u24 v{tmp}, 3840, v{tmp}")
    a(f"v_cmp_le_u32 vcc, s{t1}, v{tmp2}")
    a(f"v_add_u32 v{tmp3}, 1120, v{tmp}")
    a(f"v_min_u32 v{tmp2}, s{t2}, v{tmp2}")
    a(f"v_cndmask_b32 v{tmp}, v{tmp}, v{tmp3}, vcc")
    a(f"v_lshl_add_u32 v{vB[0]}, v{tmp2}, 4, v{tmp}")
    for i in range(1, 4):
        a(f"v_add_u32 v{vB[i]}, {i*(4*3840 - 1024)}, v{vB[0]}")
    KR = [int(x) for x in os.environ.get('KR', '3,5,1').split(',')]
    a(f"s_mul_i32 s{kc}, s{rb}, {KR[0]}")
    a(f"s_mul_i32 s{t0}, s{cbk}, {KR[1]}")
    a(f"s_add_u32 s{kc}, s{kc}, s{t0}")
    a(f"s_mul_i32 s{t0}, s{g}, {KR[2]}")
    a(f"s_add_u32 s{kc}, s{kc}, s{t0}")
    a(f"s_mul_i32 s{t0}, s{kc}, 205")
    a(f"s_lshr_b32 s{t0}, s{t0}, 11")
    a(f"s_mul_i32 s{t0}, s{t0}, 10")
    a(f"s_sub_u32 s{kc}, s{kc}, s{t0}")
    a(f"s_mul_i32 s{baseA}, s{rb}, {128*1280}")
    a(f"s_mul_i32 s{baseB}, s{g}, 160")
    a(f"s_mul_i32 s{t0}, s{cbk}, 1376")
    a(f"s_add_u32 s{baseB}, s{baseB}, s{t0}")
    a(f"s_mul_i32 s{m0A}, s{wv}, {4*1040}")
    a(f"s_lshl_b32 s{m0B}, s{wv}, 12")
    a(f"s_add_u32 s{m0B}, s{m0B}, {BOFF}")
    a(f"v_mov_b32 v{vz}, 0")
    a(f"s_waitcnt lgkmcnt(0)")
    srd(a, SX, 4, S*D*2)
    srd(a, SQ, 6, D*3*D*2)
    l0 = a.label("ntag")
    a(f"s_or_b32 s{t0}, s2, s{wv}")
    a(f"s_cbranch_scc1 {l0}")
    a(f"s_lshl_b32 s{nonce}, s{nonce}, 5")
    a(f"s_or_b32 s{nonce}, s{nonce}, 16")
    a(f"v_mov_b32 v{tmp}, s{nonce}")
    a(f"s_mov_b64 exec, 1")
    a(f"global_store_dword v{vz}, v{tmp}, s[48:49] sc0 sc1")
    a(f"s_mov_b64 exec, -1")
    a(f"{l0}:")
    dmaA = lambda: [f"buffer_load_dwordx4 v{vA[i]}, s[{SX}:{SX+3}], s{soffA} offen offset:{1040*i} lds" for i in range(4)]
    dmaB = lambda: [f"buffer_load_dwordx4 v{vB[i]}, s[{SQ}:{SQ+3}], s{soffB} offen offset:{1024*i} lds" for i in range(4)]
    def offs():
        return [f"s_lshl_b32 s{soffA}, s{kc}, 7", f"s_add_u32 s{soffA}, s{soffA}, s{baseA}",
                f"s_mul_i32 s{soffB}, s{kc}, {64*3840}", f"s_add_u32 s{soffB}, s{soffB}, s{baseB}",
                f"s_add_u32 s{kc}, s{kc}, 1", f"s_cmp_eq_u32 s{kc}, 10", f"s_cselect_b32 s{kc}, 0, s{kc}"]
    def chunk(cc):
        a(f"s_add_u32 m0, s{m0A}, {cc*STAGE}")
        for x in offs(): a(x)
        for x in dmaA(): a(x)
        a(f"s_add_u32 m0, s{m0B}, {cc*STAGE}")
        a("s_nop 0")
        for x in dmaB(): a(x)
    chunk(0)
    srd(a, SW, WS, WS_SPAN)
    a(f"s_lshl_b32 s{rpj}, s{m}, 2")
    a(f"s_add_u32 s{rpj}, s{rpj}, s{wv}")
    a(f"s_lshl_b32 s{so0}, s{rpj}, 3")
    a(f"s_add_u32 s{so0}, s{so0}, s{g}")
    a(f"s_add_u32 s{so1}, s{so0}, 480")
    a(f"s_sub_u32 s{t0}, s{rpj}, 60")
    a(f"s_mul_i32 s{t1}, s{t0}, 205")
    a(f"s_lshr_b32 s{t1}, s{t1}, 10")
    a(f"s_mul_i32 s{t1}, s{t1}, 70")
    a(f"s_lshl_b32 s{t0}, s{t0}, 1")
    a(f"s_add_u32 s{t1}, s{t1}, s{t0}")
    a(f"s_mul_i32 s{t0}, s{g}, 10")
    a(f"s_add_u32 s{t1}, s{t1}, s{t0}")
    a(f"s_add_u32 s{t1}, s{t1}, 960")
    a(f"s_add_u32 s{t2}, s{t1}, 1")
    a(f"s_cmp_ge_u32 s{rpj}, 60")
    a(f"s_cselect_b32 s{so0}, s{t1}, s{so0}")
    a(f"s_cselect_b32 s{so1}, s{t2}, s{so1}")
    tv = (tmp, tmp2, tmp3, tmp4)
    rp.rp_addr(a, so0, 50, R0, 94, 95, 96, spin, pure, (t0,t1,t2,t3), lane, tv, 240, 241, RJ[0])
    chunk(1)
    rp.rp_addr(a, so1, 50, R1, 97, 98, 99, spin, pure, (t0,t1,t2,t3), lane, tv, 242, 243, RJ[1])
    a(f"s_cmp_ge_u32 s{rpj}, 60")
    a(f"s_cselect_b64 vcc, 0, -1")
    a(f"v_add_u32 v{tmp}, 64, v{RJ[0]}")
    a(f"s_cmp_ge_u32 s{so0}, 1640")
    a(f"s_cselect_b32 s{R0+2}, 0, s{R0+2}")
    a(f"s_cselect_b32 s{R1+2}, 0, s{R1+2}")
    a(f"s_cselect_b32 s{t0}, {WS_SPAN}, 0")
    a(f"v_cndmask_b32 v{RJ[1]}, v{RJ[1]}, v{tmp}, vcc")
    a(f"v_or_b32 v{RJ[0]}, s{t0}, v{RJ[0]}")
    a(f"v_or_b32 v{RJ[1]}, s{t0}, v{RJ[1]}")
    a(f"s_mul_i32 s{t1}, s{g}, {GS}")
    QPT = int(os.environ.get('QPT', '2'))
    if QPT == 1:
        a(f"v_min_u32 v{tmp}, 8, v{lane}")
        a(f"v_lshlrev_b32 v{vpt}, 7, v{tmp}")
        a(f"s_mul_i32 s{t0}, s{rpj}, 7680")
        a(f"s_add_u32 s{pto}, s{t0}, s{t1}")
    else:
        n0, n1_ = (20, 28) if QPT == 0 else (60, 60)
        a(f"v_min_u32 v{tmp}, {n1_+3}, v{lane}")
        a(f"s_mul_i32 s{t0}, s{rpj}, {n0*128}")
        a(f"s_add_u32 s{t0}, s{t0}, s{t1}")
        a(f"v_lshl_add_u32 v{vpt}, v{tmp}, 7, s{t0}")
        a(f"s_add_u32 s{t0}, s{wv}, 2")
        a(f"s_mul_i32 s{t0}, s{t0}, 163840")
        a(f"s_add_u32 s{t0}, s{t0}, s{t1}")
        a(f"s_lshl_b32 s{t2}, s{m}, 10")
        a(f"s_add_u32 s{t0}, s{t0}, s{t2}")
        a(f"s_sub_u32 s{t0}, s{t0}, {n0*128}")
        a(f"v_lshl_add_u32 v{tmp2}, v{tmp}, 7, s{t0}")
        a(f"v_cmp_lt_u32 vcc, {n0-1}, v{lane}")
        a(f"s_lshl_b32 s{t0}, s{g}, 9")
        a(f"s_add_u32 s{t0}, s{t0}, {FL0 - n1_*128}")
        a(f"v_cndmask_b32 v{vpt}, v{vpt}, v{tmp2}, vcc")
        if os.environ.get('NOQPT'): a(f"v_max_u32 v{tmp}, {n1_}, v{tmp}")
        a(f"v_lshl_add_u32 v{tmp2}, v{tmp}, 7, s{t0}")
        a(f"v_cmp_lt_u32 vcc, {n1_-1}, v{tmp}")
        a(f"v_cndmask_b32 v{vpt}, v{vpt}, v{tmp2}, vcc")
    chunk(2)
    for x in offs(): a(x)
    a(f"global_load_dword v{vn}, v{vz}, s[48:49] sc1")
    TW = int(os.environ.get('TW', '1'))
    if TW:
        l1 = a.label("ntw")
        a(f"s_cmp_lg_u32 s{wv}, 2")
        a(f"s_cbranch_scc1 {l1}")
        a(f"s_load_dwordx2 s[6:7], s[0:1], {KA_OUT}")
        a(f"v_lshlrev_b32 v{tmp}, {19 if TW == 2 else 21}, v{lane}")
        a(f"v_and_b32 v{tmp2}, 0x200000, v{tmp}")
        a(f"buffer_load_dword v3, v{tmp}, {W}, 0 offen sc1")
        for p_ in (50, 52, 54, 56): a(f"global_load_dword v3, v{vz}, s[{p_}:{p_+1}]")
        a(f"s_waitcnt lgkmcnt(0)")
        a(f"global_load_dword v3, v{tmp2}, s[6:7] sc1")
        a(f"{l1}:")
    a(f"s_mov_b32 s{dst_st}, {3*STAGE}")
    a(f"s_mov_b32 s{rd_st}, 0")
    a(f"v_and_b32 v{r}, 31, v{lane}")
    a(f"v_lshrrev_b32 v{h}, 5, v{lane}")
    a(f"s_lshl_b32 s{t1}, s{g}, 7")
    a(f"s_add_u32 s{t1}, s{t1}, {WS_FL}")
    a(f"v_lshl_add_u32 v{vid}, v{r}, 2, s{t1}")
    a(f"v_bfe_u32 v{tmp}, v{r}, 1, 3")
    a(f"v_mul_u32_u24 v{tmp}, 1040, v{tmp}")
    a(f"v_and_b32 v{tmp2}, 1, v{r}")
    a(f"v_lshl_add_u32 v{tmp}, v{tmp2}, 7, v{tmp}")
    a(f"v_lshrrev_b32 v{tmp2}, 4, v{r}")
    a(f"v_lshl_add_u32 v{tmp}, v{tmp2}, 8, v{tmp}")
    a(f"v_lshl_add_u32 v{tmp}, v{h}, 4, v{tmp}")
    a(f"s_mul_i32 s{t0}, s{wr}, {8*1040}")
    a(f"s_lshl_b32 s{t1}, s{wc}, 9")
    a(f"s_add_u32 s{t2}, s{t0}, s{t1}")
    a(f"v_add_u32 v{aBase[0]}, s{t2}, v{tmp}")
    a(f"s_xor_b32 s{t1}, s{t1}, 512")
    a(f"s_add_u32 s{t2}, s{t0}, s{t1}")
    a(f"v_add_u32 v{aBase[1]}, s{t2}, v{tmp}")
    a(f"v_bfe_u32 v{tmp}, v{lane}, 2, 2")
    a(f"v_lshl_add_u32 v{tmp2}, v{h}, 3, v{tmp}")
    a(f"v_lshlrev_b32 v{tmp2}, 8, v{tmp2}")
    a(f"v_bfe_u32 v{tmp3}, v{lane}, 4, 1")
    a(f"v_lshl_add_u32 v{tmp2}, v{tmp3}, 5, v{tmp2}")
    a(f"v_and_b32 v{tmp3}, 3, v{lane}")
    a(f"v_lshl_add_u32 v{tmp2}, v{tmp3}, 3, v{tmp2}")
    a(f"v_add_u32 v{tmp2}, {BOFF}, v{tmp2}")
    a(f"s_lshl_b32 s{t0}, s{wc}, 1")
    a(f"s_add_u32 s{t0}, s{t0}, s{wr}")
    a(f"v_xor_b32 v{tmp3}, s{t0}, v{tmp}")
    a(f"v_lshl_add_u32 v{bBase[0]}, v{tmp3}, 6, v{tmp2}")
    a(f"v_xor_b32 v{tmp3}, 1, v{tmp3}")
    a(f"v_lshl_add_u32 v{bBase[1]}, v{tmp3}, 6, v{tmp2}")
    for i in range(2):
        a(f"v_mov_b32 v{aCur[i]}, v{aBase[i]}")
        a(f"v_mov_b32 v{bCur[i]}, v{bBase[i]}")
    for i in range(10):
        a(f"v_mov_b32 v{vsq+i}, 0")
    a(f"v_lshrrev_b32 v{tmp}, 2, v{lane}")
    a(f"v_xor_b32 v{tmp}, v{tmp}, v{lane}")
    a(f"v_bfe_i32 v{tmp}, v{tmp}, 2, 1")
    a(f"v_mov_b32 v{vones}, 0x3f803f80")
    a(f"v_bfi_b32 v{vones}, v{tmp}, 0, v{vones}")
    for i in range(1, 4):
        a(f"v_mov_b32 v{vones+i}, v{vones}")
    a(f"s_mov_b32 s{himask}, 0xffff0000")
    for i in range(64):
        a(f"v_mov_b32 v{64+i}, 0")
    a(f"s_getreg_b32 s{myid}, hwreg(HW_REG_XCC_ID)")
    a(f"s_and_b32 s{myid}, s{myid}, 15")
    a(f"s_lshl_b32 s{t0}, s{rb}, 2")
    a(f"s_add_u32 s{so0}, s{t0}, s{wv}")
    a(f"s_xor_b32 s{so1}, s{so0}, 1")
    a(f"s_mul_i32 s{t1}, s{g}, {GS}")
    a(f"s_mul_i32 s{so0}, s{so0}, 2560")
    a(f"s_mul_i32 s{so1}, s{so1}, 2560")
    a(f"s_add_u32 s{so0}, s{so0}, s{t1}")
    a(f"s_add_u32 s{so1}, s{so1}, s{t1}")
    a(f"s_mov_b32 s{cnt}, 0")
    a(f"s_lshl_b32 s{t3}, s{cbk}, 1")
    a(f"s_add_u32 s{t3}, s{t3}, s{wc}")
    a(f"s_lshl_b32 s{t3}, s{t3}, 1")
    a(f"s_add_u32 s{t3}, s{t3}, s{wr}")

    def reads(step, st):
        out = []
        for i in range(2):
            out.append(f"ds_read_b128 {v(FA(st,i),4)}, v{aCur[i]} offset:{step*32}")
            for t in range(2):
                out.append(f"ds_read_b64_tr_b16 {v(FB(st,i)+2*t,2)}, v{bCur[i]} offset:{(16*step+4*t)*256}")
        return out
    def dots(st):
        out = []; o2 = []
        for k in range(4):
            u = utmp + 2*k
            out += [f"v_lshlrev_b32 v{u}, 16, v{FA(st,0)+k}", f"v_and_b32 v{u+1}, s{himask}, v{FA(st,0)+k}"]
            o2 += [f"v_fmac_f32 v{vsq}, v{u}, v{u}", f"v_fmac_f32 v{vsq+1}, v{u+1}, v{u+1}"]
        return out[:4] + o2[:2] + out[4:6] + o2[2:4] + out[6:] + o2[4:]
    join = a.label("qjoin")
    def path(md):
        for bi in range(2):
            if bi: a(f"s_xor_b32 s{t3}, s{t3}, 1")
            if md[bi] == 'q':
                a(f"s_lshl_b32 s{t0}, s{t3}, 3")
                a(f"s_mov_b32 s{t2}, {163840-1280}")
                a(f"s_mov_b32 s{t1}, {163840-2560}")
                a(f"v_lshlrev_b32 v{tmp3}, 3, v{r}")
                for g4 in range(4):
                    e = eaddr[bi*4+g4]
                    a(f"v_add3_u32 v{tmp}, s{t0}, v{h}, {2*g4}")
                    a(f"v_mul_u32_u24 v{tmp2}, 205, v{tmp}")
                    a(f"v_lshrrev_b32 v{tmp2}, 10, v{tmp2}")
                    a(f"v_lshl_add_u32 v{e}, v{tmp}, 8, v{tmp3}")
                    a(f"v_mul_u32_u24 v{tmp}, s{t2}, v{tmp2}")
                    a(f"v_lshrrev_b32 v{tmp2}, 1, v{tmp2}")
                    a(f"v_subrev_u32 v{tmp}, {KVO}, v{tmp}")
                    a(f"v_mul_u32_u24 v{tmp2}, s{t1}, v{tmp2}")
                    a(f"v_max_i32 v{tmp}, v{tmp}, v{tmp2}")
                    a(f"v_add_u32 v{e}, v{tmp}, v{e}")
            else:
                e = eaddr[bi*4]
                a(f"s_lshl_b32 s{t0}, s{t3}, 5")
                a(f"s_sub_u32 s{t0}, s{t0}, 160")
                a(f"s_mov_b32 s{t2}, {163840-320}")
                a(f"v_mul_u32_u24 v{tmp3}, 320, v{h}")
                a(f"v_add_u32 v{tmp3}, {KVO+1280}, v{tmp3}")
                a(f"v_add_u32 v{tmp}, s{t0}, v{r}")
                a(f"v_mul_u32_u24 v{tmp2}, 205, v{tmp}")
                a(f"v_lshrrev_b32 v{tmp2}, 12, v{tmp2}")
                a(f"v_lshl_add_u32 v{e}, v{tmp}, 4, v{tmp3}")
                a(f"v_mad_u32_u24 v{e}, v{tmp2}, s{t2}, v{e}")
                a(f"v_lshrrev_b32 v{tmp2}, 2, v{tmp2}")
                a(f"v_lshl_or_b32 v{e}, v{tmp2}, 25, v{e}")
        lp = a.label("qloop"); lp2 = a.label("qloop"); hook = a.label("qhook"); hb = a.label("qhb"); hc = a.label("qhc")
        a(f"s_waitcnt vmcnt(17)")
        a(f"s_barrier")
        P.stamp(0)
        for x in reads(0, 0): a(x)
        PT = int(QPT == 1)
        def body(dma_):
            dA, dB = (dmaA(), dmaB()) if dma_ else ([None]*4, [None]*4)
            for step in range(4):
                st = step & 1
                mf = []
                for ai in range(2):
                    for bi in range(2):
                        A_, B_ = (FA(st,ai), FB(st,bi)) if md[bi] == 'v' else (FB(st,bi), FA(st,ai))
                        mf.append(f"v_mfma_f32_32x32x16_bf16 {v(ACC(ai,bi),16)}, {v(A_,4)}, {v(B_,4)}, {v(ACC(ai,bi),16)}")
                cs = f"v_mfma_f32_16x16x32_bf16 {v(vcs,4)}, {v(vones,4)}, {v(FB(st,0),4)}, {v(vcs,4)}"
                sm = f"v_mfma_f32_16x16x32_bf16 {v(vsum,4)}, {v(vones,4)}, {v(FA(st,0),4)}, {v(vsum,4)}"
                d = dots(st)
                a("s_waitcnt lgkmcnt(0)")
                if step == 0:
                    e0 = [f"s_add_u32 m0, s{m0A}, s{dst_st}"] if dma_ else []
                    e1, e2 = [dA[0]], [dA[1]]
                elif step == 1:
                    e0 = [dA[2]]; e1 = [f"buffer_load_dword v3, v{vpt}, {W}, s{pto} offen sc1", f"s_add_u32 s{pto}, s{pto}, 1152"] if dma_ and PT else []
                    e2 = [dA[3], f"s_add_u32 m0, s{m0B}, s{dst_st}", f"s_mov_b32 s{dst_st}, s{rd_st}"] if dma_ else []
                elif step == 2:
                    e0 = [dB[0], f"s_add_u32 s{rd_st}, s{rd_st}, {STAGE}", f"s_cmp_eq_u32 s{rd_st}, {4*STAGE}", f"s_cselect_b32 s{rd_st}, 0, s{rd_st}"]
                    e1 = [dB[1], f"s_add_u32 s{cnt}, s{cnt}, 1"]
                    e2 = [dB[2]] + [f"v_add_u32 v{aCur[i]}, s{rd_st}, v{aBase[i]}" for i in range(2)] + [f"v_add_u32 v{bCur[i]}, s{rd_st}, v{bBase[i]}" for i in range(2)]
                    if not dma_: e2 += [f"s_cmp_lg_u32 s{cnt}, 9"]
                if step < 3:
                    rd = reads(step+1, st^1)
                    seq = [mf[0]] + rd[:3] + d[:3] + [mf[1]] + rd[3:] + e0 + d[3:5] + [cs] + d[5:7] + [mf[2]] + e1 + d[7:12] + [mf[3]] + d[12:] + e2 + [sm]
                else:
                    rd = reads(0, st^1)
                    w2 = a.label("qw")
                    seq = [mf[0]] + ([dB[3], f"s_waitcnt vmcnt({16+2*PT})", "s_barrier"] if dma_ else [f"s_waitcnt vmcnt({10+PT})", f"s_cbranch_scc1 {w2}", "s_waitcnt vmcnt(2)", f"{w2}:", "s_barrier"]) + rd[:3] + [mf[1]] + rd[3:] + d[:4] + [cs] + d[4:6] + [mf[2]] + d[6:12] + [mf[3]] + d[12:] + [sm]
                for x in seq:
                    if x: a(x)
        a(f".p2align 6")
        a(f"{lp}:")
        body(True)
        for x in offs() + [f"s_cmp_eq_u32 s{cnt}, 2", f"s_cbranch_scc1 {hook}", f"s_cmp_lt_u32 s{cnt}, 7", f"s_cbranch_scc1 {lp}"]: a(x)
        if not os.environ.get('NOCP'):
            a(f"s_sub_u32 s{t0}, 127, s{rpj}")
            code_prefetch(a, "L_att_begin", "L_mk_end", t0, 50, t1, lane, 2)
        a(f"buffer_load_dword v{vn}, v{vid}, {W}, 0 offen sc1")
        a(f"buffer_load_dword v3, v{vpt}, {W}, {f's{pto}' if PT else 0} offen sc1")
        a(f"{lp2}:")
        body(False)
        for x in [f"s_cmp_lt_u32 s{cnt}, 10", f"s_cbranch_scc1 {lp2}"]: a(x)
        sp = a.label("qsp"); ok = a.label("qok"); np_ = a.label("qnp")
        hk = [f"s_mov_b32 s{spin}, {c['SPIN']}",
              f"{sp}:", f"v_readfirstlane_b32 s{nonce}, v{vn}", f"s_cmp_lg_u32 s{nonce}, 0", f"s_cbranch_scc1 {ok}",
              f"global_load_dword v{vn}, v{vz}, s[48:49] sc1", f"s_sub_u32 s{spin}, s{spin}, 1", "s_waitcnt vmcnt(0)", f"s_cbranch_scc0 {sp}",
              f"{ok}:", f"s_or_b32 s{myid}, s{myid}, s{nonce}", f"s_lshl_b32 s{t1}, s{g}, 7", f"s_add_u32 s{t1}, s{t1}, {WS_FL}",
              f"s_cmp_lg_u32 s{wv}, 0", f"s_cbranch_scc1 {lp}",
              f"s_lshl_b32 s{t0}, s{m}, 2", f"s_add_u32 s{t0}, s{t0}, s{t1}", f"v_mov_b32 v{vn}, s{myid}", "s_mov_b64 exec, 1",
              f"buffer_store_dword v{vn}, v{vz}, {W}, s{t0} offen sc0 sc1", "s_mov_b64 exec, -1", f"s_branch {lp}",
              ]
        c['tail'].append((hook, hk[:-1], lp))
        a(f"s_waitcnt vmcnt(1)")
        P.stamp(1)
        a(f"s_mov_b32 s{spin}, {c['SPIN']}")
        pl = a.label("idp"); pk = a.label("idk")
        a(f"{pl}:")
        a(f"v_xor_b32 v{tmp}, s{myid}, v{vn}")
        a(f"v_cmp_lt_u32 vcc, 15, v{tmp}")
        a(f"s_cbranch_vccz {pk}")
        a(f"buffer_load_dword v{vn}, v{vid}, {W}, 0 offen sc1")
        a(f"s_sub_u32 s{spin}, s{spin}, 1")
        a(f"s_waitcnt vmcnt(0)")
        a(f"s_cbranch_scc0 {pl}")
        a(f"{pk}:")
        a(f"v_cmp_ne_u32 vcc, 0, v{tmp}")
        a(f"v_add_f32 v{vsq}, v{vsq}, v{vsq+1}")
        a(f"v_mov_b32 v{tmp}, v{vsq}")
        a(f"s_cmp_lg_u64 vcc, 0")
        a(f"s_cselect_b32 s{pure}, 0, {0 if c['IMPURE'] else 1}")
        a(f"v_permlane32_swap_b32 v{tmp}, v{vsq}")
        a("s_nop 1")
        a(f"v_add_f32 v{vsq}, v{vsq}, v{tmp}")
        a(f"v_mul_f32 v{vsum}, {f32(1.0/D)}, v{vsum}")
        a(f"v_mul_f32 v{vsq}, {f32(1.0/D)}, v{vsq}")
        a(f"v_fma_f32 v{vsq}, -v{vsum}, v{vsum}, v{vsq}")
        a(f"v_max_f32 v{vsq}, 0, v{vsq}")
        a(f"v_add_f32 v{vsq}, {f32(EPS)}, v{vsq}")
        a(f"v_rsq_f32 v{vsq}, v{vsq}")
        a(f"v_sub_f32 v{vsum}, 0, v{vsum}")
        a(f"s_lshl_b32 s{t2}, s{wv}, 7")
        a(f"s_add_u32 s{t2}, s{t2}, {STATS}")
        a(f"v_lshl_add_u32 v{tmp}, v{r}, 2, s{t2}")
        a(f"s_lshl_b32 s{t0}, s{wc}, 8")
        a(f"s_lshl_b32 s{t1}, s{wr}, 7")
        a(f"s_add_u32 s{t0}, s{t0}, s{t1}")
        a(f"s_add_u32 s{t0}, s{t0}, {STATS+1024}")
        a(f"v_lshl_add_u32 v{tmp2}, v{r}, 2, s{t0}")
        a(f"ds_write_b32 v{tmp}, v{vsq}")
        a(f"ds_write_b32 v{tmp}, v{vsum} offset:512")
        a(f"ds_write_b32 v{tmp2}, v{vcs}")
        Rr = [134, 138]; Mr = [136, 206]; Cr = [216, 218]; RR, MM = 140, 172
        x1, x2, x3, x4, x5, x6 = 4, 5, 6, 7, 8, 9
        a(f"v_xor_b32 v{x1}, 128, v{tmp}")
        a(f"v_xor_b32 v{x2}, 128, v{tmp2}")
        a(f"v_lshl_add_u32 v{x3}, v{h}, 4, s{t0}")
        a(f"v_xor_b32 v{x4}, 128, v{x3}")
        a(f"v_lshl_add_u32 v{x5}, v{h}, 4, s{t2}")
        a(f"v_xor_b32 v{x6}, 128, v{x5}")
        a(f"s_waitcnt lgkmcnt(0)")
        a(f"s_barrier")
        if 'q' in md:
            for ai, ad in enumerate((tmp, x1)):
                a(f"ds_read_b32 v{Rr[ai]}, v{ad}")
                a(f"ds_read_b32 v{Mr[ai]}, v{ad} offset:512")
        for bi in range(2):
            if md[bi] == 'q':
                for g4 in range(4): a(f"ds_read_b128 {v(32+bi*16+g4*4,4)}, v{(x3,x4)[bi]} offset:{g4*32}")
            else:
                a(f"ds_read_b32 v{Cr[bi]}, v{(tmp2,x2)[bi]}")
        if 'v' in md:
            for ai in range(2):
                for g4 in range(4): a(f"ds_read_b128 {v(MM+ai*16+g4*4,4)}, v{(x5,x6)[ai]} offset:{512+g4*32}")
                for g4 in range(4): a(f"ds_read_b128 {v(RR+ai*16+g4*4,4)}, v{(x5,x6)[ai]} offset:{g4*32}")
        a(f"s_waitcnt lgkmcnt(0)")
        if 'q' in md:
            for ai in range(2): a(f"v_mul_f32 v{Rr[ai]}, {f32(QS2)}, v{Rr[ai]}")
        for ai in range(2):
            for bi in range(2):
                A0 = ACC(ai,bi); sof = (so0, so1)[ai]
                if md[bi] == 'q':
                    for p in range(8): a(f"v_pk_fma_f32 {v(A0+2*p,2)}, {v(32+bi*16+2*p,2)}, {v(Mr[ai],2)}, {v(A0+2*p,2)} op_sel_hi:[1,0,1]")
                    for p in range(8): a(f"v_pk_mul_f32 {v(A0+2*p,2)}, {v(A0+2*p,2)}, {v(Rr[ai],2)} op_sel_hi:[1,0]")
                else:
                    for p in range(8): a(f"v_pk_fma_f32 {v(A0+2*p,2)}, {v(MM+ai*16+2*p,2)}, {v(Cr[bi],2)}, {v(A0+2*p,2)} op_sel_hi:[1,0,1]")
                    for p in range(8): a(f"v_pk_mul_f32 {v(A0+2*p,2)}, {v(A0+2*p,2)}, {v(RR+ai*16+2*p,2)}")
                for p in range(8): a(f"v_cvt_pk_bf16_f32 v{A0+p}, v{A0+2*p}, v{A0+2*p+1}")
                if md[bi] == 'q':
                    both([f"buffer_store_dwordx2 {v(A0+2*g4,2)}, v{eaddr[bi*4+g4]}, {W}, s{sof} offen" for g4 in range(4)])
                else:
                    both([f"buffer_store_dwordx4 {v(A0+4*g2,4)}, v{eaddr[bi*4]}, {W}, s{sof} offen offset:{640*g2}" for g2 in range(2)])
    lv = a.label("pv"); lqv = a.label("pqv"); lvq = a.label("pvq")
    a(f"s_cmp_ge_u32 s{t3}, 6")
    a(f"s_cbranch_scc1 {lv}")
    a(f"s_cmp_eq_u32 s{t3}, 4")
    a(f"s_cbranch_scc1 {lqv}")
    a(f"s_cmp_eq_u32 s{t3}, 5")
    a(f"s_cbranch_scc1 {lvq}")
    path('qq'); a(f"s_branch {join}")
    a(f"{lqv}:"); path('qv'); a(f"s_branch {join}")
    a(f"{lvq}:"); path('vq'); a(f"s_branch {join}")
    a(f"{lv}:"); path('vv')
    a(f"{join}:")
    a(f"s_lshl_b32 s{t0}, s{g}, 7")
    a(f"s_add_u32 s{t0}, s{t0}, s{rpj}")
    a(f"s_lshl_b32 s{t0}, s{t0}, 2")
    a(f"s_add_u32 s{t0}, s{t0}, {FL0}")
    flag(t0, 132)
    P.stamp(2)
    dn = a.label("rdn"); jn = a.label("rjn")
    rl = rp.rp_loads(R0, 94, 95, 96, 240, 241, RL[0]) + rp.rp_loads(R1, 97, 98, 99, 242, 243, RL[1])
    f0 = rp.rp_finish(SW, t0, t1, [(RL[0],0), (RL[0],1), (RL[1],0), (RL[1],1)], RO[0], RJ[0], 0, "sc0 sc1")
    f1 = rp.rp_finish(SW, t0, t1, [(RL[0],2), (RL[0],3), (RL[1],2), (RL[1],3)], RO[1], RJ[1], 0, "sc0 sc1")
    pm = [f"s_mov_b32 s{t0}, 0x05040100", f"s_mov_b32 s{t1}, 0x07060302", f"s_cmp_ge_u32 s{rpj}, 60", f"s_cbranch_scc1 {dn}"] + f0[:16] + f1[:16] + [f"s_branch {jn}", f"{dn}:"]
    for k in range(2): pm += rp.rp_finish(SW, t0, t1, [(RL[k],cc) for cc in range(4)], RO[k], RJ[k], 0)[:16]
    pm += [f"{jn}:"] + f0[17:25] + f1[17:25] + f0[26:34] + f1[26:34]
    return rl, pm, f0[-4:] + f1[-4:]
```

```python
from asmlib import *
from layout import *
import rp
STAGE = 16*1040 + 16384
BOFF = 16*1040
STATS = 4*STAGE

def qkv(c):
    a, P, both, flag = c['a'], c['P'], c['both'], c['flag']
    SW, SX, SQ, WS = c['SW'], c['SX'], c['SOUT'], c['WS']
    g, m, wv, pure, myid, spin, nonce, rpj = c['g'], c['m'], c['wv'], c['pure'], c['myid'], c['spin'], c['nonce'], c['rpj']
    t0, t1, t2, t3 = c['t0'], c['t1'], c['t2'], c['t3']
    lane = c['lane']; RJ = c['RJ']; RO = c['RO']
    soffA, soffB, dst_st, rd_st, cnt, wr, wc = 37, 38, 39, 40, 41, 42, 43
    so0, so1, m0A, m0B, kc, baseA, baseB, himask, rb, cbk = 58, 59, 60, 61, 62, 63, 29, 3, 92, 93
    R0, R1 = 20, 44; pto = 30; vst = 136
    vA = [4,5,6,7]; vB = [8,9,10,11]
    aBase = [12,13]; bBase = [14,15]; aCur = [16,17]; bCur = [18,19]
    vsq, vsum, vcs, vones, utmp = 206, 208, 212, 20, 216
    eaddr = list(range(24, 32))
    FA = lambda st, i: 32 + st*8 + i*4
    FB = lambda st, i: 48 + st*8 + i*4
    ACC = lambda ai, bi: 64 + (ai*2 + bi)*16
    r, h, tmp, tmp2, tmp3, tmp4 = 129, 130, 131, 132, 133, 134
    vn, vid, vz, vpt = 135, 137, 139, 128
    RL = [208, 224]
    W = f"s[{SW}:{SW+3}]"
    if not os.environ.get('NOCP0'):
        a(f"s_xor_b32 s{t0}, s{wv}, 3")
        a(f"s_lshl_b32 s{t0}, s{t0}, 5")
        a(f"s_add_u32 s{t0}, s{t0}, s{m}")
        code_prefetch(a, c['name'], "L_mk_end", t0, 94, t1, lane, 2, True)
    a(f"s_lshr_b32 s{rb}, s{m}, 1")
    a(f"s_and_b32 s{cbk}, s{m}, 1")
    a(f"v_lshrrev_b32 v{tmp}, 5, v{lane}")
    a(f"v_lshlrev_b32 v{tmp}, 5, v{tmp}")
    a(f"v_bfe_u32 v{tmp2}, v{lane}, 3, 1")
    a(f"v_add_u32 v{tmp}, v{tmp}, v{tmp2}")
    a(f"v_and_b32 v{tmp2}, 16, v{lane}")
    a(f"v_add_u32 v{tmp}, v{tmp}, v{tmp2}")
    a(f"s_lshr_b32 s{wr}, s{wv}, 1")
    a(f"s_and_b32 s{wc}, s{wv}, 1")
    a(f"s_lshl_b32 s{t0}, s{wr}, 6")
    a(f"s_lshl_b32 s{t1}, s{wc}, 3")
    a(f"s_add_u32 s{t0}, s{t0}, s{t1}")
    a(f"v_add_u32 v{tmp}, s{t0}, v{tmp}")
    a(f"v_mul_u32_u24 v{tmp}, 1280, v{tmp}")
    a(f"v_and_b32 v{tmp2}, 7, v{lane}")
    a(f"v_lshl_add_u32 v{vA[0]}, v{tmp2}, 4, v{tmp}")
    for i in range(1, 4):
        a(f"v_add_u32 v{vA[i]}, {i*(2*1280 - 1040)}, v{vA[0]}")
    a(f"v_lshrrev_b32 v{tmp}, 4, v{lane}")
    a(f"v_lshlrev_b32 v{tmp2}, 2, v{tmp}")
    a(f"v_and_b32 v{tmp3}, 15, v{lane}")
    a(f"v_xor_b32 v{tmp2}, v{tmp2}, v{tmp3}")
    a(f"s_cmp_eq_u32 s{cbk}, 0")
    a(f"s_cselect_b32 s{t1}, 10, 4")
    a(f"s_cselect_b32 s{t2}, 15, 13")
    a(f"s_lshl_b32 s{t0}, s{wv}, 4")
    a(f"v_add_u32 v{tmp}, s{t0}, v{tmp}")
    a(f"v_mul_u32_u24 v{tmp}, 3840, v{tmp}")
    a(f"v_cmp_le_u32 vcc, s{t1}, v{tmp2}")
    a(f"v_add_u32 v{tmp3}, 1120, v{tmp}")
    a(f"v_min_u32 v{tmp2}, s{t2}, v{tmp2}")
    a(f"v_cndmask_b32 v{tmp}, v{tmp}, v{tmp3}, vcc")
    a(f"v_lshl_add_u32 v{vB[0]}, v{tmp2}, 4, v{tmp}")
    for i in range(1, 4):
        a(f"v_add_u32 v{vB[i]}, {i*(4*3840 - 1024)}, v{vB[0]}")
    KR = [int(x) for x in os.environ.get('KR', '3,0,1').split(',')]
    a(f"s_mul_i32 s{kc}, s{rb}, {KR[0]}")
    a(f"s_mul_i32 s{t0}, s{cbk}, {KR[1]}")
    a(f"s_add_u32 s{kc}, s{kc}, s{t0}")
    a(f"s_mul_i32 s{t0}, s{g}, {KR[2]}")
    a(f"s_add_u32 s{kc}, s{kc}, s{t0}")
    a(f"s_mul_i32 s{t0}, s{kc}, 205")
    a(f"s_lshr_b32 s{t0}, s{t0}, 11")
    a(f"s_mul_i32 s{t0}, s{t0}, 10")
    a(f"s_sub_u32 s{kc}, s{kc}, s{t0}")
    a(f"s_mul_i32 s{baseA}, s{rb}, {128*1280}")
    a(f"s_mul_i32 s{baseB}, s{g}, 160")
    a(f"s_mul_i32 s{t0}, s{cbk}, 1376")
    a(f"s_add_u32 s{baseB}, s{baseB}, s{t0}")
    a(f"s_mul_i32 s{m0A}, s{wv}, {4*1040}")
    a(f"s_lshl_b32 s{m0B}, s{wv}, 12")
    a(f"s_add_u32 s{m0B}, s{m0B}, {BOFF}")
    a(f"v_mov_b32 v{vz}, 0")
    P.stamp("pa")
    a(f"s_waitcnt lgkmcnt(0)")
    srd(a, SX, 4, S*D*2)
    srd(a, SQ, 6, D*3*D*2)
    l0 = a.label("ntag")
    a(f"s_or_b32 s{t0}, s2, s{wv}")
    a(f"s_cbranch_scc1 {l0}")
    a(f"s_lshl_b32 s{nonce}, s{nonce}, 5")
    a(f"s_or_b32 s{nonce}, s{nonce}, 16")
    a(f"v_mov_b32 v{tmp}, s{nonce}")
    a(f"s_mov_b64 exec, 1")
    a(f"global_store_dword v{vz}, v{tmp}, s[48:49] sc0 sc1")
    a(f"s_mov_b64 exec, -1")
    a(f"{l0}:")
    dmaA = lambda: [f"buffer_load_dwordx4 v{vA[i]}, s[{SX}:{SX+3}], s{soffA} offen offset:{1040*i} lds" for i in range(4)]
    dmaB = lambda: [f"buffer_load_dwordx4 v{vB[i]}, s[{SQ}:{SQ+3}], s{soffB} offen offset:{1024*i} lds" for i in range(4)]
    def offs():
        return [f"s_lshl_b32 s{soffA}, s{kc}, 7", f"s_add_u32 s{soffA}, s{soffA}, s{baseA}",
                f"s_mul_i32 s{soffB}, s{kc}, {64*3840}", f"s_add_u32 s{soffB}, s{soffB}, s{baseB}",
                f"s_add_u32 s{kc}, s{kc}, 1", f"s_cmp_eq_u32 s{kc}, 10", f"s_cselect_b32 s{kc}, 0, s{kc}"]
    TW = int(os.environ.get('TW', '1'))
    def late():
        a(f"global_load_dword v{vn}, v{vz}, s[48:49] sc1")
        if TW:
            l1 = a.label("ntw")
            a(f"s_cmp_lg_u32 s{wv}, 2")
            a(f"s_cbranch_scc1 {l1}")
            a(f"s_load_dwordx2 s[6:7], s[0:1], {KA_OUT}")
            a(f"v_lshlrev_b32 v138, {19 if TW == 2 else 21}, v{lane}")
            a(f"v_and_b32 v140, 0x200000, v138")
            a(f"buffer_load_dword v3, v138, {W}, 0 offen sc1")
            for p_ in (50, 52, 54, 56): a(f"global_load_dword v3, v{vz}, s[{p_}:{p_+1}]")
            a(f"s_waitcnt lgkmcnt(0)")
            a(f"global_load_dword v3, v140, s[6:7] sc1")
            a(f"{l1}:")
    def chunk(cc):
        a(f"s_add_u32 m0, s{m0A}, {cc*STAGE}")
        for x in offs(): a(x)
        for x in dmaA(): a(x)
        a(f"s_add_u32 m0, s{m0B}, {cc*STAGE}")
        a("s_nop 0")
        for x in dmaB(): a(x)
    chunk(0)
    P.stamp("pb")
    C1 = os.environ.get('C1', '22')
    def c1(pos):
        if C1[0] == str(pos):
            a(f"s_add_u32 m0, s{m0A}, {STAGE}")
            for x in offs(): a(x)
            for x in dmaA(): a(x)
        if C1[1] == str(pos):
            a(f"s_add_u32 m0, s{m0B}, {STAGE}")
            a("s_nop 0")
            for x in dmaB(): a(x)
            for x in offs(): a(x)
            late()
    srd(a, SW, WS, WS_SPAN)
    a(f"s_lshl_b32 s{rpj}, s{m}, 2")
    a(f"s_add_u32 s{rpj}, s{rpj}, s{wv}")
    a(f"s_lshl_b32 s{so0}, s{rpj}, 3")
    a(f"s_add_u32 s{so0}, s{so0}, s{g}")
    a(f"s_add_u32 s{so1}, s{so0}, 480")
    a(f"s_sub_u32 s{t0}, s{rpj}, 60")
    a(f"s_mul_i32 s{t1}, s{t0}, 205")
    a(f"s_lshr_b32 s{t1}, s{t1}, 10")
    a(f"s_mul_i32 s{t1}, s{t1}, 70")
    a(f"s_lshl_b32 s{t0}, s{t0}, 1")
    a(f"s_add_u32 s{t1}, s{t1}, s{t0}")
    a(f"s_mul_i32 s{t0}, s{g}, 10")
    a(f"s_add_u32 s{t1}, s{t1}, s{t0}")
    a(f"s_add_u32 s{t1}, s{t1}, 960")
    a(f"s_add_u32 s{t2}, s{t1}, 1")
    a(f"s_cmp_ge_u32 s{rpj}, 60")
    a(f"s_cselect_b32 s{so0}, s{t1}, s{so0}")
    a(f"s_cselect_b32 s{so1}, s{t2}, s{so1}")
    tv = (tmp, tmp2, tmp3, tmp4)
    rp.rp_addr(a, so0, 50, R0, 94, 95, 96, spin, pure, (t0,t1,t2,t3), lane, tv, 240, 241, RJ[0])
    c1(0)
    rp.rp_addr(a, so1, 50, R1, 97, 98, 99, spin, pure, (t0,t1,t2,t3), lane, tv, 242, 243, RJ[1])
    a(f"s_cmp_ge_u32 s{rpj}, 60")
    a(f"s_cselect_b64 vcc, 0, -1")
    a(f"v_add_u32 v{tmp}, 64, v{RJ[0]}")
    a(f"s_cmp_ge_u32 s{so0}, 1640")
    a(f"s_cselect_b32 s{R0+2}, 0, s{R0+2}")
    a(f"s_cselect_b32 s{R1+2}, 0, s{R1+2}")
    a(f"s_cselect_b32 s{t0}, {WS_SPAN}, 0")
    a(f"v_cndmask_b32 v{RJ[1]}, v{RJ[1]}, v{tmp}, vcc")
    a(f"v_or_b32 v{RJ[0]}, s{t0}, v{RJ[0]}")
    a(f"v_or_b32 v{RJ[1]}, s{t0}, v{RJ[1]}")
    a(f"s_mul_i32 s{t1}, s{g}, {GS}")
    QPT = int(os.environ.get('QPT', '2'))
    if QPT == 1:
        a(f"v_min_u32 v{tmp}, 8, v{lane}")
        a(f"v_lshlrev_b32 v{vpt}, 7, v{tmp}")
        a(f"s_mul_i32 s{t0}, s{rpj}, 7680")
        a(f"s_add_u32 s{pto}, s{t0}, s{t1}")
    else:
        n0, n1_ = (20, 28) if QPT == 0 else (60, 60)
        a(f"v_min_u32 v{tmp}, {n1_+3}, v{lane}")
        a(f"s_mul_i32 s{t0}, s{rpj}, {n0*128}")
        a(f"s_add_u32 s{t0}, s{t0}, s{t1}")
        a(f"v_lshl_add_u32 v{vpt}, v{tmp}, 7, s{t0}")
        a(f"s_add_u32 s{t0}, s{wv}, 2")
        a(f"s_mul_i32 s{t0}, s{t0}, 163840")
        a(f"s_add_u32 s{t0}, s{t0}, s{t1}")
        a(f"s_lshl_b32 s{t2}, s{m}, 10")
        a(f"s_add_u32 s{t0}, s{t0}, s{t2}")
        a(f"s_sub_u32 s{t0}, s{t0}, {n0*128}")
        a(f"v_lshl_add_u32 v{tmp2}, v{tmp}, 7, s{t0}")
        a(f"v_cmp_lt_u32 vcc, {n0-1}, v{lane}")
        a(f"s_lshl_b32 s{t0}, s{g}, 9")
        a(f"s_add_u32 s{t0}, s{t0}, {FL0 - n1_*128}")
        a(f"v_cndmask_b32 v{vpt}, v{vpt}, v{tmp2}, vcc")
        if os.environ.get('NOQPT'): a(f"v_max_u32 v{tmp}, {n1_}, v{tmp}")
        a(f"v_lshl_add_u32 v{tmp2}, v{tmp}, 7, s{t0}")
        a(f"v_cmp_lt_u32 vcc, {n1_-1}, v{tmp}")
        a(f"v_cndmask_b32 v{vpt}, v{vpt}, v{tmp2}, vcc")
    c1(1)
    P.stamp('pc')
    a(f"s_mov_b32 s{dst_st}, {2*STAGE}")
    a(f"s_mov_b32 s{rd_st}, 0")
    a(f"v_and_b32 v{r}, 31, v{lane}")
    a(f"v_lshrrev_b32 v{h}, 5, v{lane}")
    a(f"s_lshl_b32 s{t1}, s{g}, 7")
    a(f"s_add_u32 s{t1}, s{t1}, {WS_FL}")
    a(f"v_lshl_add_u32 v{vid}, v{r}, 2, s{t1}")
    a(f"v_bfe_u32 v{tmp}, v{r}, 1, 3")
    a(f"v_mul_u32_u24 v{tmp}, 1040, v{tmp}")
    a(f"v_and_b32 v{tmp2}, 1, v{r}")
    a(f"v_lshl_add_u32 v{tmp}, v{tmp2}, 7, v{tmp}")
    a(f"v_lshrrev_b32 v{tmp2}, 4, v{r}")
    a(f"v_lshl_add_u32 v{tmp}, v{tmp2}, 8, v{tmp}")
    a(f"v_lshl_add_u32 v{tmp}, v{h}, 4, v{tmp}")
    a(f"s_mul_i32 s{t0}, s{wr}, {8*1040}")
    a(f"s_lshl_b32 s{t1}, s{wc}, 9")
    a(f"s_add_u32 s{t2}, s{t0}, s{t1}")
    a(f"v_add_u32 v{aBase[0]}, s{t2}, v{tmp}")
    a(f"s_xor_b32 s{t1}, s{t1}, 512")
    a(f"s_add_u32 s{t2}, s{t0}, s{t1}")
    a(f"v_add_u32 v{aBase[1]}, s{t2}, v{tmp}")
    a(f"v_bfe_u32 v{tmp}, v{lane}, 2, 2")
    a(f"v_lshl_add_u32 v{tmp2}, v{h}, 3, v{tmp}")
    a(f"v_lshlrev_b32 v{tmp2}, 8, v{tmp2}")
    a(f"v_bfe_u32 v{tmp3}, v{lane}, 4, 1")
    a(f"v_lshl_add_u32 v{tmp2}, v{tmp3}, 5, v{tmp2}")
    a(f"v_and_b32 v{tmp3}, 3, v{lane}")
    a(f"v_lshl_add_u32 v{tmp2}, v{tmp3}, 3, v{tmp2}")
    a(f"v_add_u32 v{tmp2}, {BOFF}, v{tmp2}")
    a(f"s_lshl_b32 s{t0}, s{wc}, 1")
    a(f"s_add_u32 s{t0}, s{t0}, s{wr}")
    a(f"v_xor_b32 v{tmp3}, s{t0}, v{tmp}")
    a(f"v_lshl_add_u32 v{bBase[0]}, v{tmp3}, 6, v{tmp2}")
    a(f"v_xor_b32 v{tmp3}, 1, v{tmp3}")
    a(f"v_lshl_add_u32 v{bBase[1]}, v{tmp3}, 6, v{tmp2}")
    for i in range(2):
        a(f"v_mov_b32 v{aCur[i]}, v{aBase[i]}")
        a(f"v_mov_b32 v{bCur[i]}, v{bBase[i]}")
    SQM = int(os.environ.get('SQM', '0'))
    for i in range(2 if SQM else 0, 18 if SQM else 10):
        a(f"v_mov_b32 v{vsq+i}, 0")
    a(f"v_lshrrev_b32 v{tmp}, 2, v{lane}")
    a(f"v_xor_b32 v{tmp}, v{tmp}, v{lane}")
    a(f"v_bfe_i32 v{tmp}, v{tmp}, 2, 1")
    a(f"v_mov_b32 v{vones}, 0x3f803f80")
    a(f"v_bfi_b32 v{vones}, v{tmp}, 0, v{vones}")
    for i in range(1, 4):
        a(f"v_mov_b32 v{vones+i}, v{vones}")
    a(f"s_mov_b32 s{himask}, 0xffff0000")
    for i in range(64):
        a(f"v_mov_b32 v{64+i}, 0")
    a(f"s_getreg_b32 s{myid}, hwreg(HW_REG_XCC_ID)")
    a(f"s_and_b32 s{myid}, s{myid}, 15")
    a(f"s_lshl_b32 s{t0}, s{rb}, 2")
    a(f"s_add_u32 s{so0}, s{t0}, s{wv}")
    a(f"s_xor_b32 s{so1}, s{so0}, 1")
    a(f"s_mul_i32 s{t1}, s{g}, {GS}")
    a(f"s_mul_i32 s{so0}, s{so0}, 2560")
    a(f"s_mul_i32 s{so1}, s{so1}, 2560")
    a(f"s_add_u32 s{so0}, s{so0}, s{t1}")
    a(f"s_add_u32 s{so1}, s{so1}, s{t1}")
    a(f"s_mov_b32 s{cnt}, 0")
    a(f"s_lshl_b32 s{t3}, s{cbk}, 1")
    a(f"s_add_u32 s{t3}, s{t3}, s{wc}")
    a(f"s_lshl_b32 s{t3}, s{t3}, 1")
    a(f"s_add_u32 s{t3}, s{t3}, s{wr}")

    def reads(step, st):
        out = []
        for i in range(2):
            out.append(f"ds_read_b128 {v(FA(st,i),4)}, v{aCur[i]} offset:{step*32}")
            for t in range(2):
                out.append(f"ds_read_b64_tr_b16 {v(FB(st,i)+2*t,2)}, v{bCur[i]} offset:{(16*step+4*t)*256}")
        return out
    def dots(st):
        out = []; o2 = []
        for k in range(4):
            u = utmp + 2*k
            out += [f"v_lshlrev_b32 v{u}, 16, v{FA(st,0)+k}", f"v_and_b32 v{u+1}, s{himask}, v{FA(st,0)+k}"]
            o2 += [f"v_fmac_f32 v{vsq}, v{u}, v{u}", f"v_fmac_f32 v{vsq+1}, v{u+1}, v{u+1}"]
        return out[:4] + o2[:2] + out[4:6] + o2[2:4] + out[6:] + o2[4:]
    join = a.label("qjoin")
    def path(md):
        for bi in range(2):
            if bi: a(f"s_xor_b32 s{t3}, s{t3}, 1")
            if md[bi] == 'q':
                a(f"s_lshl_b32 s{t0}, s{t3}, 3")
                a(f"s_mov_b32 s{t2}, {163840-1280}")
                a(f"s_mov_b32 s{t1}, {163840-2560}")
                a(f"v_lshlrev_b32 v{tmp3}, 3, v{r}")
                for g4 in range(4):
                    e = eaddr[bi*4+g4]
                    a(f"v_add3_u32 v{tmp}, s{t0}, v{h}, {2*g4}")
                    a(f"v_mul_u32_u24 v{tmp2}, 205, v{tmp}")
                    a(f"v_lshrrev_b32 v{tmp2}, 10, v{tmp2}")
                    a(f"v_lshl_add_u32 v{e}, v{tmp}, 8, v{tmp3}")
                    a(f"v_mul_u32_u24 v{tmp}, s{t2}, v{tmp2}")
                    a(f"v_lshrrev_b32 v{tmp2}, 1, v{tmp2}")
                    a(f"v_subrev_u32 v{tmp}, {KVO}, v{tmp}")
                    a(f"v_mul_u32_u24 v{tmp2}, s{t1}, v{tmp2}")
                    a(f"v_max_i32 v{tmp}, v{tmp}, v{tmp2}")
                    a(f"v_add_u32 v{e}, v{tmp}, v{e}")
            else:
                e = eaddr[bi*4]
                a(f"s_lshl_b32 s{t0}, s{t3}, 5")
                a(f"s_sub_u32 s{t0}, s{t0}, 160")
                a(f"s_mov_b32 s{t2}, {163840-320}")
                a(f"v_mul_u32_u24 v{tmp3}, 320, v{h}")
                a(f"v_add_u32 v{tmp3}, {KVO+1280}, v{tmp3}")
                a(f"v_add_u32 v{tmp}, s{t0}, v{r}")
                a(f"v_mul_u32_u24 v{tmp2}, 205, v{tmp}")
                a(f"v_lshrrev_b32 v{tmp2}, 12, v{tmp2}")
                a(f"v_lshl_add_u32 v{e}, v{tmp}, 4, v{tmp3}")
                a(f"v_mad_u32_u24 v{e}, v{tmp2}, s{t2}, v{e}")
                a(f"v_lshrrev_b32 v{tmp2}, 2, v{tmp2}")
                a(f"v_lshl_or_b32 v{e}, v{tmp2}, 25, v{e}")
        lp = a.label("qloop"); lp2 = a.label("qloop"); hook = a.label("qhook"); hb = a.label("qhb"); hc = a.label("qhc")
        c1(2)
        P.stamp("pd")
        lw = a.label("qfw")
        a(f"s_cmp_eq_u32 s{wv}, 2")
        a(f"s_waitcnt vmcnt({9+6*(TW>0)})")
        a(f"s_cbranch_scc1 {lw}")
        a(f"s_waitcnt vmcnt(9)")
        a(f"{lw}:")
        P.stamp("pe")
        a(f"s_barrier")
        P.stamp(0)
        for x in reads(0, 0): a(x)
        PT = int(QPT == 1)
        DE = int(os.environ.get('DE', '0'))
        def body(dma_):
            dA, dB = (dmaA(), dmaB()) if dma_ else ([None]*4, [None]*4)
            for step in range(4):
                st = step & 1
                mf = []
                for ai in range(2):
                    for bi in range(2):
                        A_, B_ = (FA(st,ai), FB(st,bi)) if md[bi] == 'v' else (FB(st,bi), FA(st,ai))
                        mf.append(f"v_mfma_f32_32x32x16_bf16 {v(ACC(ai,bi),16)}, {v(A_,4)}, {v(B_,4)}, {v(ACC(ai,bi),16)}")
                cs = f"v_mfma_f32_16x16x32_bf16 {v(vcs,4)}, {v(vones,4)}, {v(FB(st,0),4)}, {v(vcs,4)}"
                sm = f"v_mfma_f32_16x16x32_bf16 {v(vsum,4)}, {v(vones,4)}, {v(FA(st,0),4)}, {v(vsum,4)}"
                d = dots(st)
                if SQM:
                    q = [f"v_mfma_f32_4x4x4_16b_bf16 {v(utmp+4*k,4)}, {v(FA(st,0)+2*k,2)}, {v(FA(st,0)+2*k,2)}, {v(utmp+4*k,4)}" for k in range(2)]
                    d = [q[0]] + [None]*7 + [q[1]] + [None]*7
                a("s_waitcnt lgkmcnt(0)")
                if step == 0:
                    e0 = [f"s_add_u32 m0, s{m0A}, s{dst_st}"] if dma_ else []
                    e1, e2 = [dA[0]], [dA[1]]
                elif step == 1:
                    e0 = [dA[2]]; e1 = [f"buffer_load_dword v3, v{vpt}, {W}, s{pto} offen sc1", f"s_add_u32 s{pto}, s{pto}, 1152"] if dma_ and PT else []
                    e2 = [dA[3], f"s_add_u32 m0, s{m0B}, s{dst_st}", f"s_mov_b32 s{dst_st}, s{rd_st}"] if dma_ else []
                elif step == 2:
                    e0 = [dB[0], f"s_add_u32 s{rd_st}, s{rd_st}, {STAGE}", f"s_cmp_eq_u32 s{rd_st}, {3*STAGE}", f"s_cselect_b32 s{rd_st}, 0, s{rd_st}"]
                    e1 = [dB[1], f"s_add_u32 s{cnt}, s{cnt}, 1"]
                    e2 = [dB[2]] + [f"v_add_u32 v{aCur[i]}, s{rd_st}, v{aBase[i]}" for i in range(2)] + [f"v_add_u32 v{bCur[i]}, s{rd_st}, v{bBase[i]}" for i in range(2)]
                if DE and dma_:
                    strip = lambda e: [x for x in e if not x.endswith(" lds") and "m0" not in x]
                    if step == 0:
                        seq0 = [f"s_add_u32 m0, s{m0A}, s{dst_st}"]
                        e0, e1, e2 = [dA[0], dA[1]], [dA[2]], [dA[3], f"s_add_u32 m0, s{m0B}, s{dst_st}"]
                        a(seq0[0])
                    elif step == 1:
                        e0, e1, e2 = [dB[0], dB[1]], strip(e1) + [dB[2]], [dB[3]] + strip(e2)
                    elif step == 2:
                        e0, e1, e2 = strip(e0), strip(e1), strip(e2)
                    else: dB[3] = None
                if step < 3:
                    rd = reads(step+1, st^1)
                    seq = [mf[0]] + rd[:3] + d[:3] + [mf[1]] + rd[3:] + e0 + d[3:5] + [cs] + d[5:7] + [mf[2]] + e1 + d[7:12] + [mf[3]] + d[12:] + e2 + [sm]
                else:
                    rd = reads(0, st^1)
                    w2 = a.label("qw")
                    seq = [mf[0]] + ([dB[3], f"s_waitcnt vmcnt({8+PT})", "s_barrier"] if dma_ else ["s_waitcnt vmcnt(2)", "s_barrier"]) + rd[:3] + [mf[1]] + rd[3:] + d[:4] + [cs] + d[4:6] + [mf[2]] + d[6:12] + [mf[3]] + d[12:] + [sm]
                for x in seq:
                    if x: a(x)
        a(f".p2align 6")
        a(f"{lp}:")
        body(True)
        for x in offs() + [f"s_cmp_eq_u32 s{cnt}, 2", f"s_cbranch_scc1 {hook}", f"s_cmp_lt_u32 s{cnt}, 8", f"s_cbranch_scc1 {lp}"]: a(x)
        P.stamp("l1")
        if not os.environ.get('NOCP'):
            a(f"s_sub_u32 s{t0}, 127, s{rpj}")
            code_prefetch(a, "L_att_begin", "L_mk_end", t0, 50, t1, lane, 2)
        a(f"buffer_load_dword v{vn}, v{vid}, {W}, 0 offen sc1")
        a(f"buffer_load_dword v3, v{vpt}, {W}, {f's{pto}' if PT else 0} offen sc1")
        P.stamp("l2")
        a(f"{lp2}:")
        body(False)
        for x in [f"s_cmp_lt_u32 s{cnt}, 10", f"s_cbranch_scc1 {lp2}"]: a(x)
        sp = a.label("qsp"); ok = a.label("qok"); np_ = a.label("qnp")
        hk = [f"s_mov_b32 s{spin}, {c['SPIN']}",
              f"{sp}:", f"v_readfirstlane_b32 s{nonce}, v{vn}", f"s_cmp_lg_u32 s{nonce}, 0", f"s_cbranch_scc1 {ok}",
              f"global_load_dword v{vn}, v{vz}, s[48:49] sc1", f"s_sub_u32 s{spin}, s{spin}, 1", "s_waitcnt vmcnt(0)", f"s_cbranch_scc0 {sp}",
              f"{ok}:", f"s_or_b32 s{myid}, s{myid}, s{nonce}", f"s_lshl_b32 s{t1}, s{g}, 7", f"s_add_u32 s{t1}, s{t1}, {WS_FL}",
              f"s_cmp_lg_u32 s{wv}, 0", f"s_cbranch_scc1 {lp}",
              f"s_lshl_b32 s{t0}, s{m}, 2", f"s_add_u32 s{t0}, s{t0}, s{t1}", f"v_mov_b32 v{vn}, s{myid}", "s_mov_b64 exec, 1",
              f"buffer_store_dword v{vn}, v{vz}, {W}, s{t0} offen sc0 sc1", "s_mov_b64 exec, -1", f"s_branch {lp}",
              ]
        c['tail'].append((hook, hk[:-1], lp))
        P.stamp("l3")
        a(f"s_waitcnt vmcnt(1)")
        P.stamp(1)
        a(f"s_mov_b32 s{spin}, {c['SPIN']}")
        pl = a.label("idp"); pk = a.label("idk")
        a(f"{pl}:")
        a(f"v_xor_b32 v{tmp}, s{myid}, v{vn}")
        a(f"v_cmp_lt_u32 vcc, 15, v{tmp}")
        a(f"s_cbranch_vccz {pk}")
        a(f"buffer_load_dword v{vn}, v{vid}, {W}, 0 offen sc1")
        a(f"s_sub_u32 s{spin}, s{spin}, 1")
        a(f"s_waitcnt vmcnt(0)")
        a(f"s_cbranch_scc0 {pl}")
        a(f"{pk}:")
        if SQM:
            for k in range(4): a(f"v_add_f32 v{utmp+k}, v{utmp+k}, v{utmp+4+k}")
            a(f"s_mov_b32 vcc_lo, 0xaaaaaaaa")
            a(f"s_mov_b32 vcc_hi, 0xaaaaaaaa")
            a(f"v_cndmask_b32 v{utmp}, v{utmp}, v{utmp+1}, vcc")
            a(f"v_cndmask_b32 v{utmp+2}, v{utmp+2}, v{utmp+3}, vcc")
            a(f"s_mov_b32 vcc_lo, 0xcccccccc")
            a(f"s_mov_b32 vcc_hi, 0xcccccccc")
            a(f"v_cndmask_b32 v{vsq}, v{utmp}, v{utmp+2}, vcc")
        a(f"v_cmp_ne_u32 vcc, 0, v{tmp}")
        if not SQM: a(f"v_add_f32 v{vsq}, v{vsq}, v{vsq+1}")
        a(f"v_mov_b32 v{tmp}, v{vsq}")
        a(f"s_cmp_lg_u64 vcc, 0")
        a(f"s_cselect_b32 s{pure}, 0, {0 if c['IMPURE'] else 1}")
        a(f"v_permlane32_swap_b32 v{tmp}, v{vsq}")
        a("s_nop 1")
        a(f"v_add_f32 v{vsq}, v{vsq}, v{tmp}")
        a(f"v_mul_f32 v{vsum}, {f32(1.0/D)}, v{vsum}")
        a(f"v_mul_f32 v{vsq}, {f32(1.0/D)}, v{vsq}")
        a(f"v_fma_f32 v{vsq}, -v{vsum}, v{vsum}, v{vsq}")
        a(f"v_max_f32 v{vsq}, 0, v{vsq}")
        a(f"v_add_f32 v{vsq}, {f32(EPS)}, v{vsq}")
        a(f"v_rsq_f32 v{vsq}, v{vsq}")
        a(f"v_sub_f32 v{vsum}, 0, v{vsum}")
        a(f"s_lshl_b32 s{t2}, s{wv}, 7")
        a(f"s_add_u32 s{t2}, s{t2}, {STATS}")
        a(f"v_lshl_add_u32 v{tmp}, v{r}, 2, s{t2}")
        a(f"s_lshl_b32 s{t0}, s{wc}, 8")
        a(f"s_lshl_b32 s{t1}, s{wr}, 7")
        a(f"s_add_u32 s{t0}, s{t0}, s{t1}")
        a(f"s_add_u32 s{t0}, s{t0}, {STATS+1024}")
        a(f"v_lshl_add_u32 v{tmp2}, v{r}, 2, s{t0}")
        a(f"ds_write_b32 v{tmp}, v{vsq}")
        a(f"ds_write_b32 v{tmp}, v{vsum} offset:512")
        a(f"ds_write_b32 v{tmp2}, v{vcs}")
        Rr = [134, 138]; Mr = [136, 206]; Cr = [216, 218]; RR, MM = 140, 172
        x1, x2, x3, x4, x5, x6 = 4, 5, 6, 7, 8, 9
        a(f"v_xor_b32 v{x1}, 128, v{tmp}")
        a(f"v_xor_b32 v{x2}, 128, v{tmp2}")
        a(f"v_lshl_add_u32 v{x3}, v{h}, 4, s{t0}")
        a(f"v_xor_b32 v{x4}, 128, v{x3}")
        a(f"v_lshl_add_u32 v{x5}, v{h}, 4, s{t2}")
        a(f"v_xor_b32 v{x6}, 128, v{x5}")
        a(f"s_waitcnt lgkmcnt(0)")
        a(f"s_barrier")
        if 'q' in md:
            for ai, ad in enumerate((tmp, x1)):
                a(f"ds_read_b32 v{Rr[ai]}, v{ad}")
                a(f"ds_read_b32 v{Mr[ai]}, v{ad} offset:512")
        for bi in range(2):
            if md[bi] == 'q':
                for g4 in range(4): a(f"ds_read_b128 {v(32+bi*16+g4*4,4)}, v{(x3,x4)[bi]} offset:{g4*32}")
            else:
                a(f"ds_read_b32 v{Cr[bi]}, v{(tmp2,x2)[bi]}")
        if 'v' in md:
            for ai in range(2):
                for g4 in range(4): a(f"ds_read_b128 {v(MM+ai*16+g4*4,4)}, v{(x5,x6)[ai]} offset:{512+g4*32}")
                for g4 in range(4): a(f"ds_read_b128 {v(RR+ai*16+g4*4,4)}, v{(x5,x6)[ai]} offset:{g4*32}")
        a(f"s_waitcnt lgkmcnt(0)")
        if 'q' in md:
            for ai in range(2): a(f"v_mul_f32 v{Rr[ai]}, {f32(QS2)}, v{Rr[ai]}")
        for ai in range(2):
            for bi in range(2):
                A0 = ACC(ai,bi); sof = (so0, so1)[ai]
                if md[bi] == 'q':
                    for p in range(8): a(f"v_pk_fma_f32 {v(A0+2*p,2)}, {v(32+bi*16+2*p,2)}, {v(Mr[ai],2)}, {v(A0+2*p,2)} op_sel_hi:[1,0,1]")
                    for p in range(8): a(f"v_pk_mul_f32 {v(A0+2*p,2)}, {v(A0+2*p,2)}, {v(Rr[ai],2)} op_sel_hi:[1,0]")
                else:
                    for p in range(8): a(f"v_pk_fma_f32 {v(A0+2*p,2)}, {v(MM+ai*16+2*p,2)}, {v(Cr[bi],2)}, {v(A0+2*p,2)} op_sel_hi:[1,0,1]")
                    for p in range(8): a(f"v_pk_mul_f32 {v(A0+2*p,2)}, {v(A0+2*p,2)}, {v(RR+ai*16+2*p,2)}")
                for p in range(8): a(f"v_cvt_pk_bf16_f32 v{A0+p}, v{A0+2*p}, v{A0+2*p+1}")
                if md[bi] == 'q':
                    both([f"buffer_store_dwordx2 {v(A0+2*g4,2)}, v{eaddr[bi*4+g4]}, {W}, s{sof} offen" for g4 in range(4)])
                else:
                    both([f"buffer_store_dwordx4 {v(A0+4*g2,4)}, v{eaddr[bi*4]}, {W}, s{sof} offen offset:{640*g2}" for g2 in range(2)])
    lv = a.label("pv"); lqv = a.label("pqv"); lvq = a.label("pvq")
    a(f"s_cmp_ge_u32 s{t3}, 6")
    a(f"s_cbranch_scc1 {lv}")
    a(f"s_cmp_eq_u32 s{t3}, 4")
    a(f"s_cbranch_scc1 {lqv}")
    a(f"s_cmp_eq_u32 s{t3}, 5")
    a(f"s_cbranch_scc1 {lvq}")
    path('qq'); a(f"s_branch {join}")
    a(f"{lqv}:"); path('qv'); a(f"s_branch {join}")
    a(f"{lvq}:"); path('vq'); a(f"s_branch {join}")
    a(f"{lv}:"); path('vv')
    a(f"{join}:")
    a(f"s_lshl_b32 s{t0}, s{g}, 7")
    a(f"s_add_u32 s{t0}, s{t0}, s{rpj}")
    a(f"s_lshl_b32 s{t0}, s{t0}, 2")
    a(f"s_add_u32 s{t0}, s{t0}, {FL0}")
    flag(t0, 132)
    P.stamp(2)
    dn = a.label("rdn"); jn = a.label("rjn")
    rl = rp.rp_loads(R0, 94, 95, 96, 240, 241, RL[0]) + rp.rp_loads(R1, 97, 98, 99, 242, 243, RL[1])
    f0 = rp.rp_finish(SW, t0, t1, [(RL[0],0), (RL[0],1), (RL[1],0), (RL[1],1)], RO[0], RJ[0], 0, "sc0 sc1")
    f1 = rp.rp_finish(SW, t0, t1, [(RL[0],2), (RL[0],3), (RL[1],2), (RL[1],3)], RO[1], RJ[1], 0, "sc0 sc1")
    pm = [f"s_mov_b32 s{t0}, 0x05040100", f"s_mov_b32 s{t1}, 0x07060302", f"s_cmp_ge_u32 s{rpj}, 60", f"s_cbranch_scc1 {dn}"] + f0[:16] + f1[:16] + [f"s_branch {jn}", f"{dn}:"]
    for k in range(2): pm += rp.rp_finish(SW, t0, t1, [(RL[k],cc) for cc in range(4)], RO[k], RJ[k], 0)[:16]
    pm += [f"{jn}:"] + f0[17:25] + f1[17:25] + f0[26:34] + f1[26:34]
    return rl, pm, f0[-4:] + f1[-4:]
```

```python
class Asm:
    def __init__(self):
        self.lines = []
        self.uid = 0
    def __call__(self, s):
        for l in s.split("\n"):
            l = l.strip()
            if not l: continue
            if l.endswith(":") or l.startswith("."):
                self.lines.append(l)
            else:
                self.lines.append("  " + l)
    def label(self, base):
        self.uid += 1
        return f"L_{base}_{self.uid}"
    def text(self):
        return "\n".join(self.lines) + "\n"

def v(i, n=1):
    return f"v{i}" if n == 1 else f"v[{i}:{i+n-1}]"
def s(i, n=1):
    return f"s{i}" if n == 1 else f"s[{i}:{i+n-1}]"

def kernel_begin(a, name, align=8):
    a(f".text\n.globl {name}\n.p2align {align}\n.type {name},@function\n{name}:")

def kernel_desc(a, name, nvgpr, nsgpr=96, accum=None):
    if accum is None:
        accum = min(256, (nvgpr + 3) // 4 * 4)
    a(f""".section .rodata,"a"
.p2align 6
.amdhsa_kernel {name}
.amdhsa_next_free_vgpr {nvgpr}
.amdhsa_next_free_sgpr {nsgpr}
.amdhsa_accum_offset {accum}
.amdhsa_group_segment_fixed_size 0
.amdhsa_kernarg_size 80
.amdhsa_user_sgpr_count 2
.amdhsa_user_sgpr_kernarg_segment_ptr 1
.amdhsa_system_sgpr_workgroup_id_x 1
.end_amdhsa_kernel""")

def srd(a, d, base, nbytes, off=0):
    if off:
        a(f"s_add_u32 s{d}, s{base}, {off}")
        a(f"s_addc_u32 s{d+1}, s{base+1}, 0")
    else:
        a(f"s_mov_b32 s{d}, s{base}")
        a(f"s_mov_b32 s{d+1}, s{base+1}")
    a(f"s_mov_b32 s{d+2}, {nbytes}")
    a(f"s_mov_b32 s{d+3}, 0x20000")

import struct
def f32(x):
    return "0x%08x" % struct.unpack("<I", struct.pack("<f", x))[0]

def interleave(main, fill):
    out = []
    n, m = len(main), len(fill)
    k = 0
    for i, x in enumerate(main):
        out.append(x)
        want = (i + 1) * m // n
        while k < want:
            out.append(fill[k]); k += 1
    return out

import os
PROF = int(os.environ.get("PROF", "0"))
WS_PROF = 0x3000000
class Prof:
    def __init__(self, a, kid, base=64, vtmp=250):
        self.a, self.kid, self.base, self.n, self.vtmp = a, kid, base, 0, vtmp
    def start(self):
        if not PROF: return
        self.a(f"s_memrealtime s[{self.base}:{self.base+1}]")
        self.a(f"s_memtime s[{self.base+2}:{self.base+3}]")
        self.n = 2
    def stamp(self, idx):
        if not PROF: return
        if PROF == 3:
            if str(idx) == os.environ['AMP']:
                self.a(f"s_memrealtime s[{self.base+4}:{self.base+5}]")
                self.a("s_waitcnt lgkmcnt(0)")
            return
        if isinstance(idx, str):
            mp = dict(x.split('=') for x in os.environ.get('ST', '').split(',') if x)
            if idx not in mp: return
            idx = int(mp[idx])
        elif str(idx) in [x.split('=')[1] for x in os.environ.get('ST', '').split(',') if x]: return
        b = self.base + 4 + 2*idx
        self.a(f"s_memtime s[{b}:{b+1}]")
        self.a("s_waitcnt lgkmcnt(0)")
    def flush(self, nst, wsreg, wavereg=None):
        if not PROF: return
        a = self.a; b = self.base; t = self.vtmp
        e = b + 4 + 2*nst
        if PROF == 3:
            sk = a.label("noamp"); lp = a.label("amp")
            a("s_waitcnt vmcnt(0)")
            a(f"s_memrealtime s[{e}:{e+1}]")
            a(f"s_lshl_b32 s{e+4}, s2, 2")
            a(f"s_add_u32 s{e+4}, s{e+4}, s{wavereg}")
            a(f"s_cmp_lg_u32 s{e+4}, {int(os.environ.get('DW', '309'))}")
            a(f"s_cbranch_scc1 {sk}")
            a("s_waitcnt lgkmcnt(0)")
            if os.environ['AMP'] == 'end': a(f"s_mov_b32 s{b+4}, s{e}")
            a(f"s_sub_u32 s{e+5}, s{b+4}, s{b}")
            a(f"s_min_u32 s{e+5}, s{e+5}, 20000")
            a(f"s_lshl_b32 s{e+5}, s{e+5}, 3")
            if os.environ.get('FIX'): a(f"s_mov_b32 s{e+5}, {os.environ['FIX']}")
            a(f"{lp}:")
            a(f"s_memrealtime s[{e+2}:{e+3}]")
            a("s_waitcnt lgkmcnt(0)")
            a(f"s_sub_u32 s{e+2}, s{e+2}, s{e}")
            a(f"s_cmp_lt_u32 s{e+2}, s{e+5}")
            a(f"s_cbranch_scc1 {lp}")
            a(f"{sk}:")
            return
        a("s_waitcnt vmcnt(0)")
        a(f"s_memtime s[{e}:{e+1}]")
        a(f"s_memrealtime s[{e+2}:{e+3}]")
        a("s_waitcnt lgkmcnt(0)")
        a(f"s_mov_b64 exec, -1")
        if PROF == 2:
            sk = a.label("nodbg")
            a(f"s_lshl_b32 s{e+4}, s2, 2")
            a(f"s_add_u32 s{e+4}, s{e+4}, s{wavereg}")
            a(f"s_cmp_lg_u32 s{e+4}, {int(os.environ.get('DW', '309'))}")
            a(f"s_cbranch_scc1 {sk}")
            a(f"s_load_dwordx2 s[{e+4}:{e+5}], s[0:1], 64")
            a(f"v_mov_b32 v{t}, 0")
            a(f"s_mov_b64 exec, 1")
            a("s_waitcnt lgkmcnt(0)")
            for i in range(nst + 1):
                a(f"s_sub_u32 s{e+6}, s{b+4+2*i}, s{b+2}")
                a(f"v_mov_b32 v{t+1}, s{e+6}")
                a(f"global_store_dword v{t}, v{t+1}, s[{e+4}:{e+5}] offset:{4*i+4}")
            a(f"s_sub_u32 s{e+6}, s{e+2}, s{b}")
            a(f"v_mov_b32 v{t+1}, s{e+6}")
            a(f"global_store_dword v{t}, v{t+1}, s[{e+4}:{e+5}] offset:{4*nst+8}")
            a(f"{sk}:")
            return
        a(f"s_lshl_b32 s{e+4}, s2, 3")
        a(f"s_add_u32 s{e+4}, s{e+4}, s{wavereg}")
        a(f"s_lshl_b32 s{e+4}, s{e+4}, 7")
        a(f"s_add_u32 s{e+4}, s{e+4}, {WS_PROF + self.kid*0x40000}")
        a(f"s_add_u32 s{e+4}, s{e+4}, s{wsreg}")
        a(f"s_addc_u32 s{e+5}, s{wsreg+1}, 0")
        a(f"v_mov_b32 v{t}, 0")
        for i in range(nst + 4):
            a(f"v_mov_b32 v{t+1}, s{b+2*i}")
            a(f"global_store_dword v{t}, v{t+1}, s[{e+4}:{e+5}] offset:{4*i}")
        a(f"s_getreg_b32 s{e+6}, hwreg(HW_REG_XCC_ID)")
        a(f"v_mov_b32 v{t+1}, s{e+6}")
        a(f"global_store_dword v{t}, v{t+1}, s[{e+4}:{e+5}] offset:124")
        a("s_waitcnt vmcnt(0)")

def code_prefetch(a, l0, l1, idx, sp, st, lane, vt, back=False):
    here = a.label("pc"); skip = a.label("npf")
    a(f"s_lshl_b32 s{st}, s{idx}, 13")
    a(f"s_cmp_ge_u32 s{st}, {l1}-{l0}")
    a(f"s_cbranch_scc1 {skip}")
    a(f"s_getpc_b64 s[{sp}:{sp+1}]")
    a(f"{here}:")
    if back:
        a(f"s_sub_u32 s{sp}, s{sp}, {here}-{l0}")
        a(f"s_subb_u32 s{sp+1}, s{sp+1}, 0")
    else:
        a(f"s_add_u32 s{sp}, s{sp}, {l0}-{here}")
        a(f"s_addc_u32 s{sp+1}, s{sp+1}, 0")
    a(f"v_lshl_add_u32 v{vt}, v{lane}, 7, s{st}")
    a(f"v_min_u32 v{vt}, {l1}-{l0}-4, v{vt}")
    a(f"global_load_dword v{vt}, v{vt}, s[{sp}:{sp+1}]")
    a(f"{skip}:")
```

```python
class Asm:
    def __init__(self):
        self.lines = []
        self.uid = 0
    def __call__(self, s):
        for l in s.split("\n"):
            l = l.strip()
            if not l: continue
            if l.endswith(":") or l.startswith("."):
                self.lines.append(l)
            else:
                self.lines.append("  " + l)
    def label(self, base):
        self.uid += 1
        return f"L_{base}_{self.uid}"
    def text(self):
        return "\n".join(self.lines) + "\n"

def v(i, n=1):
    return f"v{i}" if n == 1 else f"v[{i}:{i+n-1}]"
def s(i, n=1):
    return f"s{i}" if n == 1 else f"s[{i}:{i+n-1}]"

def kernel_begin(a, name, align=8):
    a(f".text\n.globl {name}\n.p2align {align}\n.type {name},@function\n{name}:")

def kernel_desc(a, name, nvgpr, nsgpr=96, accum=None):
    if accum is None:
        accum = min(256, (nvgpr + 3) // 4 * 4)
    a(f""".section .rodata,"a"
.p2align 6
.amdhsa_kernel {name}
.amdhsa_next_free_vgpr {nvgpr}
.amdhsa_next_free_sgpr {nsgpr}
.amdhsa_accum_offset {accum}
.amdhsa_group_segment_fixed_size 0
.amdhsa_kernarg_size 80
.amdhsa_user_sgpr_count 2
.amdhsa_user_sgpr_kernarg_segment_ptr 1
.amdhsa_system_sgpr_workgroup_id_x 1
.end_amdhsa_kernel""")

def srd(a, d, base, nbytes, off=0):
    if off:
        a(f"s_add_u32 s{d}, s{base}, {off}")
        a(f"s_addc_u32 s{d+1}, s{base+1}, 0")
    else:
        a(f"s_mov_b32 s{d}, s{base}")
        a(f"s_mov_b32 s{d+1}, s{base+1}")
    a(f"s_mov_b32 s{d+2}, {nbytes}")
    a(f"s_mov_b32 s{d+3}, 0x20000")

import struct
def f32(x):
    return "0x%08x" % struct.unpack("<I", struct.pack("<f", x))[0]

def interleave(main, fill):
    out = []
    n, m = len(main), len(fill)
    k = 0
    for i, x in enumerate(main):
        out.append(x)
        want = (i + 1) * m // n
        while k < want:
            out.append(fill[k]); k += 1
    return out

import os
PROF = int(os.environ.get("PROF", "0"))
WS_PROF = 0x3000000
class Prof:
    def __init__(self, a, kid, base=64, vtmp=250):
        self.a, self.kid, self.base, self.n, self.vtmp = a, kid, base, 0, vtmp
    def start(self):
        if not PROF: return
        self.a(f"s_memrealtime s[{self.base}:{self.base+1}]")
        self.a(f"s_memtime s[{self.base+2}:{self.base+3}]")
        self.n = 2
    def stamp(self, idx):
        if not PROF: return
        if PROF == 3:
            if str(idx) == os.environ['AMP']:
                self.a(f"{'s_memtime' if os.environ.get('CYC') else 's_memrealtime'} s[{self.base+4}:{self.base+5}]")
                self.a("s_waitcnt lgkmcnt(0)")
            return
        if isinstance(idx, str):
            mp = dict(x.split('=') for x in os.environ.get('ST', '').split(',') if x)
            if idx not in mp: return
            idx = int(mp[idx])
        elif str(idx) in [x.split('=')[1] for x in os.environ.get('ST', '').split(',') if x]: return
        b = self.base + 4 + 2*idx
        self.a(f"s_memtime s[{b}:{b+1}]")
        self.a("s_waitcnt lgkmcnt(0)")
    def flush(self, nst, wsreg, wavereg=None):
        if not PROF: return
        a = self.a; b = self.base; t = self.vtmp
        e = b + 4 + 2*nst
        if PROF == 3:
            sk = a.label("noamp"); lp = a.label("amp")
            a("s_waitcnt vmcnt(0)")
            a(f"s_memrealtime s[{e}:{e+1}]")
            a(f"s_lshl_b32 s{e+4}, s2, 2")
            a(f"s_add_u32 s{e+4}, s{e+4}, s{wavereg}")
            a(f"s_cmp_lg_u32 s{e+4}, {int(os.environ.get('DW', '309'))}")
            a(f"s_cbranch_scc1 {sk}")
            a("s_waitcnt lgkmcnt(0)")
            if os.environ['AMP'] == 'end': a(f"s_mov_b32 s{b+4}, s{e}")
            a(f"s_sub_u32 s{e+5}, s{b+4}, s{b}")
            a(f"s_min_u32 s{e+5}, s{e+5}, 20000")
            a(f"s_lshl_b32 s{e+5}, s{e+5}, 3")
            if os.environ.get('CYC'):
                a(f"s_sub_u32 s{e+5}, s{b+4}, s{b+2}")
                a(f"s_min_u32 s{e+5}, s{e+5}, 200000")
                a(f"s_lshr_b32 s{e+5}, s{e+5}, 1")
            if os.environ.get('FIX'): a(f"s_mov_b32 s{e+5}, {os.environ['FIX']}")
            a(f"{lp}:")
            a(f"s_memrealtime s[{e+2}:{e+3}]")
            a("s_waitcnt lgkmcnt(0)")
            a(f"s_sub_u32 s{e+2}, s{e+2}, s{e}")
            a(f"s_cmp_lt_u32 s{e+2}, s{e+5}")
            a(f"s_cbranch_scc1 {lp}")
            a(f"{sk}:")
            return
        a("s_waitcnt vmcnt(0)")
        a(f"s_memtime s[{e}:{e+1}]")
        a(f"s_memrealtime s[{e+2}:{e+3}]")
        a("s_waitcnt lgkmcnt(0)")
        a(f"s_mov_b64 exec, -1")
        if PROF == 2:
            sk = a.label("nodbg")
            a(f"s_lshl_b32 s{e+4}, s2, 2")
            a(f"s_add_u32 s{e+4}, s{e+4}, s{wavereg}")
            a(f"s_cmp_lg_u32 s{e+4}, {int(os.environ.get('DW', '309'))}")
            a(f"s_cbranch_scc1 {sk}")
            a(f"s_load_dwordx2 s[{e+4}:{e+5}], s[0:1], 64")
            a(f"v_mov_b32 v{t}, 0")
            a(f"s_mov_b64 exec, 1")
            a("s_waitcnt lgkmcnt(0)")
            for i in range(nst + 1):
                a(f"s_sub_u32 s{e+6}, s{b+4+2*i}, s{b+2}")
                a(f"v_mov_b32 v{t+1}, s{e+6}")
                a(f"global_store_dword v{t}, v{t+1}, s[{e+4}:{e+5}] offset:{4*i+4}")
            a(f"s_sub_u32 s{e+6}, s{e+2}, s{b}")
            a(f"v_mov_b32 v{t+1}, s{e+6}")
            a(f"global_store_dword v{t}, v{t+1}, s[{e+4}:{e+5}] offset:{4*nst+8}")
            a(f"{sk}:")
            return
        a(f"s_lshl_b32 s{e+4}, s2, 3")
        a(f"s_add_u32 s{e+4}, s{e+4}, s{wavereg}")
        a(f"s_lshl_b32 s{e+4}, s{e+4}, 7")
        a(f"s_add_u32 s{e+4}, s{e+4}, {WS_PROF + self.kid*0x40000}")
        a(f"s_add_u32 s{e+4}, s{e+4}, s{wsreg}")
        a(f"s_addc_u32 s{e+5}, s{wsreg+1}, 0")
        a(f"v_mov_b32 v{t}, 0")
        for i in range(nst + 4):
            a(f"v_mov_b32 v{t+1}, s{b+2*i}")
            a(f"global_store_dword v{t}, v{t+1}, s[{e+4}:{e+5}] offset:{4*i}")
        a(f"s_getreg_b32 s{e+6}, hwreg(HW_REG_XCC_ID)")
        a(f"v_mov_b32 v{t+1}, s{e+6}")
        a(f"global_store_dword v{t}, v{t+1}, s[{e+4}:{e+5}] offset:124")
        a("s_waitcnt vmcnt(0)")

def code_prefetch(a, l0, l1, idx, sp, st, lane, vt, back=False):
    here = a.label("pc"); skip = a.label("npf")
    a(f"s_lshl_b32 s{st}, s{idx}, 13")
    a(f"s_cmp_ge_u32 s{st}, {l1}-{l0}")
    a(f"s_cbranch_scc1 {skip}")
    a(f"s_getpc_b64 s[{sp}:{sp+1}]")
    a(f"{here}:")
    if back:
        a(f"s_sub_u32 s{sp}, s{sp}, {here}-{l0}")
        a(f"s_subb_u32 s{sp+1}, s{sp+1}, 0")
    else:
        a(f"s_add_u32 s{sp}, s{sp}, {l0}-{here}")
        a(f"s_addc_u32 s{sp+1}, s{sp+1}, 0")
    a(f"v_lshl_add_u32 v{vt}, v{lane}, 7, s{st}")
    a(f"v_min_u32 v{vt}, {l1}-{l0}-4, v{vt}")
    a(f"global_load_dword v{vt}, v{vt}, s[{sp}:{sp+1}]")
    a(f"{skip}:")
```

```python
from asmlib import *
from layout import *

def ag(i, n=1):
    return f"a{i}" if n == 1 else f"a[{i}:{i+n-1}]"

UPTO = int(os.environ.get('UPTO', '5'))
SPIN = int(os.environ.get('SPIN', '200000'))
IMPURE = int(os.environ.get('IMPURE', '0'))
WSTART = int(os.environ.get('WSTART', '19'))

def gen_mk(a, name="mk_attn_ffn_kernel"):
    kernel_begin(a, name)
    P = Prof(a, 0, 64, 9)
    SW, SX, SOUT, SR = 8, 12, 16, 20
    WS = 24
    g, m, wv, kvo, pure, spin, myid = 26, 27, 28, 29, 30, 31, 32
    t0, t1, t2, t3 = 33, 34, 35, 36
    fbk = 37
    hd, qb, ob = 50, 51, 52
    vmask = 38
    st1, st2, task = 40, 41, 42
    sX = [45, 46]
    wo_, wgu_ = 43, 58
    kvb = 59
    so = [60, 61, 62, 63]
    lane, voff = 1, 2
    kb = [3, 4, 5]; vb = [6, 7, 8]
    tmp, tmp2, tmp3, tmp4 = 9, 10, 11, 12
    Q = [14, 20]; K = [26, 32]; V = [38, 46]; PP = 54
    NEG = [64, 80]; S_ = [96, 112]; O = [128, 144]
    RO = [160, 176]; RJ = [204, 205]; nonce, rpj = 100, 101
    RES = 244
    raddr = 13
    WOF = lambda n: (ag(240 + 4*n, 4) if n < 4 else v(160 + 4*(n-4), 4))
    done = a.label("mkdone")
    def poll(off_sreg, nl, vt, lanes_ready=False):
        lp = a.label("poll"); out = a.label("pout")
        a(f"v_and_b32 v{vt+1}, {nl-1}, v{lane}")
        a(f"s_mov_b32 s{spin}, {SPIN}")
        a(f"v_lshlrev_b32 v{vt+1}, 2, v{vt+1}")
        a(f"{lp}:")
        a(f"buffer_load_dword v{vt}, v{vt+1}, s[{SW}:{SW+3}], s{off_sreg} offen sc1")
        a(f"s_sub_u32 s{spin}, s{spin}, 1")
        a(f"s_waitcnt vmcnt(0)")
        a(f"v_cmp_ne_u32 vcc, s{nonce}, v{vt}")
        a(f"s_cbranch_scc1 {out}")
        a(f"s_cbranch_vccnz {lp}")
        a(f"{out}:")
    def both(stores, wt=False):
        if wt:
            for x in stores: a(x + " sc0 sc1" if x.startswith("buffer_store") else x)
            return
        l0 = a.label("wt"); l1 = a.label("wj")
        a(f"s_cmp_eq_u32 s{pure}, 0")
        a(f"s_cbranch_scc1 {l0}")
        for x in stores: a(x)
        a(f"{l1}:")
        tail.append((l0, [x + " sc0 sc1" if x.startswith("buffer_store") else x for x in stores], l1))
    def flag(off_sreg, vt, wt=False):
        a(f"v_mov_b32 v{vt}, s{nonce}")
        a(f"v_mov_b32 v{vt+1}, 0")
        a(f"s_mov_b64 exec, 1")
        a(f"s_waitcnt vmcnt(0)")
        both([f"buffer_store_dword v{vt}, v{vt+1}, s[{SW}:{SW+3}], s{off_sreg} offen"], wt)
        a(f"s_mov_b64 exec, -1")
    tail = []

    def pollw(off_sreg, n, vt, va, first=True):
        lp = a.label("poll"); out = a.label("pout"); ck = a.label("pck")
        ld = f"buffer_load_dwordx{n} {v(vt,n)}, v{va}, s[{SW}:{SW+3}], s{off_sreg} offen sc1"
        chk = [f"v_xor_b32 v{vt+i}, s{nonce}, v{vt+i}" for i in range(n)] + (
              [f"v_or3_b32 v{vt}, v{vt}, v{vt+1}, v{vt+2}", f"v_or_b32 v{vt}, v{vt}, v{vt+3}"] if n == 4 else [f"v_or_b32 v{vt}, v{vt}, v{vt+1}"]) + [
              f"v_cmp_ne_u32 vcc, 0, v{vt}"]
        loop = [f"s_mov_b32 s{spin}, {SPIN}", f"{lp}:", ld, f"s_sub_u32 s{spin}, s{spin}, 1", "s_waitcnt vmcnt(0)"] + chk + [f"s_cbranch_scc1 {out}", f"s_cbranch_vccnz {lp}"]
        if first: return loop + [f"{out}:"]
        tail.append((ck, loop, out))
        return [ld], chk + [f"s_cbranch_vccnz {ck}", f"{out}:"]
    P.start()
    a(f"s_load_dwordx4 s[4:7], s[0:1], {KA_X}")
    a(f"s_load_dwordx2 s[48:49], s[0:1], {KA_DBG}")
    a(f"s_load_dwordx2 s[50:51], s[0:1], {KA_WO}")
    a(f"s_load_dwordx4 s[52:55], s[0:1], {KA_WG}")
    a(f"s_load_dwordx2 s[56:57], s[0:1], {KA_WD}")
    a(f"s_memrealtime s[{nonce}:{nonce+1}]")
    a(f"s_load_dwordx2 s[{WS}:{WS+1}], s[0:1], {KA_WS}")
    a(f"s_cmp_ge_u32 s2, 256")
    a(f"s_cbranch_scc1 {done}")
    a(f"v_lshrrev_b32 v{tmp}, 6, v0")
    a(f"v_and_b32 v{lane}, 63, v0")
    a(f"s_and_b32 s{g}, s2, 7")
    a(f"v_readfirstlane_b32 s{wv}, v{tmp}")
    a(f"s_lshr_b32 s{m}, s2, 3")
    import qkv
    rloads, rperm, rstores = qkv.qkv(dict(locals(), SPIN=SPIN, IMPURE=IMPURE))
    a(f"s_load_dwordx2 s[6:7], s[0:1], {KA_OUT}")
    a("L_att_begin:")
    a(f"v_lshlrev_b32 v{voff}, 4, v{lane}")
    a(f"v_and_b32 v{tmp}, 31, v{lane}")
    a(f"v_lshrrev_b32 v{tmp2}, 5, v{lane}")
    a(f"v_lshlrev_b32 v{kb[0]}, 3, v{tmp}")
    a(f"v_lshl_add_u32 v{kb[0]}, v{tmp2}, 9, v{kb[0]}")
    a(f"s_lshl_b32 s{hd}, s{g}, 2")
    a(f"s_and_b32 s{t0}, s{m}, 3")
    a(f"s_add_u32 s{hd}, s{hd}, s{t0}")
    a(f"s_lshr_b32 s{qb}, s{m}, 2")
    a(f"s_lshl_b32 s{t0}, s{qb}, 2")
    a(f"s_add_u32 s{t0}, s{t0}, s{wv}")
    a(f"s_mul_i32 s{t0}, s{t0}, 5120")
    a(f"s_mul_i32 s{t2}, s{g}, {GS}")
    a(f"s_add_u32 s{t0}, s{t0}, s{t2}")
    a(f"s_bfe_u32 s{t1}, s{m}, 0x10001")
    a(f"s_mul_i32 s{t1}, s{t1}, 163840")
    a(f"s_add_u32 s{ob}, s{t0}, s{t1}")
    a(f"s_and_b32 s{t1}, s{m}, 1")
    a(f"s_mul_i32 s{t1}, s{t1}, 1280")
    a(f"s_add_u32 s{task}, s{ob}, s{t1}")
    a(f"s_and_b32 s{t1}, s{m}, 3")
    a(f"s_mul_i32 s{t1}, s{t1}, 163840")
    a(f"s_add_u32 s{t2}, s{t2}, s{t1}")
    a(f"s_lshl_b32 s{kvo}, s{wv}, 12")
    a(f"s_mov_b32 m0, s{kvo}")
    a(f"s_add_u32 s{t2}, s{t2}, {KVO}")
    for x in range(2):
        a(f"v_mov_b32 v{Q[x]+4}, 0")
        a(f"v_mov_b32 v{Q[x]+5}, 0")
    a(f"s_waitcnt lgkmcnt(0)")
    srd(a, SOUT, 6, S*D*2)
    a(f"s_add_u32 s{kvb}, s{t2}, s{kvo}")
    ndma = [0]
    def dma():
        j = ndma[0]; ndma[0] += 1
        out = [f"buffer_load_dwordx4 v{voff}, s[{SW}:{SW+3}], s{kvb} offen offset:{1024*(j&3)} sc1 lds"]
        if j & 3 == 0 and j:
            out = [f"s_add_u32 m0, m0, 16384", f"s_add_u32 s{kvb}, s{kvb}, 16384"] + out
        return out
    srd(a, SX, 4, S*D*2)
    a(f"v_mul_u32_u24 v{vb[0]}, 320, v{tmp2}")
    a(f"v_lshl_add_u32 v{vb[0]}, v{tmp}, 4, v{vb[0]}")
    a(f"v_add_u32 v{vb[0]}, 1280, v{vb[0]}")
    for i in (1, 2):
        a(f"v_add_u32 v{kb[i]}, {61440*i}, v{kb[0]}")
        a(f"v_add_u32 v{vb[i]}, {61440*i}, v{vb[0]}")
    a(f"s_mov_b32 s{vmask}, 0xfffff")
    a(f"s_mov_b32 s{vmask+1}, 0xfffff")
    for i in range(8):
        a(f"v_mov_b32 v{V[0]+i}, 0x3f803f80")
        a(f"v_mov_b32 v{V[1]+i}, 0x3f803f80")
    a(f"s_mov_b32 s{fbk}, 0")
    a(f"s_lshr_b32 s{t0}, s{m}, 2")
    a(f"s_mul_i32 s{wo_}, s{t0}, {20*5120}")
    a(f"s_mul_i32 s{t1}, s{wv}, {5*5120}")
    a(f"s_add_u32 s{wo_}, s{wo_}, s{t1}")
    a(f"s_add_u32 s{wo_}, s{wo_}, {WS_WO}")
    a(f"s_lshl_b32 s{t1}, s{t0}, 1")
    a(f"s_and_b32 s{t2}, s{m}, 1")
    a(f"s_add_u32 s{t1}, s{t1}, s{t2}")
    a(f"s_lshl_b32 s{t1}, s{t1}, 2")
    a(f"s_add_u32 s{t1}, s{t1}, s{wv}")
    a(f"s_mul_i32 s{wgu_}, s{t1}, {3*20480}")
    a(f"s_add_u32 s{wgu_}, s{wgu_}, {WS_WGU}")
    a(f"s_lshl_b32 s{t1}, s{g}, 2")
    a(f"s_and_b32 s{t2}, s{m}, 3")
    a(f"s_add_u32 s{t1}, s{t1}, s{t2}")
    a(f"s_lshl_b32 s{t1}, s{t1}, 2")
    a(f"s_add_u32 s{t1}, s{t1}, s{wv}")
    a(f"s_mul_i32 s{t1}, s{t1}, 20480")
    a(f"s_mul_i32 s{t0}, s{t0}, 160")
    a(f"s_add_u32 s{t0}, s{t0}, s{t1}")
    a(f"v_and_b32 v{tmp}, 15, v{lane}")
    a(f"v_lshrrev_b32 v{tmp2}, 4, v{lane}")
    a(f"v_mul_u32_u24 v{raddr}, 1280, v{tmp}")
    a(f"v_mad_u32_u24 v{raddr}, v{tmp2}, 40, v{raddr}")
    a(f"v_add_u32 v{raddr}, s{t0}, v{raddr}")

    PT, pt20, pt16 = 254, 62, 63
    a(f"s_lshl_b32 s{t0}, s{g}, 5")
    a(f"s_add_u32 s{t0}, s{t0}, s{m}")
    a(f"s_lshl_b32 s{t0}, s{t0}, 2")
    a(f"s_add_u32 s{t0}, s{t0}, s{wv}")
    a(f"s_mul_i32 s{so[0]}, s{t0}, 2560")
    a(f"s_mul_i32 s{so[1]}, s{rpj}, 6144")
    a(f"s_mul_i32 s{t1}, s{g}, {GS}")
    a(f"s_add_u32 s{so[1]}, s{so[1]}, s{t1}")
    a(f"s_add_u32 s{so[1]}, s{so[1]}, {KVO}")
    a(f"v_min_u32 v{pt20}, 19, v{lane}")
    a(f"v_lshlrev_b32 v{pt20}, 7, v{pt20}")
    a(f"v_lshlrev_b32 v{pt16}, 7, v{tmp}")
    a(f"s_lshl_b32 s{so[3]}, s{t0}, 7")
    a(f"s_mov_b32 s{so[2]}, {WS_ST}")

    def ldsb(bases, off):
        i = off // 61440
        return bases[i], off - 61440*i
    def readK(t, Kb, bases=kb):
        b, off = ldsb(bases, t*2560)
        return [f"ds_read_b64 {v(Kb,2)}, v{b} offset:{off}",
                f"ds_read_b64 {v(Kb+2,2)}, v{b} offset:{off+256}",
                f"ds_read_b64 {v(Kb+4,2)}, v{b} offset:{off+1024}"]
    def readV(t, V0, bases=vb):
        b, off = ldsb(bases, t*2560)
        return [f"s_mov_b64 exec, s[{vmask}:{vmask+1}]",
                f"ds_read_b128 {v(V0,4)}, v{b} offset:{off}",
                f"ds_read_b128 {v(V0+4,4)}, v{b} offset:{off+640}",
                f"s_mov_b64 exec, -1"]
    def qk1(x, Kb, C): return f"v_mfma_f32_32x32x16_bf16 {v(S_[x],16)}, {v(Kb,4)}, {v(Q[x],4)}, {C}"
    def qk2(x, Kb): return f"v_mfma_f32_32x32x8_bf16 {v(S_[x],16)}, {v(Kb+4,2)}, {v(Q[x]+4,2)}, {v(S_[x],16)}"
    def max16(Sr, d):
        for i in range(0, 16, 2):
            a(f"v_max3_f32 v{d}, v{Sr+i}, v{Sr+i+1}, v{d}")
    pv = lambda x, Vb, hh: f"v_mfma_f32_32x32x16_bf16 {v(O[x],16)}, {v(Vb+4*hh,4)}, {v(PP+4*hh,4)}, {v(O[x],16)}"
    def prime():
        for x, d in enumerate((tmp, tmp2)):
            a(f"v_mov_b32 v{tmp3+x}, v{d}")
        a("s_nop 1")
        for x, d in enumerate((tmp, tmp2)):
            a(f"v_permlane32_swap_b32 v{tmp3+x}, v{d}")
        a("s_nop 1")
        for x, d in enumerate((tmp, tmp2)):
            a(f"v_max_f32 v{d}, v{d}, v{tmp3+x}")
        for i in range(16):
            a(f"v_sub_f32 v{NEG[0]+i}, 0, v{tmp}")
        for x in readK(1, K[1]): a(x)
        a(qk1(0, K[0], v(NEG[0],16))); a(qk2(0, K[0]))
        for x in readV(0, V[0]): a(x)
        for i in range(16):
            a(f"v_sub_f32 v{NEG[1]+i}, 0, v{tmp2}")
        for i in range(32):
            a(f"v_mov_b32 v{O[0]+i}, 0")
        for i in range(4):
            a(f"v_mov_b32 v{PP+4+i}, 0")
        a(f"s_waitcnt lgkmcnt(0)")
        a(f"v_exp_f32 v{S_[0]}, v{S_[0]}")
        a(f"v_exp_f32 v{S_[0]+1}, v{S_[0]+1}")
    def half(t, x, side, kbs=kb, vbs=vb, last=63):
        Sa, Sb = S_[x], S_[1-x]
        ex = lambda i: f"v_exp_f32 v{Sa+i}, v{Sa+i}" if i < 16 else f"v_exp_f32 v{Sb+i-16}, v{Sb+i-16}"
        cv = lambda j: f"v_cvt_pk_bf16_f32 v{PP+j}, v{Sa+2*j}, v{Sa+2*j+1}"
        Vc = V[t & 1]
        sl = [[], []]
        for i, gp in enumerate(side): sl[i % 2] += gp
        fin = x == 1 and t == last
        if x == 0:
            Kn = K[t & 1]
            rd = readV(t+1, V[(t+1) & 1], vbs) if t < last else []
            P1 = [pv(1, V[(t-1) & 1], 1)]
        else:
            Kn = K[(t+1) & 1]
            rd = readK(t+2, K[t & 1], kbs) if t + 2 <= last else []
            P1 = [pv(0, Vc, 1), "s_waitcnt lgkmcnt(0)"]
        seq = [ex(2)] + P1 + sl[1] + [cv(0), ex(3), ex(4), cv(1), ex(5), None if fin else qk1(1-x, Kn, v(NEG[1-x],16))] + rd + [
               ex(6), cv(2), ex(7), ex(8), None if fin else qk2(1-x, Kn), cv(3), ex(9), ex(10), cv(4), ex(11), ex(12), cv(5), ex(13),
               pv(x, Vc, 0)] + sl[0] + [ex(14), cv(6), ex(15)] + (["s_nop 0", cv(7), "s_nop 1"] if fin else [ex(16), cv(7), ex(17)])
        for s_ in seq:
            if s_: a(s_)
    a(f"s_lshl_b32 s{t0}, s{g}, 9")
    a(f"s_add_u32 s{t0}, s{t0}, {FL0}")
    a(f"v_lshlrev_b32 v{tmp}, 3, v{lane}")
    a(f"s_lshl_b32 s{st1}, s2, 2")
    a(f"s_add_u32 s{st1}, s{st1}, {FLR}")
    a(f"s_mov_b32 s{st2}, {FLR}")
    a(f"v_mov_b32 v192, s{nonce}")
    a(f"v_mov_b32 v193, 0")
    a(f"s_barrier")
    for x in pollw(t0, 2, 64, tmp): a(x)
    P.stamp(3)
    for x in range(2):
        a(f"buffer_load_dwordx2 {v(Q[x],2)}, v{kb[0]}, s[{SW}:{SW+3}], s{task} offen offset:{2560*x} sc1")
        a(f"buffer_load_dwordx2 {v(Q[x]+2,2)}, v{kb[0]}, s[{SW}:{SW+3}], s{task} offen offset:{2560*x+256} sc1")
    a(f"s_mov_b32 exec_hi, 0")
    for x in range(2):
        a(f"buffer_load_dwordx2 {v(Q[x]+4,2)}, v{kb[0]}, s[{SW}:{SW+3}], s{task} offen offset:{2560*x+1024} sc1")
    a(f"s_mov_b64 exec, -1")
    for j in range(16):
        for x in dma(): a(x)
    a(f"s_waitcnt vmcnt(8)")
    a(f"s_barrier")
    P.stamp(4)
    for x in readK(0, K[0]): a(x)
    a(f"v_mov_b32 v{tmp}, 0xff800000")
    a(f"v_mov_b32 v{tmp2}, 0xff800000")
    a(f"s_waitcnt lgkmcnt(0)")
    a(qk1(0, K[0], "0")); a(qk1(1, K[0], "0")); a(qk2(0, K[0])); a(qk2(1, K[0]))
    a("s_nop 7"); a("s_nop 4")
    max16(S_[0], tmp); max16(S_[1], tmp2)
    prime()
    a(f"v_and_b32 v{tmp}, 3, v{lane}")
    a(f"v_bfe_u32 v{tmp2}, v{lane}, 2, 1")
    a(f"v_lshlrev_b32 v{tmp}, 7, v{tmp}")
    a(f"v_lshl_add_u32 v{tmp}, v{tmp2}, 12, v{tmp}")
    a(f"s_lshl_b32 s{t1}, s{g}, 9")
    a(f"s_add_u32 s{t1}, s{t1}, {FL2-WS_ST}")
    a(f"v_add_u32 v{tmp4}, s{t1}, v{tmp}")
    a(f"v_writelane_b32 v{tmp4}, s{so[3]}, 63")
    Wd_ = f"s[{SW}:{SW+3}]"
    wo_l, gu_l = [], []
    for n in range(25):
        gp = [f"buffer_load_dwordx4 {WOF(n)}, v{voff}, {Wd_}, s{wo_} offen offset:{1024*(n&3)} sc1"]
        if n & 3 == 0 and n: gp.insert(0, f"s_add_u32 s{wo_}, s{wo_}, 4096")
        wo_l.append((8, gp))
    for f in range(3):
        for ks in range(20):
            gp = [f"buffer_load_dwordx4 {ag((ks*3+f)*4,4)}, v{voff}, {Wd_}, s{wgu_} offen offset:{1024*(ks&3)} sc1"]
            if ks & 3 == 0 and (ks or f): gp.insert(0, f"s_add_u32 s{wgu_}, s{wgu_}, 4096")
            gu_l.append((8, gp))
    CW = float(os.environ.get('CW', '2'))
    x_l = [(24, [f"buffer_load_dwordx4 {v(RES,4)}, v{raddr}, s[{SX}:{SX+3}], 0 offen"]),
           (8, [f"buffer_load_dwordx4 {v(RES+4,4)}, v{raddr}, s[{SX}:{SX+3}], 0 offen offset:16"]),
           (8, [f"buffer_load_dwordx2 {v(RES+8,2)}, v{raddr}, s[{SX}:{SX+3}], 0 offen offset:32"])]
    pt = lambda va, sr, off=0: f"buffer_load_dword v{PT}, v{va}, {Wd_}, s{sr} offen offset:{off} sc1"
    pt_l = [(20*CW, [pt(pt20, so[0]).replace(Wd_, f"s[{SOUT}:{SOUT+3}]")]), (9, [pt(tmp4, so[2])])]
    pa_l = [(16, [pt(pt16, so[1])]), (16, [pt(pt16, so[1], 2048)]), (16, [f"s_add_u32 s{so[1]}, s{so[1]}, 4096", pt(pt16, so[1])])]
    if os.environ.get('NOPT'): pt_l = []
    early = x_l + pt_l
    SP = int(os.environ.get('SP', '16'))
    items = gu_l[:40] + wo_l + gu_l[40:]
    if not os.environ.get('NOPA'):
        for k, it_ in enumerate(pa_l): items.insert(len(items) - SP - 8 + 6*k, it_)
    CAP = float(os.environ.get('CAP', '12')); HEND = int(os.environ.get('HEND', '122'))
    HW = int(os.environ.get('HW', '20')); HF = HW + int(os.environ.get('DF', '20')); HP = HF + int(os.environ.get('DP', '10')); HC = HP + 4
    l0 = a.label("nfl")
    flagr = [f"s_cmp_lg_u32 s{wv}, 0", f"s_cbranch_scc1 {l0}", "s_mov_b64 exec, 1",
             f"buffer_store_dword v192, v193, {Wd_}, s{st1} offen sc0 sc1", "s_mov_b64 exec, -1", f"{l0}:"]
    pld, pck = pollw(st2, 4, 196, voff, False)
    if not os.environ.get('NOCP2'):
        b = Asm(); b.uid = a.uid + 1000; a.uid += 2000
        code_prefetch(b, "L_fin_begin", "L_mk_end", rpj, 54, t1, lane, 255)
        items.insert(len(items) - SP, (16, [x.strip() for x in b.lines]))
    side = {}; issued = []
    kvq = list(range(16, 40)); rs = list(rstores); rl = list(rloads)
    budget = 0.0; k = 0
    kvh = {j: (HW + 1 + (j-16)*2//3 if j < 28 else HF + 1 + 2*(j-28)) for j in range(16, 40)}
    assert HW <= 21 and kvh[27] < HF <= 46
    for h in range(128):
        sd = []
        budget = min(budget + CAP, 2*CAP)
        if h == HW: sd += [[f"s_waitcnt vmcnt({len(issued)-16})", "s_barrier"], rperm]
        if h == HF: sd.append(["s_waitcnt vmcnt(0)", "s_barrier"] + flagr)
        if h == 84: sd.append([f"s_waitcnt vmcnt({min(63, len(issued) - 1 - issued.index(39))})", "s_barrier"])
        if h == HP: sd.append(pld); issued.append(-2)
        if h == HC: sd.append([f"s_waitcnt vmcnt({len(issued) - 1 - issued.index(-2)})"] + pck)
        while rl and len(sd) < 2: sd.append([rl.pop(0)]); issued.append(-3)
        while h > HW and rs and len(sd) < int(os.environ.get('SR', '1')): sd.append([rs.pop(0)])
        while kvq and h >= kvh[kvq[0]] and len(sd) < 2:
            sd.append(dma()); issued.append(kvq.pop(0)); budget -= float(os.environ.get('KVW', '4'))
        if h >= int(os.environ.get('HE', '52')) and h % 2 == 0 and early and len(sd) < 2:
            w_, gp = early.pop(0); sd.append(gp); issued.append(-1)
        while HC < h < HEND and k < len(items) and budget > 0 and len(sd) < 2:
            budget -= items[k][0]; sd.append(items[k][1]); issued.append(-1); k += 1
        side[h] = sd[::-1]
    assert not early and not rs
    late = [gp for w_, gp in items[k:]]
    print("late items", len(late))
    assert all(it_ in gu_l[40:] for it_ in items[k:])
    nlast = sum(1 for it_ in items[40:k] if it_ in wo_l or it_ in gu_l)
    assert items[39] is gu_l[39]
    assert ndma[0] == 40
    for t in range(64):
        for x in range(2):
            half(t, x, side[2*t+x])
            P.stamp(f"h{2*t+x}")
    fin0 = a.label("fin0")
    a(f"{fin0}:")
    a("L_fin_begin:")
    a(pv(1, V[1], 1))
    P.stamp(5)
    a(f"v_bfe_u32 v{tmp}, v{lane}, 4, 1")
    a(f"v_mul_u32_u24 v{tmp}, 1280, v{tmp}")
    a(f"v_and_b32 v{tmp2}, 15, v{lane}")
    a(f"v_lshl_add_u32 v{tmp}, v{tmp2}, 4, v{tmp}")
    a(f"v_lshrrev_b32 v{tmp2}, 5, v{lane}")
    a(f"v_lshl_add_u32 v{tmp2}, v{tmp2}, 8, v{tmp}")
    a(f"v_rcp_f32 v{tmp3}, v{O[0]+12}")
    a(f"s_mov_b32 s{t3}, 0x5f800000")
    a(f"s_mov_b32 s{t0}, s{ob}")
    a("s_nop 5")
    a(f"s_and_b32 s{t1}, s{hd}, 1")
    a(f"v_add_f32 v{S_[0]}, v{O[0]+12}, v{O[1]+12}")
    a(f"s_lshl_b32 s{t2}, s{t1}, 9")
    a(f"s_add_u32 s{so[0]}, s{t2}, s{t0}")
    a(f"v_cmp_nlt_f32 vcc, v{S_[0]}, s{t3}")
    a(f"s_lshl_b32 s{t1}, s{t1}, 3")
    a(f"s_add_u32 s{so[1]}, s{t1}, s{t0}")
    a(f"s_add_u32 s{so[2]}, s{so[0]}, 2560")
    a(f"s_add_u32 s{so[3]}, s{so[1]}, 2560")
    fb = a.label("fb"); fin = a.label("fin")
    a(f"s_cbranch_vccnz {fb}")
    a(f"{fin}:")
    a(f"v_rcp_f32 v{tmp4}, v{O[1]+12}")
    a(f"s_waitcnt vmcnt({nlast})")
    for x in range(2):
        for i in range(12):
            a(f"v_mul_f32 v{O[x]+i}, v{O[x]+i}, v{tmp3+x}")
        for i in range(6):
            a(f"v_cvt_pk_bf16_f32 v{O[x]+i}, v{O[x]+2*i}, v{O[x]+2*i+1}")
    both([f"buffer_store_dwordx4 {v(O[x],4)}, v{tmp2}, s[{SW}:{SW+3}], s{so[2*x]} offen" for x in range(2)] + ["s_mov_b32 exec_hi, 0"] +
         [f"buffer_store_dwordx2 {v(O[x]+4,2)}, v{tmp}, s[{SW}:{SW+3}], s{so[2*x+1]} offen offset:1024" for x in range(2)] + ["s_mov_b64 exec, -1"], True)
    ctx = dict(locals())
    if UPTO >= 3:
        import mg2
        mg2.rest(ctx)
    l0 = a.label("ntag")
    a(f"s_or_b32 s{t0}, s2, s{wv}")
    a(f"s_cbranch_scc1 {l0}")
    a(f"s_load_dwordx2 s[48:49], s[0:1], {KA_DBG}")
    a(f"v_mov_b32 v{tmp}, 0")
    a(f"s_mov_b64 exec, 1")
    a(f"s_waitcnt lgkmcnt(0)")
    a(f"global_store_dword v{tmp}, v{tmp}, s[48:49]")
    a(f"{l0}:")
    P.flush(12, WS, wv)
    a(f"{done}:")
    a("s_endpgm")
    a(f"{fb}:")
    a(f"s_cmp_lg_u32 s{fbk}, 0")
    a(f"s_cbranch_scc1 {fin}")
    a(f"s_mov_b32 s{fbk}, 1")
    ka, va = 62, 63
    a(f"v_add_u32 v{ka}, {63*2560}, v{kb[0]}")
    a(f"v_mov_b32 v{tmp}, 0xff800000")
    a(f"v_mov_b32 v{tmp2}, 0xff800000")
    a(f"s_mov_b32 s{t0}, 64")
    fl = a.label("fl")
    a(f"{fl}:")
    for x in readK(0, K[0], [ka]): a(x)
    a(f"s_waitcnt lgkmcnt(0)")
    a(qk1(0, K[0], "0")); a(qk1(1, K[0], "0")); a(qk2(0, K[0])); a(qk2(1, K[0]))
    a(f"v_subrev_u32 v{ka}, 2560, v{ka}")
    a(f"s_sub_u32 s{t0}, s{t0}, 1")
    a("s_nop 7"); a("s_nop 4")
    max16(S_[0], tmp); max16(S_[1], tmp2)
    a(f"s_cmp_lg_u32 s{t0}, 0")
    a(f"s_cbranch_scc1 {fl}")
    prime()
    a(f"v_mov_b32 v{ka}, v{kb[0]}")
    a(f"v_mov_b32 v{va}, v{vb[0]}")
    a(f"s_mov_b32 s{t0}, 31")
    fl = a.label("fl2")
    a(f"{fl}:")
    for t in range(2):
        for x in range(2): half(t, x, [], [ka], [va])
    a(f"v_add_u32 v{ka}, 5120, v{ka}")
    a(f"v_add_u32 v{va}, 5120, v{va}")
    a(f"s_sub_u32 s{t0}, s{t0}, 1")
    a(f"s_cmp_lg_u32 s{t0}, 0")
    a(f"s_cbranch_scc1 {fl}")
    for t in range(2):
        for x in range(2): half(t, x, [], [ka], [va], last=1)
    a(f"s_branch {fin0}")
    for l0, ins, l1 in tail:
        a(f"{l0}:")
        for x in ins: a(x)
        a(f"s_branch {l1}")
    a("L_mk_end:")
    kernel_desc(a, name, 512, 102, accum=256)
    return dict(name=name, grid=256, block=256, lds=163840)
```

```python
from asmlib import *
from layout import *

def rest(c):
    a, P = c['a'], c['P']
    ag, both, flag, poll, WOF = c['ag'] if 'ag' in c else None, c['both'], c['flag'], c['poll'], c['WOF']
    import mg as mk
    ag = mk.ag; UPTO = mk.UPTO
    SW, SOUT, g, m, wv = c['SW'], c['SOUT'], c['g'], c['m'], c['wv']
    t0, t1, t2, t3, so = c['t0'], c['t1'], c['t2'], c['t3'], c['so']
    lane, voff, RES, raddr = c['lane'], c['voff'], c['RES'], c['raddr']
    tmp, tmp2, tmp3, tmp4 = c['tmp'], c['tmp2'], c['tmp3'], c['tmp4']
    W = f"s[{SW}:{SW+3}]"
    rb64, nb, rbg, sfl, spl, wd_ = 40, 41, 42, 43, 44, 47
    hs = [45, 46]; hl = [48, 49]; chunk, rt = 50, 51
    CS = [136, 140, 152]; ONES = 156
    wr = [3, 4, 5]; rdv = 6; voff2 = 7
    mf16 = lambda D_, A_, B_, C_: f"v_mfma_f32_16x16x32_bf16 {v(D_,4)}, {A_}, {B_}, {C_}"
    def colsum(fs):
        for ks in range(20):
            for f in fs:
                a(mf16(CS[f], ag((ks*3+f)*4,4), v(ONES,4), "0" if ks == 0 else v(CS[f],4)))
    for i in range(4): a(f"v_mov_b32 v{ONES+i}, 0x3f803f80")
    a(f"s_and_b32 s{rb64}, s{m}, 3")
    a(f"s_lshr_b32 s{nb}, s{m}, 2")
    a(f"s_lshl_b32 s{rbg}, s{g}, 2")
    a(f"s_add_u32 s{rbg}, s{rbg}, s{rb64}")
    a(f"s_lshl_b32 s{rbg}, s{rbg}, 2")
    a(f"s_lshl_b32 s{t3}, s{c['qb']}, 9")
    a(f"s_add_u32 s{t3}, s{t3}, {FL1}")
    a(f"s_lshl_b32 s{t0}, s{wv}, 5")
    a(f"s_add_u32 s{t1}, s{t0}, s{c['hd']}")
    a(f"s_lshl_b32 s{t1}, s{t1}, 2")
    a(f"s_add_u32 s{sfl}, s{t3}, s{t1}")
    a(f"s_lshl_b32 s{t3}, s{g}, 9")
    a(f"s_add_u32 s{t3}, s{t3}, {FL1}")
    a(f"s_lshl_b32 s{t1}, s{rb64}, 7")
    a(f"s_add_u32 s{t1}, s{t1}, s{t0}")
    a(f"s_add_u32 s{spl}, s{t3}, s{t1}")
    colsum((0, 1))
    O_ = f"s[{SOUT}:{SOUT+3}]"
    def rowsel(stride, kq, base, gs=0):
        a(f"s_mul_i32 s{t2}, s{wv}, {kq}")
        if base: a(f"s_add_u32 s{t2}, s{t2}, {base}")
        if gs:
            a(f"s_mul_i32 s{t0}, s{g}, {gs}")
            a(f"s_add_u32 s{t2}, s{t2}, s{t0}")
        for j in range(4):
            a(f"s_add_u32 s{t0}, s{wv}, {j}")
            a(f"s_and_b32 s{t0}, s{t0}, 3")
            a(f"s_add_u32 s{t0}, s{t0}, s{rbg}")
            a(f"s_mul_i32 s{t0}, s{t0}, {stride}")
            a(f"s_add_u32 s{so[j]}, s{t0}, s{t2}")
    flag(sfl, tmp3, True)
    P.stamp(6)
    rowsel(1280, 2*GS, 0)
    OA = [128, 129, 130, 131, 132]
    a(f"v_lshrrev_b32 v{tmp}, 4, v{lane}")
    a(f"s_mov_b32 s{t0}, {163840-1280}")
    a(f"s_mov_b32 s{t1}, {GS-2*163840}")
    for s_ in range(5):
        a(f"v_add_u32 v{tmp2}, {4*s_}, v{tmp}")
        a(f"v_mul_u32_u24 v{tmp2}, 205, v{tmp2}")
        a(f"v_lshrrev_b32 v{tmp2}, 10, v{tmp2}")
        a(f"v_mad_u32_u24 v{OA[s_]}, v{tmp2}, s{t0}, v{voff}")
        a(f"v_lshrrev_b32 v{tmp2}, 1, v{tmp2}")
        a(f"v_mad_u32_u24 v{OA[s_]}, v{tmp2}, s{t1}, v{OA[s_]}")
    a(f"v_add_u32 v{OA[4]}, 4096, v{OA[4]}")
    for j in range(1, 4):
        a(f"s_add_u32 s{t0}, s{wv}, {j}")
        a(f"s_and_b32 s{t0}, s{t0}, 3")
        a(f"s_mul_i32 s{t0}, s{t0}, 15360")
        a(f"s_add_u32 s{t0}, s{t0}, {(j-1)*5120}")
        a(f"v_add_u32 v{wr[j-1]}, s{t0}, v{voff}")
    a(f"s_mul_i32 s{t0}, s{wv}, 15360")
    a(f"v_add_u32 v{rdv}, s{t0}, v{voff}")
    for gp in c['late']:
        for x in gp: a(x)
    if c['late']: a('s_waitcnt vmcnt(0)')
    colsum((2,))
    a("s_barrier")
    poll(spl, 8, tmp3)
    P.stamp(7)
    def xgemm(KS, A0, NR, ACC, RD, wf, lead, pre, va=None):
        order = [(j, s) for j in (1, 2, 3, 0) for s in range(KS)]
        N = len(order)
        accs = {1: ACC[0], 2: ACC[1], 3: ACC[2], 0: ACC[0]}
        def ld(n):
            j, s = order[n]
            out = [f"buffer_load_dwordx4 {v(A0+4*(n%NR),4)}, v{va[s] if va else voff}, {W}, s{so[j]} offen offset:{1024*(s&3)} sc1"]
            if s & 3 == 3 and s + 1 < KS and not va: out.append(f"s_add_u32 s{so[j]}, s{so[j]}, 4096")
            return out
        for n in range(lead):
            for x in ld(n): a(x)
        for x in pre: a(x)
        for n, (j, s) in enumerate(order):
            a(f"s_waitcnt vmcnt({min(lead-1, N-1-n)})")
            pj = {2: 1, 3: 2, 0: 3}.get(j)
            for i in range(5):
                D_ = accs[j] + 4*i
                a(mf16(D_, wf(s*5+i), v(A0+4*(n%NR),4), "0" if s == 0 else v(D_,4)))
                if i == 0 and n + lead < N:
                    for x in ld(n+lead): a(x)
                if pj and s == 2:
                    a(f"ds_write_b128 v{wr[pj-1]}, {v(accs[pj]+4*i,4)} offset:{1024*i}")
            if j == 0 and s == KS - 2:
                a("s_waitcnt lgkmcnt(0)")
                a("s_barrier")
        for q in range(15):
            a(f"ds_read_b128 {v(RD+4*q,4)}, v{rdv} offset:{1024*q}")
    def addres(ACC0, RD, U0):
        for j in range(10):
            a(f"v_lshlrev_b32 v{U0+2*j}, 16, v{RES+j}")
            a(f"v_and_b32 v{U0+2*j+1}, 0xffff0000, v{RES+j}")
        for j in range(10):
            a(f"v_pk_add_f32 {v(ACC0+2*j,2)}, {v(ACC0+2*j,2)}, {v(U0+2*j,2)}")
        a("s_waitcnt lgkmcnt(5)")
        for j in range(10):
            a(f"v_pk_add_f32 {v(RD+2*j,2)}, {v(RD+2*j,2)}, {v(RD+20+2*j,2)}")
        a("s_waitcnt lgkmcnt(0)")
        for j in range(10):
            a(f"v_pk_add_f32 {v(ACC0+2*j,2)}, {v(ACC0+2*j,2)}, {v(RD+40+2*j,2)}")
        for j in range(10):
            a(f"v_pk_add_f32 {v(ACC0+2*j,2)}, {v(ACC0+2*j,2)}, {v(RD+2*j,2)}")
        for j in range(10):
            a(f"v_cvt_pk_bf16_f32 v{RES+j}, v{ACC0+2*j}, v{ACC0+2*j+1}")
    ACC = [64, 84, 104]
    ha, ha2, sta = 124, 125, 126
    pre = [f"v_and_b32 v{tmp}, 15, v{lane}", f"v_lshrrev_b32 v{tmp2}, 5, v{lane}", f"v_mul_u32_u24 v{tmp2}, 1280, v{tmp2}",
           f"v_lshl_add_u32 v{ha2}, v{tmp}, 4, v{tmp2}", f"v_bfe_u32 v{tmp2}, v{lane}, 4, 1",
           f"v_lshl_add_u32 v{ha}, v{tmp2}, 9, v{ha2}", f"v_lshl_add_u32 v{ha2}, v{tmp2}, 3, v{ha2}", f"v_lshlrev_b32 v{sta}, 6, v{tmp}",
           f"s_add_u32 s{t0}, s{rbg}, s{wv}", f"s_mul_i32 s{t1}, s{t0}, 20480", f"s_mul_i32 s{t2}, s{nb}, 2560",
           f"s_add_u32 s{hs[0]}, s{t1}, s{t2}",
           f"s_lshl_b32 s{t1}, s{t0}, 10", f"s_lshl_b32 s{t2}, s{nb}, 3", f"s_add_u32 s{t1}, s{t1}, s{t2}", f"s_add_u32 s{hs[1]}, s{t1}, {WS_ST}",
           f"s_lshl_b32 s{t0}, s{t0}, 3", f"s_add_u32 s{t0}, s{t0}, s{nb}", f"s_lshl_b32 s{t0}, s{t0}, 2", f"s_add_u32 s{sfl}, s{t0}, {FL2}"]
    xgemm(5, 14, 12, ACC, 160, WOF, 6, pre, OA)
    U0 = 14
    addres(ACC[0], 160, U0)
    A0 = ACC[0]
    both([f"buffer_store_dwordx4 {v(RES,4)}, v{ha}, {O_}, s{hs[0]} offen",
          f"buffer_store_dwordx4 {v(RES+4,4)}, v{ha}, {O_}, s{hs[0]} offen offset:256",
          f"buffer_store_dwordx2 {v(RES+8,2)}, v{ha2}, {O_}, s{hs[0]} offen offset:1024"])
    sm, sq = U0, U0+2
    a(f"v_pk_add_f32 {v(sm,2)}, {v(A0,2)}, {v(A0+2,2)}")
    a(f"v_pk_mul_f32 {v(sq,2)}, {v(A0,2)}, {v(A0,2)}")
    for j in range(1, 10):
        if j > 1: a(f"v_pk_add_f32 {v(sm,2)}, {v(sm,2)}, {v(A0+2*j,2)}")
        a(f"v_pk_fma_f32 {v(sq,2)}, {v(A0+2*j,2)}, {v(A0+2*j,2)}, {v(sq,2)}")
    a(f"v_add_f32 v{sm}, v{sm}, v{sm+1}")
    a(f"v_add_f32 v{sm+1}, v{sq}, v{sq+1}")
    for op in ("v_permlane32_swap_b32", "v_permlane16_swap_b32"):
        a(f"v_mov_b32 v{sq}, v{sm}")
        a(f"v_mov_b32 v{sq+1}, v{sm+1}")
        a("s_nop 1")
        a(f"{op} v{sq}, v{sm}")
        a(f"{op} v{sq+1}, v{sm+1}")
        a("s_nop 1")
        a(f"v_pk_add_f32 {v(sm,2)}, {v(sm,2)}, {v(sq,2)}")
    a(f"s_mov_b64 exec, 0xffff")
    both([f"buffer_store_dwordx2 {v(sm,2)}, v{sta}, {W}, s{hs[1]} offen"])
    a(f"s_mov_b64 exec, -1")
    if UPTO < 4: return
    a(f"s_bfe_u32 s{rt}, s{m}, 0x10001")
    a(f"s_lshl_b32 s{t0}, s{g}, 1")
    a(f"s_add_u32 s{rt}, s{rt}, s{t0}")
    a(f"s_lshl_b32 s{chunk}, s{nb}, 1")
    a(f"s_and_b32 s{t0}, s{m}, 1")
    a(f"s_add_u32 s{chunk}, s{chunk}, s{t0}")
    a(f"s_lshl_b32 s{chunk}, s{chunk}, 2")
    a(f"s_add_u32 s{chunk}, s{chunk}, s{wv}")
    a(f"s_lshl_b32 s{t0}, s{rt}, 8")
    a(f"s_lshl_b32 s{t1}, s{wv}, 6")
    a(f"s_add_u32 s{t0}, s{t0}, s{t1}")
    a(f"s_add_u32 s{spl}, s{t0}, {FL2}")
    a(f"s_mul_i32 s{hl[0]}, s{wv}, 40960")
    a(f"s_add_u32 s{hl[1]}, s{hl[0]}, 20480")
    a(f"s_mul_i32 s{t0}, s{rt}, 163840")
    flag(sfl, tmp3)
    a(f"s_add_u32 s{hs[0]}, s{hl[0]}, s{t0}")
    a(f"s_add_u32 s{hs[1]}, s{hl[1]}, s{t0}")
    a(f"s_mul_i32 s{wd_}, s{nb}, {48*5120}")
    a(f"s_mul_i32 s{t0}, s{wv}, {12*5120}")
    a(f"s_add_u32 s{wd_}, s{wd_}, s{t0}")
    a(f"s_add_u32 s{wd_}, s{wd_}, {WS_WD}")
    rdb = [92, 93, 94]; oaddr = 95; sta = 8
    HF = lambda b, i: 14 + b*32 + i*4
    def AC(i, f):
        n = i*3 + f
        return 160 + 4*n if n < 21 else 80 + 4*(n-21)
    ST = 96
    for i in range(3):
        a(f"v_add_u32 v{rdb[i]}, {i*61440}, v{voff}")
    a(f"v_and_b32 v{tmp}, 15, v{lane}")
    a(f"v_lshrrev_b32 v{tmp2}, 4, v{lane}")
    a(f"v_lshlrev_b32 v{sta}, 6, v{tmp}")
    a(f"v_lshl_add_u32 v{sta}, v{tmp2}, 11, v{sta}")
    a(f"v_mul_u32_u24 v{oaddr}, 49152, v{tmp2}")
    a(f"v_lshl_add_u32 v{oaddr}, v{tmp}, 4, v{oaddr}")
    a("s_barrier")
    poll(spl, 16, tmp3)
    P.stamp(8)
    def hgrp(u):
        o = (u & 1)*2048
        dm = lambda b, s: f"buffer_load_dwordx4 v{voff}, {O_}, s{hs[b]} offen offset:{o+1024*s} sc1 lds"
        out = []
        for b in range(2):
            out.append([f"s_mov_b32 m0, s{hl[b]}", "s_nop 0", dm(b, 0)])
            last = [dm(b, 1)]
            if u & 1: last += [f"s_add_u32 s{hs[b]}, s{hs[b]}, 4096", f"s_add_u32 s{hl[b]}, s{hl[b]}, 4096"]
            out.append(last)
        return out
    def wdl(n):
        out = [f"buffer_load_dwordx4 {ag(4*n,4)}, v{voff}, {W}, s{wd_} offen offset:{1024*(n&3)} sc1"]
        if n & 3 == 3: out.append(f"s_add_u32 s{wd_}, s{wd_}, 4096")
        return out
    for u in range(3):
        for gp in hgrp(u):
            for x in gp: a(x)
    a(f"s_lshl_b32 s{t0}, s{rt}, 13")
    a(f"s_add_u32 s{t0}, s{t0}, {WS_ST}")
    def reads(ks, b):
        return [f"ds_read_b128 {v(HF(b,i),4)}, v{rdb[i//3]} offset:{(i%3)*20480 + ks*1024}" for i in range(8)]
    a(f"s_waitcnt vmcnt(8)")
    a(f"s_barrier")
    for x in reads(0, 0): a(x)
    NIN = 48
    loads = {ks: [] for ks in range(20)}
    for u in range(3, 10): loads[u-3] += hgrp(u)
    a(f"v_and_b32 v{tmp}, 31, v{lane}")
    a(f"v_lshlrev_b32 v{tmp}, 7, v{tmp}")
    a(f"s_lshl_b32 s{t3}, s{g}, 4")
    a(f"s_add_u32 s{t3}, s{t3}, {FL1}")
    kld, kck = c['pollw'](t3, 4, 128, tmp, False)
    loads[7] += [kld]
    loads[7] += [[f"buffer_load_dwordx4 {v(ST+16*j+4*q,4)}, v{sta}, {W}, s{t0} offen offset:{1024*j+16*q} sc1"] for j in range(2) for q in range(4)]
    for n in range(NIN):
        ks = 8 + n*12//NIN
        assert n < 3*ks
        loads[ks].append(wdl(n))
    for ks in range(20):
        b = ks & 1
        mf = [mf16(AC(i,f), ag((ks*3+f)*4,4), v(HF(b,i),4), "0" if ks == 0 else v(AC(i,f),4)) for i in range(8) for f in range(3)]
        rd = reads(ks+1, b^1) if ks < 19 else []
        ld = loads[ks]
        if os.environ.get('NOWD') and ks >= 8: ld = []
        a("s_waitcnt lgkmcnt(0)")
        seq = []
        bar = {1: 4, 5: 8, 11: 9 + sum(len(loads[k]) for k in range(8, 11))}.get(ks)
        if bar is not None:
            seq += mf[:2] + [f"s_waitcnt vmcnt({bar})", "s_barrier"]
            k0 = 2
        else:
            k0 = 0
        for i in range(8):
            seq.append(mf[k0+i])
            if rd: seq.append(rd[i])
        rest_ = mf[k0+8:]
        k = 0
        for i, x in enumerate(rest_):
            seq.append(x)
            while k < len(ld) and k*len(rest_) <= i*len(ld):
                seq += ld[k]; k += 1
        assert k == len(ld)
        for x in seq: a(x)
    P.stamp(11)
    a(f"s_waitcnt vmcnt({min(NIN,63)})")
    for x in kck: a(x)
    for j in range(2):
        b = ST + 16*j
        for d in (8, 4, 2):
            for q in range(0, d, 2):
                a(f"v_pk_add_f32 {v(b+q,2)}, {v(b+q,2)}, {v(b+q+d,2)}")
    NM = 14; R2 = 30; T = 48
    for j in range(2):
        b = ST + 16*j
        a(f"v_mul_f32 v{b}, {f32(-1.0/D)}, v{b}")
        a(f"v_mul_f32 v{b+1}, {f32(1.0/D)}, v{b+1}")
        a(f"v_fma_f32 v{b+1}, -v{b}, v{b}, v{b+1}")
        a(f"v_max_f32 v{b+1}, 0, v{b+1}")
        a(f"v_add_f32 v{b+1}, {f32(EPS)}, v{b+1}")
        a(f"v_rcp_f32 v{b+1}, v{b+1}")
    a("s_nop 0")
    rr = lambda dst, j: [dst + 2*(2*q + j) for q in range(4)]
    for j in range(2):
        for (src, dst) in ((ST+16*j, NM), (ST+16*j+1, R2)):
            r = rr(dst, j)
            a(f"v_mov_b32 v{r[0]}, v{src}")
            a(f"v_mov_b32 v{r[1]}, v{src}")
    a("s_nop 1")
    for j in range(2):
        for dst in (NM, R2):
            r = rr(dst, j)
            a(f"v_permlane16_swap_b32 v{r[0]}, v{r[1]}")
    a("s_nop 0")
    for j in range(2):
        for dst in (NM, R2):
            r = rr(dst, j)
            a(f"v_mov_b32 v{r[2]}, v{r[0]}")
            a(f"v_mov_b32 v{r[3]}, v{r[1]}")
    a("s_nop 1")
    for j in range(2):
        for dst in (NM, R2):
            r = rr(dst, j)
            a(f"v_permlane32_swap_b32 v{r[0]}, v{r[2]}")
            a(f"v_permlane32_swap_b32 v{r[1]}, v{r[3]}")
    a(f"s_mul_i32 s{t0}, s{rt}, {8*49152}")
    a(f"s_mul_i32 s{t1}, s{chunk}, 768")
    a(f"s_add_u32 s{t0}, s{t0}, s{t1}")
    a(f"s_mul_i32 s{t1}, s{g}, {GS-16*49152}")
    a(f"s_add_u32 s{t0}, s{t0}, s{t1}")
    a(f"s_add_u32 s{t0}, s{t0}, {KVO}")
    for h in range(2):
        for I in range(4):
            i = 4*h + I
            for f in range(3):
                A = AC(i,f)
                a(f"v_pk_fma_f32 {v(A,2)}, {v(CS[f],2)}, {v(NM+2*i,2)}, {v(A,2)} op_sel_hi:[1,0,1]")
                a(f"v_pk_fma_f32 {v(A+2,2)}, {v(CS[f]+2,2)}, {v(NM+2*i,2)}, {v(A+2,2)} op_sel_hi:[1,0,1]")
            for f in range(3):
                A = AC(i,f)
                a(f"v_pk_mul_f32 {v(A,2)}, {v(A,2)}, {v(R2+2*i,2)} op_sel_hi:[1,0]")
            for f in range(3):
                A = AC(i,f)
                a(f"v_pk_mul_f32 {v(A,2)}, {v(A,2)}, {v(A+2,2)}")
            for f in range(3):
                A = AC(i,f)
                a(f"v_cvt_pk_bf16_f32 v{T+12*h+4*f+I}, v{A}, v{A+1}")
        a("s_nop 1")
        for f in range(3):
            r = T + 12*h + 4*f
            a(f"v_permlane16_swap_b32 v{r}, v{r+1}")
            a(f"v_permlane16_swap_b32 v{r+2}, v{r+3}")
        a("s_nop 1")
        for f in range(3):
            r = T + 12*h + 4*f
            a(f"v_permlane32_swap_b32 v{r}, v{r+2}")
            a(f"v_permlane32_swap_b32 v{r+1}, v{r+3}")
        both([f"buffer_store_dwordx4 {v(T+12*h+4*f,4)}, v{oaddr}, {W}, s{t0} offen offset:{256*f}" for f in range(3)])
        if h == 0: a(f"s_add_u32 s{t0}, s{t0}, {4*49152}")
    if UPTO < 5: return
    a(f"s_lshl_b32 s{t0}, s{rt}, 8")
    a(f"s_add_u32 s{t0}, s{t0}, {FL3}")
    a(f"s_lshl_b32 s{t1}, s{chunk}, 2")
    a(f"s_add_u32 s{sfl}, s{t0}, s{t1}")
    a(f"s_lshl_b32 s{t1}, s{wv}, 6")
    a(f"s_add_u32 s{spl}, s{t0}, s{t1}")
    rowsel(49152, 12288, KVO, GS-16*49152)
    flag(sfl, tmp3)
    P.stamp(9)
    for n in range(NIN, 60):
        for x in wdl(n): a(x)
    a("s_barrier")
    poll(spl, 16, tmp3)
    ACC = [112, 132, 152]
    xgemm(12, 14, 24, ACC, 176, lambda n: ag(4*n,4), 8, [])
    P.stamp(10)
    addres(ACC[0], 176, 14)
    both([f"buffer_store_dwordx4 {v(RES,4)}, v{raddr}, {O_}, 0 offen",
          f"buffer_store_dwordx4 {v(RES+4,4)}, v{raddr}, {O_}, 0 offen offset:16",
          f"buffer_store_dwordx2 {v(RES+8,2)}, v{raddr}, {O_}, 0 offen offset:32"])
```

```python
from asmlib import *
from layout import *

def ag(i, n=1):
    return f"a{i}" if n == 1 else f"a[{i}:{i+n-1}]"

UPTO = int(os.environ.get('UPTO', '5'))
SPIN = int(os.environ.get('SPIN', '200000'))
IMPURE = int(os.environ.get('IMPURE', '0'))
WSTART = int(os.environ.get('WSTART', '19'))

def gen_mk(a, name="mk_attn_ffn_kernel"):
    kernel_begin(a, name)
    P = Prof(a, 0, 64, 9)
    SW, SX, SOUT, SR = 8, 12, 16, 20
    WS = 24
    g, m, wv, kvo, pure, spin, myid = 26, 27, 28, 29, 30, 31, 32
    t0, t1, t2, t3 = 33, 34, 35, 36
    fbk = 37
    hd, qb, ob = 50, 51, 52
    vmask = 38
    st1, st2, task = 40, 41, 42
    sX = [45, 46]
    wo_, wgu_ = 43, 58
    kvb = 59
    so = [60, 61, 62, 63]
    lane, voff = 1, 2
    kb = [3, 4, 5]; vb = [6, 7, 8]
    tmp, tmp2, tmp3, tmp4 = 9, 10, 11, 12
    Q = [14, 20]; K = [26, 32]; V = [38, 46]; PP = 54
    NEG = [64, 80]; S_ = [96, 112]; O = [128, 144]
    RO = [160, 176]; RJ = [204, 205]; nonce, rpj = 100, 101
    RES = 244
    raddr = 13
    WOF = lambda n: (ag(240 + 4*n, 4) if n < 4 else v(160 + 4*(n-4), 4))
    done = a.label("mkdone")
    def poll(off_sreg, nl, vt, spread=False):
        lp = a.label("poll"); out = a.label("pout")
        a(f"v_and_b32 v{vt+1}, {nl-1}, v{lane}")
        a(f"s_mov_b32 s{spin}, {SPIN}")
        if spread:
            a(f"v_and_b32 v{vt}, 3, v{lane}")
            a(f"v_and_b32 v{vt+1}, {(nl-1) & ~3}, v{lane}")
            a(f"v_lshlrev_b32 v{vt+1}, 5, v{vt+1}")
            a(f"v_lshl_add_u32 v{vt+1}, v{vt}, 2, v{vt+1}")
        else: a(f"v_lshlrev_b32 v{vt+1}, 2, v{vt+1}")
        a(f"{lp}:")
        a(f"buffer_load_dword v{vt}, v{vt+1}, s[{SW}:{SW+3}], s{off_sreg} offen sc1")
        a(f"s_sub_u32 s{spin}, s{spin}, 1")
        a(f"s_waitcnt vmcnt(0)")
        a(f"v_cmp_ne_u32 vcc, s{nonce}, v{vt}")
        a(f"s_cbranch_scc1 {out}")
        a(f"s_cbranch_vccnz {lp}")
        a(f"{out}:")
    def both(stores, wt=False):
        if wt:
            for x in stores: a(x + " sc0 sc1" if x.startswith("buffer_store") else x)
            return
        l0 = a.label("wt"); l1 = a.label("wj")
        a(f"s_cmp_eq_u32 s{pure}, 0")
        a(f"s_cbranch_scc1 {l0}")
        for x in stores: a(x)
        a(f"{l1}:")
        tail.append((l0, [x + " sc0 sc1" if x.startswith("buffer_store") else x for x in stores], l1))
    def flag(off_sreg, vt, wt=False):
        a(f"v_mov_b32 v{vt}, s{nonce}")
        a(f"v_mov_b32 v{vt+1}, 0")
        a(f"s_mov_b64 exec, 1")
        a(f"s_waitcnt vmcnt(0)")
        both([f"buffer_store_dword v{vt}, v{vt+1}, s[{SW}:{SW+3}], s{off_sreg} offen"], wt)
        a(f"s_mov_b64 exec, -1")
    tail = []

    def pollw(off_sreg, n, vt, va, first=True):
        lp = a.label("poll"); out = a.label("pout"); ck = a.label("pck")
        ld = f"buffer_load_dwordx{n} {v(vt,n)}, v{va}, s[{SW}:{SW+3}], s{off_sreg} offen sc1"
        chk = [f"v_xor_b32 v{vt+i}, s{nonce}, v{vt+i}" for i in range(n)] + (
              [f"v_or3_b32 v{vt}, v{vt}, v{vt+1}, v{vt+2}", f"v_or_b32 v{vt}, v{vt}, v{vt+3}"] if n == 4 else [f"v_or_b32 v{vt}, v{vt}, v{vt+1}"]) + [
              f"v_cmp_ne_u32 vcc, 0, v{vt}"]
        loop = [f"s_mov_b32 s{spin}, {SPIN}", f"{lp}:", ld, f"s_sub_u32 s{spin}, s{spin}, 1", "s_waitcnt vmcnt(0)"] + chk + [f"s_cbranch_scc1 {out}", f"s_cbranch_vccnz {lp}"]
        if first: return loop + [f"{out}:"]
        tail.append((ck, loop, out))
        return [ld], chk + [f"s_cbranch_vccnz {ck}", f"{out}:"]
    P.start()
    a(f"s_load_dwordx4 s[4:7], s[0:1], {KA_X}")
    a(f"s_load_dwordx2 s[48:49], s[0:1], {KA_DBG}")
    a(f"s_load_dwordx2 s[50:51], s[0:1], {KA_WO}")
    a(f"s_load_dwordx4 s[52:55], s[0:1], {KA_WG}")
    a(f"s_load_dwordx2 s[56:57], s[0:1], {KA_WD}")
    a(f"s_memrealtime s[{nonce}:{nonce+1}]")
    a(f"s_load_dwordx2 s[{WS}:{WS+1}], s[0:1], {KA_WS}")
    a(f"s_cmp_ge_u32 s2, 256")
    a(f"s_cbranch_scc1 {done}")
    a(f"v_lshrrev_b32 v{tmp}, 6, v0")
    a(f"v_and_b32 v{lane}, 63, v0")
    a(f"s_and_b32 s{g}, s2, 7")
    a(f"v_readfirstlane_b32 s{wv}, v{tmp}")
    a(f"s_lshr_b32 s{m}, s2, 3")
    import qkv
    rloads, rperm, rstores = qkv.qkv(dict(locals(), SPIN=SPIN, IMPURE=IMPURE))
    a(f"s_load_dwordx2 s[6:7], s[0:1], {KA_OUT}")
    a("L_att_begin:")
    a(f"v_lshlrev_b32 v{voff}, 4, v{lane}")
    a(f"v_and_b32 v{tmp}, 31, v{lane}")
    a(f"v_lshrrev_b32 v{tmp2}, 5, v{lane}")
    a(f"v_lshlrev_b32 v{kb[0]}, 3, v{tmp}")
    a(f"v_lshl_add_u32 v{kb[0]}, v{tmp2}, 9, v{kb[0]}")
    a(f"s_lshl_b32 s{hd}, s{g}, 2")
    a(f"s_and_b32 s{t0}, s{m}, 3")
    a(f"s_add_u32 s{hd}, s{hd}, s{t0}")
    a(f"s_lshr_b32 s{qb}, s{m}, 2")
    a(f"s_lshl_b32 s{t0}, s{qb}, 2")
    a(f"s_add_u32 s{t0}, s{t0}, s{wv}")
    a(f"s_mul_i32 s{t0}, s{t0}, 5120")
    a(f"s_mul_i32 s{t2}, s{g}, {GS}")
    a(f"s_add_u32 s{t0}, s{t0}, s{t2}")
    a(f"s_bfe_u32 s{t1}, s{m}, 0x10001")
    a(f"s_mul_i32 s{t1}, s{t1}, 163840")
    a(f"s_add_u32 s{ob}, s{t0}, s{t1}")
    a(f"s_and_b32 s{t1}, s{m}, 1")
    a(f"s_mul_i32 s{t1}, s{t1}, 1280")
    a(f"s_add_u32 s{task}, s{ob}, s{t1}")
    a(f"s_and_b32 s{t1}, s{m}, 3")
    a(f"s_mul_i32 s{t1}, s{t1}, 163840")
    a(f"s_add_u32 s{t2}, s{t2}, s{t1}")
    a(f"s_lshl_b32 s{kvo}, s{wv}, 12")
    a(f"s_mov_b32 m0, s{kvo}")
    a(f"s_add_u32 s{t2}, s{t2}, {KVO}")
    for x in range(2):
        a(f"v_mov_b32 v{Q[x]+4}, 0")
        a(f"v_mov_b32 v{Q[x]+5}, 0")
    a(f"s_waitcnt lgkmcnt(0)")
    srd(a, SOUT, 6, S*D*2)
    a(f"s_add_u32 s{kvb}, s{t2}, s{kvo}")
    ndma = [0]
    def dma():
        j = ndma[0]; ndma[0] += 1
        out = [f"buffer_load_dwordx4 v{voff}, s[{SW}:{SW+3}], s{kvb} offen offset:{1024*(j&3)} sc1 lds"]
        if j & 3 == 0 and j:
            out = [f"s_add_u32 m0, m0, 16384", f"s_add_u32 s{kvb}, s{kvb}, 16384"] + out
        return out
    srd(a, SX, 4, S*D*2)
    a(f"v_mul_u32_u24 v{vb[0]}, 320, v{tmp2}")
    a(f"v_lshl_add_u32 v{vb[0]}, v{tmp}, 4, v{vb[0]}")
    a(f"v_add_u32 v{vb[0]}, 1280, v{vb[0]}")
    for i in (1, 2):
        a(f"v_add_u32 v{kb[i]}, {61440*i}, v{kb[0]}")
        a(f"v_add_u32 v{vb[i]}, {61440*i}, v{vb[0]}")
    a(f"s_mov_b32 s{vmask}, 0xfffff")
    a(f"s_mov_b32 s{vmask+1}, 0xfffff")
    for i in range(8):
        a(f"v_mov_b32 v{V[0]+i}, 0x3f803f80")
        a(f"v_mov_b32 v{V[1]+i}, 0x3f803f80")
    a(f"s_mov_b32 s{fbk}, 0")
    a(f"s_lshr_b32 s{t0}, s{m}, 2")
    a(f"s_mul_i32 s{wo_}, s{t0}, {20*5120}")
    a(f"s_mul_i32 s{t1}, s{wv}, {5*5120}")
    a(f"s_add_u32 s{wo_}, s{wo_}, s{t1}")
    a(f"s_add_u32 s{wo_}, s{wo_}, {WS_WO}")
    a(f"s_lshl_b32 s{t1}, s{t0}, 1")
    a(f"s_and_b32 s{t2}, s{m}, 1")
    a(f"s_add_u32 s{t1}, s{t1}, s{t2}")
    a(f"s_lshl_b32 s{t1}, s{t1}, 2")
    a(f"s_add_u32 s{t1}, s{t1}, s{wv}")
    a(f"s_mul_i32 s{wgu_}, s{t1}, {3*20480}")
    a(f"s_add_u32 s{wgu_}, s{wgu_}, {WS_WGU}")
    a(f"s_lshl_b32 s{t1}, s{g}, 2")
    a(f"s_and_b32 s{t2}, s{m}, 3")
    a(f"s_add_u32 s{t1}, s{t1}, s{t2}")
    a(f"s_lshl_b32 s{t1}, s{t1}, 2")
    a(f"s_add_u32 s{t1}, s{t1}, s{wv}")
    a(f"s_mul_i32 s{t1}, s{t1}, 20480")
    a(f"s_mul_i32 s{t0}, s{t0}, 160")
    a(f"s_add_u32 s{t0}, s{t0}, s{t1}")
    a(f"v_and_b32 v{tmp}, 15, v{lane}")
    a(f"v_lshrrev_b32 v{tmp2}, 4, v{lane}")
    a(f"v_mul_u32_u24 v{raddr}, 1280, v{tmp}")
    a(f"v_mad_u32_u24 v{raddr}, v{tmp2}, 40, v{raddr}")
    a(f"v_add_u32 v{raddr}, s{t0}, v{raddr}")

    PT, pt20, pt16 = 254, 62, 63
    a(f"s_lshl_b32 s{t0}, s{g}, 5")
    a(f"s_add_u32 s{t0}, s{t0}, s{m}")
    a(f"s_lshl_b32 s{t0}, s{t0}, 2")
    a(f"s_add_u32 s{t0}, s{t0}, s{wv}")
    a(f"s_mul_i32 s{so[0]}, s{t0}, 2560")
    a(f"s_mul_i32 s{so[1]}, s{rpj}, 6144")
    a(f"s_mul_i32 s{t1}, s{g}, {GS}")
    a(f"s_add_u32 s{so[1]}, s{so[1]}, s{t1}")
    a(f"s_add_u32 s{so[1]}, s{so[1]}, {KVO}")
    a(f"v_min_u32 v{pt20}, 19, v{lane}")
    a(f"v_lshlrev_b32 v{pt20}, 7, v{pt20}")
    a(f"v_lshlrev_b32 v{pt16}, 7, v{tmp}")
    a(f"s_lshl_b32 s{so[3]}, s{t0}, 7")
    a(f"s_mov_b32 s{so[2]}, {WS_ST}")

    def ldsb(bases, off):
        i = off // 61440
        return bases[i], off - 61440*i
    def readK(t, Kb, bases=kb):
        b, off = ldsb(bases, t*2560)
        return [f"ds_read_b64 {v(Kb,2)}, v{b} offset:{off}",
                f"ds_read_b64 {v(Kb+2,2)}, v{b} offset:{off+256}",
                f"ds_read_b64 {v(Kb+4,2)}, v{b} offset:{off+1024}"]
    def readV(t, V0, bases=vb):
        b, off = ldsb(bases, t*2560)
        return [f"s_mov_b64 exec, s[{vmask}:{vmask+1}]",
                f"ds_read_b128 {v(V0,4)}, v{b} offset:{off}",
                f"ds_read_b128 {v(V0+4,4)}, v{b} offset:{off+640}",
                f"s_mov_b64 exec, -1"]
    def qk1(x, Kb, C): return f"v_mfma_f32_32x32x16_bf16 {v(S_[x],16)}, {v(Kb,4)}, {v(Q[x],4)}, {C}"
    def qk2(x, Kb): return f"v_mfma_f32_32x32x8_bf16 {v(S_[x],16)}, {v(Kb+4,2)}, {v(Q[x]+4,2)}, {v(S_[x],16)}"
    def max16(Sr, d):
        for i in range(0, 16, 2):
            a(f"v_max3_f32 v{d}, v{Sr+i}, v{Sr+i+1}, v{d}")
    pv = lambda x, Vb, hh: f"v_mfma_f32_32x32x16_bf16 {v(O[x],16)}, {v(Vb+4*hh,4)}, {v(PP+4*hh,4)}, {v(O[x],16)}"
    def prime():
        for x, d in enumerate((tmp, tmp2)):
            a(f"v_mov_b32 v{tmp3+x}, v{d}")
        a("s_nop 1")
        for x, d in enumerate((tmp, tmp2)):
            a(f"v_permlane32_swap_b32 v{tmp3+x}, v{d}")
        a("s_nop 1")
        for x, d in enumerate((tmp, tmp2)):
            a(f"v_max_f32 v{d}, v{d}, v{tmp3+x}")
        for i in range(16):
            a(f"v_sub_f32 v{NEG[0]+i}, 0, v{tmp}")
        for x in readK(1, K[1]): a(x)
        a(qk1(0, K[0], v(NEG[0],16))); a(qk2(0, K[0]))
        for x in readV(0, V[0]): a(x)
        for i in range(16):
            a(f"v_sub_f32 v{NEG[1]+i}, 0, v{tmp2}")
        for i in range(32):
            a(f"v_mov_b32 v{O[0]+i}, 0")
        for i in range(4):
            a(f"v_mov_b32 v{PP+4+i}, 0")
        a(f"s_waitcnt lgkmcnt(0)")
        a(f"v_exp_f32 v{S_[0]}, v{S_[0]}")
        a(f"v_exp_f32 v{S_[0]+1}, v{S_[0]+1}")
    def half(t, x, side, kbs=kb, vbs=vb, last=63):
        Sa, Sb = S_[x], S_[1-x]
        ex = lambda i: f"v_exp_f32 v{Sa+i}, v{Sa+i}" if i < 16 else f"v_exp_f32 v{Sb+i-16}, v{Sb+i-16}"
        cv = lambda j: f"v_cvt_pk_bf16_f32 v{PP+j}, v{Sa+2*j}, v{Sa+2*j+1}"
        Vc = V[t & 1]
        sl = [[], []]
        for i, gp in enumerate(side): sl[i % 2] += gp
        fin = x == 1 and t == last
        if x == 0:
            Kn = K[t & 1]
            rd = readV(t+1, V[(t+1) & 1], vbs) if t < last else []
            P1 = [pv(1, V[(t-1) & 1], 1)]
        else:
            Kn = K[(t+1) & 1]
            rd = readK(t+2, K[t & 1], kbs) if t + 2 <= last else []
            P1 = [pv(0, Vc, 1), "s_waitcnt lgkmcnt(0)"]
        seq = [ex(2)] + P1 + sl[1] + [cv(0), ex(3), ex(4), cv(1), ex(5), None if fin else qk1(1-x, Kn, v(NEG[1-x],16))] + rd + [
               ex(6), cv(2), ex(7), ex(8), None if fin else qk2(1-x, Kn), cv(3), ex(9), ex(10), cv(4), ex(11), ex(12), cv(5), ex(13),
               pv(x, Vc, 0)] + sl[0] + [ex(14), cv(6), ex(15)] + (["s_nop 0", cv(7), "s_nop 1"] if fin else [ex(16), cv(7), ex(17)])
        for s_ in seq:
            if s_: a(s_)
    a(f"s_lshl_b32 s{t0}, s{g}, 9")
    a(f"s_add_u32 s{t0}, s{t0}, {FL0}")
    a(f"v_lshlrev_b32 v{tmp}, 3, v{lane}")
    a(f"s_lshl_b32 s{st1}, s2, 2")
    a(f"s_add_u32 s{st1}, s{st1}, {FLR}")
    a(f"s_mov_b32 s{st2}, {FLR}")
    a(f"v_mov_b32 v192, s{nonce}")
    a(f"v_mov_b32 v193, 0")
    a(f"s_barrier")
    for x in pollw(t0, 2, 64, tmp): a(x)
    P.stamp(3)
    for x in range(2):
        a(f"buffer_load_dwordx2 {v(Q[x],2)}, v{kb[0]}, s[{SW}:{SW+3}], s{task} offen offset:{2560*x} sc1")
        a(f"buffer_load_dwordx2 {v(Q[x]+2,2)}, v{kb[0]}, s[{SW}:{SW+3}], s{task} offen offset:{2560*x+256} sc1")
    a(f"s_mov_b32 exec_hi, 0")
    for x in range(2):
        a(f"buffer_load_dwordx2 {v(Q[x]+4,2)}, v{kb[0]}, s[{SW}:{SW+3}], s{task} offen offset:{2560*x+1024} sc1")
    a(f"s_mov_b64 exec, -1")
    for j in range(16):
        for x in dma(): a(x)
    a(f"s_waitcnt vmcnt(8)")
    a(f"s_barrier")
    P.stamp(4)
    for x in readK(0, K[0]): a(x)
    a(f"v_mov_b32 v{tmp}, 0xff800000")
    a(f"v_mov_b32 v{tmp2}, 0xff800000")
    a(f"s_waitcnt lgkmcnt(0)")
    a(qk1(0, K[0], "0")); a(qk1(1, K[0], "0")); a(qk2(0, K[0])); a(qk2(1, K[0]))
    a("s_nop 7"); a("s_nop 4")
    max16(S_[0], tmp); max16(S_[1], tmp2)
    prime()
    a(f"v_and_b32 v{tmp}, 3, v{lane}")
    a(f"v_bfe_u32 v{tmp2}, v{lane}, 2, 1")
    a(f"v_lshlrev_b32 v{tmp}, 7, v{tmp}")
    a(f"v_lshl_add_u32 v{tmp}, v{tmp2}, 12, v{tmp}")
    a(f"s_lshl_b32 s{t1}, s{g}, 9")
    a(f"s_add_u32 s{t1}, s{t1}, {FL2-WS_ST}")
    a(f"v_add_u32 v{tmp4}, s{t1}, v{tmp}")
    a(f"v_writelane_b32 v{tmp4}, s{so[3]}, 63")
    Wd_ = f"s[{SW}:{SW+3}]"
    wo_l, gu_l = [], []
    for n in range(25):
        gp = [f"buffer_load_dwordx4 {WOF(n)}, v{voff}, {Wd_}, s{wo_} offen offset:{1024*(n&3)} sc1"]
        if n & 3 == 0 and n: gp.insert(0, f"s_add_u32 s{wo_}, s{wo_}, 4096")
        wo_l.append((8, gp))
    for f in range(3):
        for ks in range(20):
            gp = [f"buffer_load_dwordx4 {ag((ks*3+f)*4,4)}, v{voff}, {Wd_}, s{wgu_} offen offset:{1024*(ks&3)} sc1"]
            if ks & 3 == 0 and (ks or f): gp.insert(0, f"s_add_u32 s{wgu_}, s{wgu_}, 4096")
            gu_l.append((8, gp))
    CW = float(os.environ.get('CW', '2'))
    x_l = [(24, [f"buffer_load_dwordx4 {v(RES,4)}, v{raddr}, s[{SX}:{SX+3}], 0 offen"]),
           (8, [f"buffer_load_dwordx4 {v(RES+4,4)}, v{raddr}, s[{SX}:{SX+3}], 0 offen offset:16"]),
           (8, [f"buffer_load_dwordx2 {v(RES+8,2)}, v{raddr}, s[{SX}:{SX+3}], 0 offen offset:32"])]
    pt = lambda va, sr, off=0: f"buffer_load_dword v{PT}, v{va}, {Wd_}, s{sr} offen offset:{off} sc1"
    pt_l = [(20*CW, [pt(pt20, so[0]).replace(Wd_, f"s[{SOUT}:{SOUT+3}]")]), (9, [pt(tmp4, so[2])])]
    pa_l = [(16, [pt(pt16, so[1])]), (16, [pt(pt16, so[1], 2048)]), (16, [f"s_add_u32 s{so[1]}, s{so[1]}, 4096", pt(pt16, so[1])])]
    if os.environ.get('NOPT'): pt_l = []
    early = x_l + pt_l
    SP = int(os.environ.get('SP', '16'))
    items = gu_l[:40] + wo_l + gu_l[40:]
    if not os.environ.get('NOPA'):
        for k, it_ in enumerate(pa_l): items.insert(len(items) - SP - 8 + 6*k, it_)
    CAP = float(os.environ.get('CAP', '10.5')); HEND = int(os.environ.get('HEND', '128'))
    HW = int(os.environ.get('HW', '20')); HF = HW + int(os.environ.get('DF', '20')); HP = HF + int(os.environ.get('DP', '10')); HC = HP + 4
    l0 = a.label("nfl")
    flagr = [f"s_cmp_lg_u32 s{wv}, 0", f"s_cbranch_scc1 {l0}", "s_mov_b64 exec, 1",
             f"buffer_store_dword v192, v193, {Wd_}, s{st1} offen sc0 sc1", "s_mov_b64 exec, -1", f"{l0}:"]
    pld, pck = pollw(st2, 4, 196, voff, False)
    if not os.environ.get('NOCP2'):
        b = Asm(); b.uid = a.uid + 1000; a.uid += 2000
        code_prefetch(b, "L_fin_begin", "L_mk_end", rpj, 54, t1, lane, 255)
        items.insert(len(items) - SP, (16, [x.strip() for x in b.lines]))
    side = {}; issued = []
    kvq = list(range(16, 40)); rs = list(rstores); rl = list(rloads)
    budget = 0.0; k = 0
    kvh = {j: (HW + 1 + (j-16)*2//3 if j < 28 else HF + 1 + 2*(j-28)) for j in range(16, 40)}
    assert HW <= 21 and kvh[27] < HF <= 46
    for h in range(128):
        sd = []
        budget = min(budget + CAP, 2*CAP)
        if h == HW: sd += [[f"s_waitcnt vmcnt({len(issued)-16})", "s_barrier"], rperm]
        if h == HF: sd.append(["s_waitcnt vmcnt(0)", "s_barrier"] + flagr)
        if h == 84: sd.append([f"s_waitcnt vmcnt({min(63, len(issued) - 1 - issued.index(39))})", "s_barrier"])
        if h == HP: sd.append(pld); issued.append(-2)
        if h == HC: sd.append([f"s_waitcnt vmcnt({len(issued) - 1 - issued.index(-2)})"] + pck)
        while rl and len(sd) < 2: sd.append([rl.pop(0)]); issued.append(-3)
        while h > HW and rs and len(sd) < int(os.environ.get('SR', '1')): sd.append([rs.pop(0)])
        while kvq and h >= kvh[kvq[0]] and len(sd) < 2:
            sd.append(dma()); issued.append(kvq.pop(0)); budget -= float(os.environ.get('KVW', '4'))
        if h >= int(os.environ.get('HE', '52')) and h % 2 == 0 and early and len(sd) < 2:
            w_, gp = early.pop(0); sd.append(gp); issued.append(-1)
        while HC < h < HEND and k < len(items) and budget > 0 and len(sd) < 2:
            budget -= items[k][0]; sd.append(items[k][1]); issued.append(-1); k += 1
        side[h] = sd[::-1]
    assert not early and not rs
    late = [gp for w_, gp in items[k:]]
    print("late items", len(late))
    assert all(it_ in gu_l[40:] for it_ in items[k:])
    nlast = sum(1 for it_ in items[40:k] if it_ in wo_l or it_ in gu_l)
    assert items[39] is gu_l[39]
    assert ndma[0] == 40
    for t in range(64):
        for x in range(2):
            half(t, x, side[2*t+x])
            P.stamp(f"h{2*t+x}")
    fin0 = a.label("fin0")
    a(f"{fin0}:")
    a("L_fin_begin:")
    a(pv(1, V[1], 1))
    P.stamp(5)
    a(f"v_bfe_u32 v{tmp}, v{lane}, 4, 1")
    a(f"v_mul_u32_u24 v{tmp}, 1280, v{tmp}")
    a(f"v_and_b32 v{tmp2}, 15, v{lane}")
    a(f"v_lshl_add_u32 v{tmp}, v{tmp2}, 4, v{tmp}")
    a(f"v_lshrrev_b32 v{tmp2}, 5, v{lane}")
    a(f"v_lshl_add_u32 v{tmp2}, v{tmp2}, 8, v{tmp}")
    a(f"v_rcp_f32 v{tmp3}, v{O[0]+12}")
    a(f"s_mov_b32 s{t3}, 0x5f800000")
    a(f"s_mov_b32 s{t0}, s{ob}")
    a("s_nop 5")
    a(f"s_and_b32 s{t1}, s{hd}, 1")
    a(f"v_add_f32 v{S_[0]}, v{O[0]+12}, v{O[1]+12}")
    a(f"s_lshl_b32 s{t2}, s{t1}, 9")
    a(f"s_add_u32 s{so[0]}, s{t2}, s{t0}")
    a(f"v_cmp_nlt_f32 vcc, v{S_[0]}, s{t3}")
    a(f"s_lshl_b32 s{t1}, s{t1}, 3")
    a(f"s_add_u32 s{so[1]}, s{t1}, s{t0}")
    a(f"s_add_u32 s{so[2]}, s{so[0]}, 2560")
    a(f"s_add_u32 s{so[3]}, s{so[1]}, 2560")
    fb = a.label("fb"); fin = a.label("fin")
    a(f"s_cbranch_vccnz {fb}")
    a(f"{fin}:")
    a(f"v_rcp_f32 v{tmp4}, v{O[1]+12}")
    a(f"s_waitcnt vmcnt({nlast})")
    for x in range(2):
        for i in range(12):
            a(f"v_mul_f32 v{O[x]+i}, v{O[x]+i}, v{tmp3+x}")
        for i in range(6):
            a(f"v_cvt_pk_bf16_f32 v{O[x]+i}, v{O[x]+2*i}, v{O[x]+2*i+1}")
    both([f"buffer_store_dwordx4 {v(O[x],4)}, v{tmp2}, s[{SW}:{SW+3}], s{so[2*x]} offen" for x in range(2)] + ["s_mov_b32 exec_hi, 0"] +
         [f"buffer_store_dwordx2 {v(O[x]+4,2)}, v{tmp}, s[{SW}:{SW+3}], s{so[2*x+1]} offen offset:1024" for x in range(2)] + ["s_mov_b64 exec, -1"], True)
    ctx = dict(locals())
    if UPTO >= 3:
        import mg2
        mg2.rest(ctx)
    l0 = a.label("ntag")
    a(f"s_or_b32 s{t0}, s2, s{wv}")
    a(f"s_cbranch_scc1 {l0}")
    a(f"s_load_dwordx2 s[48:49], s[0:1], {KA_DBG}")
    a(f"v_mov_b32 v{tmp}, 0")
    a(f"s_mov_b64 exec, 1")
    a(f"s_waitcnt lgkmcnt(0)")
    a(f"global_store_dword v{tmp}, v{tmp}, s[48:49]")
    a(f"{l0}:")
    P.flush(12, WS, wv)
    a(f"{done}:")
    a("s_endpgm")
    a(f"{fb}:")
    a(f"s_cmp_lg_u32 s{fbk}, 0")
    a(f"s_cbranch_scc1 {fin}")
    a(f"s_mov_b32 s{fbk}, 1")
    ka, va = 62, 63
    a(f"v_add_u32 v{ka}, {63*2560}, v{kb[0]}")
    a(f"v_mov_b32 v{tmp}, 0xff800000")
    a(f"v_mov_b32 v{tmp2}, 0xff800000")
    a(f"s_mov_b32 s{t0}, 64")
    fl = a.label("fl")
    a(f"{fl}:")
    for x in readK(0, K[0], [ka]): a(x)
    a(f"s_waitcnt lgkmcnt(0)")
    a(qk1(0, K[0], "0")); a(qk1(1, K[0], "0")); a(qk2(0, K[0])); a(qk2(1, K[0]))
    a(f"v_subrev_u32 v{ka}, 2560, v{ka}")
    a(f"s_sub_u32 s{t0}, s{t0}, 1")
    a("s_nop 7"); a("s_nop 4")
    max16(S_[0], tmp); max16(S_[1], tmp2)
    a(f"s_cmp_lg_u32 s{t0}, 0")
    a(f"s_cbranch_scc1 {fl}")
    prime()
    a(f"v_mov_b32 v{ka}, v{kb[0]}")
    a(f"v_mov_b32 v{va}, v{vb[0]}")
    a(f"s_mov_b32 s{t0}, 31")
    fl = a.label("fl2")
    a(f"{fl}:")
    for t in range(2):
        for x in range(2): half(t, x, [], [ka], [va])
    a(f"v_add_u32 v{ka}, 5120, v{ka}")
    a(f"v_add_u32 v{va}, 5120, v{va}")
    a(f"s_sub_u32 s{t0}, s{t0}, 1")
    a(f"s_cmp_lg_u32 s{t0}, 0")
    a(f"s_cbranch_scc1 {fl}")
    for t in range(2):
        for x in range(2): half(t, x, [], [ka], [va], last=1)
    a(f"s_branch {fin0}")
    for l0, ins, l1 in tail:
        a(f"{l0}:")
        for x in ins: a(x)
        a(f"s_branch {l1}")
    a("L_mk_end:")
    kernel_desc(a, name, 512, 102, accum=256)
    return dict(name=name, grid=256, block=256, lds=163840)
```

```python
from asmlib import *
from layout import *

def rest(c):
    a, P = c['a'], c['P']
    ag, both, flag, poll, WOF = c['ag'] if 'ag' in c else None, c['both'], c['flag'], c['poll'], c['WOF']
    import mg as mk
    ag = mk.ag; UPTO = mk.UPTO
    SW, SOUT, g, m, wv = c['SW'], c['SOUT'], c['g'], c['m'], c['wv']
    t0, t1, t2, t3, so = c['t0'], c['t1'], c['t2'], c['t3'], c['so']
    lane, voff, RES, raddr = c['lane'], c['voff'], c['RES'], c['raddr']
    tmp, tmp2, tmp3, tmp4 = c['tmp'], c['tmp2'], c['tmp3'], c['tmp4']
    W = f"s[{SW}:{SW+3}]"
    P1W = int(os.environ.get('P1W', '0')); WA = int(os.environ.get('WA', '1')); wd2 = 52
    rb64, nb, rbg, sfl, spl, wd_ = 40, 41, 42, 43, 44, 47
    hs = [45, 46]; hl = [48, 49]; chunk, rt = 50, 51
    CS = [136, 140, 152]; ONES = 156
    wr = [3, 4, 5]; rdv = 6; voff2 = 7
    mf16 = lambda D_, A_, B_, C_: f"v_mfma_f32_16x16x32_bf16 {v(D_,4)}, {A_}, {B_}, {C_}"
    def colsum(fs):
        for ks in range(20):
            for f in fs:
                a(mf16(CS[f], ag((ks*3+f)*4,4), v(ONES,4), "0" if ks == 0 else v(CS[f],4)))
    for i in range(4): a(f"v_mov_b32 v{ONES+i}, 0x3f803f80")
    a(f"s_and_b32 s{rb64}, s{m}, 3")
    a(f"s_lshr_b32 s{nb}, s{m}, 2")
    a(f"s_lshl_b32 s{rbg}, s{g}, 2")
    a(f"s_add_u32 s{rbg}, s{rbg}, s{rb64}")
    a(f"s_lshl_b32 s{rbg}, s{rbg}, 2")
    a(f"s_lshl_b32 s{t3}, s{c['qb']}, 2")
    a(f"s_add_u32 s{t3}, s{t3}, s{wv}")
    a(f"s_lshl_b32 s{t3}, s{t3}, 3")
    a(f"s_add_u32 s{t3}, s{t3}, s{g}")
    a(f"s_lshl_b32 s{t3}, s{t3}, 5")
    a(f"s_add_u32 s{t3}, s{t3}, s{rb64}")
    a(f"s_lshl_b32 s{t3}, s{t3}, 2")
    a(f"s_add_u32 s{sfl}, s{t3}, {FL1}")
    a(f"s_add_u32 s{t3}, s{rbg}, s{wv}")
    a(f"s_lshl_b32 s{t3}, s{t3}, 8")
    a(f"s_add_u32 s{spl}, s{t3}, {FL1}")
    colsum((0, 1))
    O_ = f"s[{SOUT}:{SOUT+3}]"
    def rowsel(stride, kq, base, gs=0):
        a(f"s_mul_i32 s{t2}, s{wv}, {kq}")
        if base: a(f"s_add_u32 s{t2}, s{t2}, {base}")
        if gs:
            a(f"s_mul_i32 s{t0}, s{g}, {gs}")
            a(f"s_add_u32 s{t2}, s{t2}, s{t0}")
        for j in range(4):
            a(f"s_add_u32 s{t0}, s{wv}, {j}")
            a(f"s_and_b32 s{t0}, s{t0}, 3")
            a(f"s_add_u32 s{t0}, s{t0}, s{rbg}")
            a(f"s_mul_i32 s{t0}, s{t0}, {stride}")
            a(f"s_add_u32 s{so[j]}, s{t0}, s{t2}")
    flag(sfl, tmp3, True)
    P.stamp(6)
    RP = [133, 134, 135]; rpa = 144
    def rpl(i, guard=True):
        if P1W < 2: return
        lq = a.label("nrp")
        if guard:
            a(f"s_cmp_lg_u32 s{wv}, 0")
            a(f"s_cbranch_scc1 {lq}")
        a(f"buffer_load_dword v{RP[i]}, v{rpa}, {W}, s{spl} offen sc1")
        if guard: a(f"{lq}:")
    if P1W == 2:
        a(f"v_and_b32 v{rpa}, 28, v{lane}")
        a(f"v_and_b32 v{rpa+1}, 3, v{lane}")
        a(f"v_lshlrev_b32 v{rpa}, 5, v{rpa}")
        a(f"v_lshl_add_u32 v{rpa}, v{rpa+1}, 2, v{rpa}")
    rpl(0)
    rowsel(1280, 2*GS, 0)
    OA = [128, 129, 130, 131, 132]
    a(f"v_lshrrev_b32 v{tmp}, 4, v{lane}")
    a(f"s_mov_b32 s{t0}, {163840-1280}")
    a(f"s_mov_b32 s{t1}, {GS-2*163840}")
    for s_ in range(5):
        a(f"v_add_u32 v{tmp2}, {4*s_}, v{tmp}")
        a(f"v_mul_u32_u24 v{tmp2}, 205, v{tmp2}")
        a(f"v_lshrrev_b32 v{tmp2}, 10, v{tmp2}")
        a(f"v_mad_u32_u24 v{OA[s_]}, v{tmp2}, s{t0}, v{voff}")
        a(f"v_lshrrev_b32 v{tmp2}, 1, v{tmp2}")
        a(f"v_mad_u32_u24 v{OA[s_]}, v{tmp2}, s{t1}, v{OA[s_]}")
    a(f"v_add_u32 v{OA[4]}, 4096, v{OA[4]}")
    for j in range(1, 4):
        a(f"s_add_u32 s{t0}, s{wv}, {j}")
        a(f"s_and_b32 s{t0}, s{t0}, 3")
        a(f"s_mul_i32 s{t0}, s{t0}, 15360")
        a(f"s_add_u32 s{t0}, s{t0}, {(j-1)*5120}")
        a(f"v_add_u32 v{wr[j-1]}, s{t0}, v{voff}")
    a(f"s_mul_i32 s{t0}, s{wv}, 15360")
    a(f"v_add_u32 v{rdv}, s{t0}, v{voff}")
    for gp in c['late']:
        for x in gp: a(x)
    if c['late']: a('s_waitcnt vmcnt(0)')
    assert P1W < 2 or not c['late']
    rpl(1)
    colsum((2,))
    if P1W == 2:
        lq = a.label("np1"); lp = a.label("rp")
        a(f"s_cmp_lg_u32 s{wv}, 0")
        a(f"s_cbranch_scc1 {lq}")
        rpl(2, False)
        a(f"s_mov_b32 s{c['spin']}, {mk.SPIN}")
        a(f"{lp}:")
        for i in range(3):
            a("s_waitcnt vmcnt(2)")
            a(f"v_cmp_ne_u32 vcc, s{c['nonce']}, v{RP[i]}")
            a(f"s_cbranch_vccz {lq}")
            rpl(i, False)
        a(f"s_sub_u32 s{c['spin']}, s{c['spin']}, 1")
        a(f"s_cbranch_scc0 {lp}")
        a(f"{lq}:")
        a("s_barrier")
    elif P1W:
        lq = a.label("np1")
        a(f"s_cmp_lg_u32 s{wv}, 0")
        a(f"s_cbranch_scc1 {lq}")
        poll(spl, 32, tmp3, True)
        a(f"{lq}:")
        a("s_barrier")
    else:
        a("s_barrier")
        poll(spl, 8, tmp3, True)
    P.stamp(7)
    def xgemm(KS, A0, NR, ACC, RD, wf, lead, pre, va=None):
        order = [(j, s) for j in (1, 2, 3, 0) for s in range(KS)]
        N = len(order)
        accs = {1: ACC[0], 2: ACC[1], 3: ACC[2], 0: ACC[0]}
        def ld(n):
            j, s = order[n]
            out = [f"buffer_load_dwordx4 {v(A0+4*(n%NR),4)}, v{va[s] if va else voff}, {W}, s{so[j]} offen offset:{1024*(s&3)} sc1"]
            if s & 3 == 3 and s + 1 < KS and not va: out.append(f"s_add_u32 s{so[j]}, s{so[j]}, 4096")
            return out
        for n in range(lead):
            for x in ld(n): a(x)
        for x in pre: a(x)
        for n, (j, s) in enumerate(order):
            a(f"s_waitcnt vmcnt({min(lead-1, N-1-n)})")
            P.stamp(f"g{KS}_{n}")
            pj = {2: 1, 3: 2, 0: 3}.get(j)
            for i in range(5):
                D_ = accs[j] + 4*i
                a(mf16(D_, wf(s*5+i), v(A0+4*(n%NR),4), "0" if s == 0 and j else v(D_,4)))
                if j == 3 and s < 2:
                    q = 5*s + i
                    a(f"v_lshlrev_b32 v{ACC[0]+2*q}, 16, v{RES+q}")
                    a(f"v_and_b32 v{ACC[0]+2*q+1}, 0xffff0000, v{RES+q}")
                if i == 0 and n + lead < N:
                    for x in ld(n+lead): a(x)
                if pj and s == 2:
                    a(f"ds_write_b128 v{wr[pj-1]}, {v(accs[pj]+4*i,4)} offset:{1024*i}")
            if j == 0 and s == KS - 2:
                a("s_waitcnt lgkmcnt(0)")
                a("s_barrier")
        for q in range(15):
            a(f"ds_read_b128 {v(RD+4*q,4)}, v{rdv} offset:{1024*q}")
    def addres(ACC0, RD, U0):
        a("s_waitcnt lgkmcnt(5)")
        for j in range(10):
            a(f"v_pk_add_f32 {v(RD+2*j,2)}, {v(RD+2*j,2)}, {v(RD+20+2*j,2)}")
        a("s_waitcnt lgkmcnt(0)")
        for j in range(10):
            a(f"v_pk_add_f32 {v(ACC0+2*j,2)}, {v(ACC0+2*j,2)}, {v(RD+40+2*j,2)}")
        for j in range(10):
            a(f"v_pk_add_f32 {v(ACC0+2*j,2)}, {v(ACC0+2*j,2)}, {v(RD+2*j,2)}")
        for j in range(10):
            a(f"v_cvt_pk_bf16_f32 v{RES+j}, v{ACC0+2*j}, v{ACC0+2*j+1}")
    ACC = [64, 84, 104]
    ha, ha2, sta = 124, 125, 126
    pre = [f"v_and_b32 v{tmp}, 15, v{lane}", f"v_lshrrev_b32 v{tmp2}, 5, v{lane}", f"v_mul_u32_u24 v{tmp2}, 1280, v{tmp2}",
           f"v_lshl_add_u32 v{ha2}, v{tmp}, 4, v{tmp2}", f"v_bfe_u32 v{tmp2}, v{lane}, 4, 1",
           f"v_lshl_add_u32 v{ha}, v{tmp2}, 9, v{ha2}", f"v_lshl_add_u32 v{ha2}, v{tmp2}, 3, v{ha2}", f"v_lshlrev_b32 v{sta}, 4, v{tmp}",
           f"s_add_u32 s{t0}, s{rbg}, s{wv}", f"s_mul_i32 s{t1}, s{t0}, 20480", f"s_mul_i32 s{t2}, s{nb}, 2560",
           f"s_add_u32 s{hs[0]}, s{t1}, s{t2}",
           f"s_lshl_b32 s{t1}, s{t0}, 10", f"s_mul_i32 s{t2}, s{nb}, 136", f"s_and_b32 s{t2}, s{t2}, 0x308", f"s_add_u32 s{t1}, s{t1}, s{t2}", f"s_add_u32 s{hs[1]}, s{t1}, {WS_ST}",
           f"s_lshl_b32 s{t0}, s{t0}, 3", f"s_add_u32 s{t0}, s{t0}, s{nb}", f"s_lshl_b32 s{t0}, s{t0}, 2", f"s_add_u32 s{sfl}, s{t0}, {FL2}"]
    xgemm(5, 14, 12, ACC, 160, WOF, 6, pre, OA)
    U0 = 14
    P.stamp("p3g")
    addres(ACC[0], 160, U0)
    A0 = ACC[0]
    both([f"buffer_store_dwordx4 {v(RES,4)}, v{ha}, {O_}, s{hs[0]} offen",
          f"buffer_store_dwordx4 {v(RES+4,4)}, v{ha}, {O_}, s{hs[0]} offen offset:256",
          f"buffer_store_dwordx2 {v(RES+8,2)}, v{ha2}, {O_}, s{hs[0]} offen offset:1024"])
    sm, sq = U0, U0+2
    a(f"v_pk_add_f32 {v(sm,2)}, {v(A0,2)}, {v(A0+2,2)}")
    a(f"v_pk_mul_f32 {v(sq,2)}, {v(A0,2)}, {v(A0,2)}")
    for j in range(1, 10):
        if j > 1: a(f"v_pk_add_f32 {v(sm,2)}, {v(sm,2)}, {v(A0+2*j,2)}")
        a(f"v_pk_fma_f32 {v(sq,2)}, {v(A0+2*j,2)}, {v(A0+2*j,2)}, {v(sq,2)}")
    a(f"v_add_f32 v{sm}, v{sm}, v{sm+1}")
    a(f"v_add_f32 v{sm+1}, v{sq}, v{sq+1}")
    for op in ("v_permlane32_swap_b32", "v_permlane16_swap_b32"):
        a(f"v_mov_b32 v{sq}, v{sm}")
        a(f"v_mov_b32 v{sq+1}, v{sm+1}")
        a("s_nop 1")
        a(f"{op} v{sq}, v{sm}")
        a(f"{op} v{sq+1}, v{sm+1}")
        a("s_nop 1")
        a(f"v_pk_add_f32 {v(sm,2)}, {v(sm,2)}, {v(sq,2)}")
    a(f"s_mov_b64 exec, 0xffff")
    both([f"buffer_store_dwordx2 {v(sm,2)}, v{sta}, {W}, s{hs[1]} offen"])
    a(f"s_mov_b64 exec, -1")
    if UPTO < 4: return
    a(f"s_bfe_u32 s{rt}, s{m}, 0x10001")
    a(f"s_lshl_b32 s{t0}, s{g}, 1")
    a(f"s_add_u32 s{rt}, s{rt}, s{t0}")
    a(f"s_lshl_b32 s{chunk}, s{nb}, 1")
    a(f"s_and_b32 s{t0}, s{m}, 1")
    a(f"s_add_u32 s{chunk}, s{chunk}, s{t0}")
    a(f"s_lshl_b32 s{chunk}, s{chunk}, 2")
    a(f"s_add_u32 s{chunk}, s{chunk}, s{wv}")
    a(f"s_lshl_b32 s{t0}, s{rt}, 8")
    a(f"s_lshl_b32 s{t1}, s{wv}, 6")
    a(f"s_add_u32 s{t0}, s{t0}, s{t1}")
    a(f"s_add_u32 s{spl}, s{t0}, {FL2}")
    a(f"s_mul_i32 s{hl[0]}, s{wv}, 40960")
    a(f"s_add_u32 s{hl[1]}, s{hl[0]}, 20480")
    a(f"s_mul_i32 s{t0}, s{rt}, 163840")
    P.stamp("p3s")
    flag(sfl, tmp3)
    P.stamp("p3f")
    a(f"s_add_u32 s{hs[0]}, s{hl[0]}, s{t0}")
    a(f"s_add_u32 s{hs[1]}, s{hl[1]}, s{t0}")
    a(f"s_mul_i32 s{wd_}, s{nb}, {48*5120}")
    a(f"s_mul_i32 s{t0}, s{wv}, {12*5120}")
    a(f"s_add_u32 s{wd_}, s{wd_}, s{t0}")
    a(f"s_add_u32 s{wd_}, s{wd_}, {WS_WD}")
    a(f"s_add_u32 s{wd2}, s{wd_}, {56*1024}")
    rdb = [92, 93, 94]; oaddr = 95; sta = 8
    HF = lambda b, i: 14 + b*32 + i*4
    def AC(i, f):
        n = i*3 + f
        return 160 + 4*n if n < 21 else 80 + 4*(n-21)
    ST = 96
    for i in range(3):
        a(f"v_add_u32 v{rdb[i]}, {i*61440}, v{voff}")
    a(f"v_and_b32 v{tmp}, 15, v{lane}")
    a(f"v_lshrrev_b32 v{tmp2}, 4, v{lane}")
    a(f"v_add_u32 v{sta}, 4096, v{voff}")
    a(f"v_mul_u32_u24 v{oaddr}, 49152, v{tmp2}")
    a(f"v_lshl_add_u32 v{oaddr}, v{tmp}, 4, v{oaddr}")
    a("s_barrier")
    poll(spl, 16, tmp3)
    P.stamp(8)
    def hgrp(u):
        o = (u & 1)*2048
        dm = lambda b, s: f"buffer_load_dwordx4 v{voff}, {O_}, s{hs[b]} offen offset:{o+1024*s} sc1 lds"
        out = []
        for b in range(2):
            out.append([f"s_mov_b32 m0, s{hl[b]}", "s_nop 0", dm(b, 0)])
            last = [dm(b, 1)]
            if u & 1: last += [f"s_add_u32 s{hs[b]}, s{hs[b]}, 4096", f"s_add_u32 s{hl[b]}, s{hl[b]}, 4096"]
            out.append(last)
        return out
    WDF = lambda n: ag(4*n + (12 if WA and n >= 57 else 0), 4)
    def wdl(n):
        if WA and n >= 57: return [f"buffer_load_dwordx4 {WDF(n)}, v{voff}, {W}, s{wd2} offen offset:{1024*(n&3)} sc1"]
        out = [f"buffer_load_dwordx4 {ag(4*n,4)}, v{voff}, {W}, s{wd_} offen offset:{1024*(n&3)} sc1"]
        if n & 3 == 3: out.append(f"s_add_u32 s{wd_}, s{wd_}, 4096")
        return out
    for u in range(3):
        for gp in hgrp(u):
            for x in gp: a(x)
    a(f"s_lshl_b32 s{t0}, s{rt}, 13")
    a(f"s_add_u32 s{t0}, s{t0}, {WS_ST}")
    def reads(ks, b):
        return [f"ds_read_b128 {v(HF(b,i),4)}, v{rdb[i//3]} offset:{(i%3)*20480 + ks*1024}" for i in range(8)]
    a(f"s_waitcnt vmcnt(8)")
    a(f"s_barrier")
    P.stamp("kb")
    for x in reads(0, 0): a(x)
    NIN = 60 if WA else 48
    loads = {ks: [] for ks in range(20)}
    for u in range(3, 10): loads[u-3] += hgrp(u)
    a(f"v_and_b32 v{tmp}, 7, v{lane}")
    a(f"v_lshlrev_b32 v{tmp}, 12, v{tmp}")
    a(f"s_lshl_b32 s{t3}, s{wv}, 3")
    a(f"s_add_u32 s{t3}, s{t3}, s{g}")
    a(f"s_lshl_b32 s{t3}, s{t3}, 7")
    a(f"s_add_u32 s{t3}, s{t3}, {FL1}")
    kld, kck = c['pollw'](t3, 4, 128, tmp, False)
    loads[6].insert(0, kld)
    loads[7] += [[f"buffer_load_dwordx4 {v(ST+4*i,4)}, v{sta if i > 3 else voff}, {W}, s{t0} offen offset:{1024*(i&3)} sc1"] for i in range(8)]
    for p_, n in enumerate(([57, 58, 59] if WA else []) + list(range(min(NIN, 57)))):
        ks = 8 + p_*12//NIN
        assert n < 3*ks or n >= 57
        loads[ks].append(wdl(n))
    sl = [f"s_waitcnt vmcnt({sum(len(loads[k]) for k in range(8, 12))})"]; a_ = sl.append
    for i in range(8): [a_(f"v_add_f32 v{ST+4*i+q}, v{ST+4*i+q}, v{ST+4*i+2+q}") for q in range(2)]
    for op, n in (("v_permlane32_swap_b32", 4), ("v_permlane16_swap_b32", 2)):
        a_("s_nop 1")
        for i in range(n):
            for q in range(2): a_(f"{op} v{ST+4*i+q}, v{ST+4*(i+n)+q}")
        a_("s_nop 1")
        for i in range(n): [a_(f"v_add_f32 v{ST+4*i+q}, v{ST+4*i+q}, v{ST+4*(i+n)+q}") for q in range(2)]
    NM = 104; R2 = 105; T = 48
    for j in range(2):
        b = ST + 4*j
        a_(f"v_mul_f32 v{b}, {f32(-1.0/D)}, v{b}")
        a_(f"v_mul_f32 v{b+1}, {f32(1.0/D)}, v{b+1}")
        a_(f"v_fma_f32 v{b+1}, -v{b}, v{b}, v{b+1}")
        a_(f"v_max_f32 v{b+1}, 0, v{b+1}")
        a_(f"v_add_f32 v{b+1}, {f32(EPS)}, v{b+1}")
        a_(f"v_rcp_f32 v{b+1}, v{b+1}")
    a_("s_nop 0")
    rr = lambda dst, j: [dst + 2*(2*q + j) for q in range(4)]
    for j in range(2):
        for (src, dst) in ((ST+4*j, NM), (ST+4*j+1, R2)):
            r = rr(dst, j)
            a_(f"v_mov_b32 v{r[0]}, v{src}")
            a_(f"v_mov_b32 v{r[1]}, v{src}")
    a_("s_nop 1")
    for j in range(2):
        for dst in (NM, R2):
            r = rr(dst, j)
            a_(f"v_permlane16_swap_b32 v{r[0]}, v{r[1]}")
    a_("s_nop 0")
    for j in range(2):
        for dst in (NM, R2):
            r = rr(dst, j)
            a_(f"v_mov_b32 v{r[2]}, v{r[0]}")
            a_(f"v_mov_b32 v{r[3]}, v{r[1]}")
    a_("s_nop 1")
    for j in range(2):
        for dst in (NM, R2):
            r = rr(dst, j)
            a_(f"v_permlane32_swap_b32 v{r[0]}, v{r[2]}")
            a_(f"v_permlane32_swap_b32 v{r[1]}, v{r[3]}")
    assert not any("pk_" in x for x in sl)
    fill = {ks: sl[(ks-12)*len(sl)//7:(ks-11)*len(sl)//7] for ks in range(12, 19)}
    for ks in range(20):
        b = ks & 1
        mf = [mf16(AC(i,f), ag((ks*3+f)*4,4), v(HF(b,i),4), "0" if ks == 0 else v(AC(i,f),4)) for i in range(8) for f in range(3)]
        rd = reads(ks+1, b^1) if ks < 19 else []
        ld = loads[ks]
        if os.environ.get('NOWD') and ks >= 8: ld = []
        a("s_waitcnt lgkmcnt(0)")
        seq = []
        bar = {1: 4, 5: 8, 11: 8 + sum(len(loads[k]) for k in range(8, 11))}.get(ks)
        if bar is not None:
            seq += mf[:2] + [f"s_waitcnt vmcnt({bar})"] + (kck if ks == 11 else []) + ["s_barrier"]
            k0 = 2
        else:
            k0 = 0
        for i in range(8):
            seq.append(mf[k0+i])
            if rd: seq.append(rd[i])
        rest_ = mf[k0+8:]
        k = 0
        for i, x in enumerate(rest_):
            seq.append(x)
            while k < len(ld) and k*len(rest_) <= i*len(ld):
                seq += ld[k]; k += 1
        assert k == len(ld)
        if ks >= 12:
            out = []
            if ks == 12: out.append(sl.pop(0))
            for n_, x in enumerate(seq):
                out.append(x)
                if x.startswith("v_mfma") and (n_ + 1 == len(seq) or seq[n_+1].startswith("v_mfma")):
                    while sl:
                        out.append(sl.pop(0))
                        if not out[-1].startswith("s_nop"): break
            seq = out
        for x in seq: a(x)
        P.stamp(f"k{ks}")
    assert not sl
    P.stamp(11)
    a(f"s_mul_i32 s{t0}, s{rt}, {8*49152}")
    a(f"s_mul_i32 s{t1}, s{chunk}, 768")
    a(f"s_add_u32 s{t0}, s{t0}, s{t1}")
    a(f"s_mul_i32 s{t1}, s{g}, {GS-16*49152}")
    a(f"s_add_u32 s{t0}, s{t0}, s{t1}")
    a(f"s_add_u32 s{t0}, s{t0}, {KVO}")
    for h in range(2):
        for I in range(4):
            i = 4*h + I
            for f in range(3):
                A = AC(i,f)
                a(f"v_pk_fma_f32 {v(A,2)}, {v(CS[f],2)}, {v(NM+2*i,2)}, {v(A,2)} op_sel_hi:[1,0,1]")
                a(f"v_pk_fma_f32 {v(A+2,2)}, {v(CS[f]+2,2)}, {v(NM+2*i,2)}, {v(A+2,2)} op_sel_hi:[1,0,1]")
            for f in range(3):
                A = AC(i,f)
                a(f"v_pk_mul_f32 {v(A,2)}, {v(A,2)}, {v(NM+2*i,2)} op_sel:[0,1]")
            for f in range(3):
                A = AC(i,f)
                a(f"v_pk_mul_f32 {v(A,2)}, {v(A,2)}, {v(A+2,2)}")
            for f in range(3):
                A = AC(i,f)
                a(f"v_cvt_pk_bf16_f32 v{T+12*h+4*f+I}, v{A}, v{A+1}")
        a("s_nop 1")
        for f in range(3):
            r = T + 12*h + 4*f
            a(f"v_permlane16_swap_b32 v{r}, v{r+1}")
            a(f"v_permlane16_swap_b32 v{r+2}, v{r+3}")
        a("s_nop 1")
        for f in range(3):
            r = T + 12*h + 4*f
            a(f"v_permlane32_swap_b32 v{r}, v{r+2}")
            a(f"v_permlane32_swap_b32 v{r+1}, v{r+3}")
        both([f"buffer_store_dwordx4 {v(T+12*h+4*f,4)}, v{oaddr}, {W}, s{t0} offen offset:{256*f}" for f in range(3)])
        if h == 0: a(f"s_add_u32 s{t0}, s{t0}, {4*49152}")
    if UPTO < 5: return
    a(f"s_lshl_b32 s{t0}, s{rt}, 8")
    a(f"s_add_u32 s{t0}, s{t0}, {FL3}")
    a(f"s_lshl_b32 s{t1}, s{chunk}, 2")
    a(f"s_add_u32 s{sfl}, s{t0}, s{t1}")
    a(f"s_lshl_b32 s{t1}, s{wv}, 6")
    a(f"s_add_u32 s{spl}, s{t0}, s{t1}")
    rowsel(49152, 12288, KVO, GS-16*49152)
    P.stamp("p4s")
    flag(sfl, tmp3)
    P.stamp(9)
    for n in range(NIN, 60):
        for x in wdl(n): a(x)
    a("s_barrier")
    P.stamp("p5b")
    poll(spl, 16, tmp3)
    P.stamp("p5p")
    ACC = [112, 132, 152]
    xgemm(12, 14, 24, ACC, 176, WDF, 8, [])
    P.stamp(10)
    addres(ACC[0], 176, 14)
    both([f"buffer_store_dwordx4 {v(RES,4)}, v{raddr}, {O_}, 0 offen",
          f"buffer_store_dwordx4 {v(RES+4,4)}, v{raddr}, {O_}, 0 offen offset:16",
          f"buffer_store_dwordx2 {v(RES+8,2)}, v{raddr}, {O_}, 0 offen offset:32"])
```

```python
from asmlib import *
from layout import *

def ag(i, n=1):
    return f"a{i}" if n == 1 else f"a[{i}:{i+n-1}]"

UPTO = int(os.environ.get('UPTO', '5'))
SPIN = int(os.environ.get('SPIN', '200000'))
IMPURE = int(os.environ.get('IMPURE', '0'))
WSTART = int(os.environ.get('WSTART', '19'))

def gen_mk(a, name="mk_attn_ffn_kernel"):
    kernel_begin(a, name)
    P = Prof(a, 0, 64, 9)
    SW, SX, SOUT, SR = 8, 12, 16, 20
    WS = 24
    g, m, wv, kvo, pure, spin, myid = 26, 27, 28, 29, 30, 31, 32
    t0, t1, t2, t3 = 33, 34, 35, 36
    fbk = 37
    hd, qb, ob = 50, 51, 52
    vmask = 38
    st1, st2, task = 40, 41, 42
    sX = [45, 46]
    wo_, wgu_ = 43, 58
    kvb = 59
    so = [60, 61, 62, 63]
    lane, voff = 1, 2
    kb = [3, 4, 5]; vb = [6, 7, 8]
    tmp, tmp2, tmp3, tmp4 = 9, 10, 11, 12
    Q = [14, 20]; K = [26, 32]; V = [38, 46]; PP = 54
    NEG = [64, 80]; S_ = [96, 112]; O = [128, 144]
    RO = [160, 176]; RJ = [204, 205]; nonce, rpj = 100, 101
    RES = 244
    raddr = 13
    WOF = lambda n: (ag(240 + 4*n, 4) if n < 4 else v(160 + 4*(n-4), 4))
    done = a.label("mkdone")
    def poll(off_sreg, nl, vt, spread=False):
        lp = a.label("poll"); out = a.label("pout")
        a(f"v_and_b32 v{vt+1}, {nl-1}, v{lane}")
        a(f"s_mov_b32 s{spin}, {SPIN}")
        if spread:
            a(f"v_and_b32 v{vt}, 3, v{lane}")
            a(f"v_and_b32 v{vt+1}, {(nl-1) & ~3}, v{lane}")
            a(f"v_lshlrev_b32 v{vt+1}, 5, v{vt+1}")
            a(f"v_lshl_add_u32 v{vt+1}, v{vt}, 2, v{vt+1}")
        else: a(f"v_lshlrev_b32 v{vt+1}, 2, v{vt+1}")
        a(f"{lp}:")
        a(f"buffer_load_dword v{vt}, v{vt+1}, s[{SW}:{SW+3}], s{off_sreg} offen sc1")
        a(f"s_sub_u32 s{spin}, s{spin}, 1")
        a(f"s_waitcnt vmcnt(0)")
        a(f"v_cmp_ne_u32 vcc, s{nonce}, v{vt}")
        a(f"s_cbranch_scc1 {out}")
        a(f"s_cbranch_vccnz {lp}")
        a(f"{out}:")
    def both(stores, wt=False):
        if wt:
            for x in stores: a(x + " sc0 sc1" if x.startswith("buffer_store") else x)
            return
        l0 = a.label("wt"); l1 = a.label("wj")
        a(f"s_cmp_eq_u32 s{pure}, 0")
        a(f"s_cbranch_scc1 {l0}")
        for x in stores: a(x)
        a(f"{l1}:")
        tail.append((l0, [x + " sc0 sc1" if x.startswith("buffer_store") else x for x in stores], l1))
    def flag(off_sreg, vt, wt=False):
        a(f"v_mov_b32 v{vt}, s{nonce}")
        a(f"v_mov_b32 v{vt+1}, 0")
        a(f"s_mov_b64 exec, 1")
        a(f"s_waitcnt vmcnt(0)")
        both([f"buffer_store_dword v{vt}, v{vt+1}, s[{SW}:{SW+3}], s{off_sreg} offen"], wt)
        a(f"s_mov_b64 exec, -1")
    tail = []

    def pollw(off_sreg, n, vt, va, first=True):
        lp = a.label("poll"); out = a.label("pout"); ck = a.label("pck")
        ld = f"buffer_load_dwordx{n} {v(vt,n)}, v{va}, s[{SW}:{SW+3}], s{off_sreg} offen sc1"
        chk = [f"v_xor_b32 v{vt+i}, s{nonce}, v{vt+i}" for i in range(n)] + (
              [f"v_or3_b32 v{vt}, v{vt}, v{vt+1}, v{vt+2}", f"v_or_b32 v{vt}, v{vt}, v{vt+3}"] if n == 4 else [f"v_or_b32 v{vt}, v{vt}, v{vt+1}"]) + [
              f"v_cmp_ne_u32 vcc, 0, v{vt}"]
        loop = [f"s_mov_b32 s{spin}, {SPIN}", f"{lp}:", ld, f"s_sub_u32 s{spin}, s{spin}, 1", "s_waitcnt vmcnt(0)"] + chk + [f"s_cbranch_scc1 {out}", f"s_cbranch_vccnz {lp}"]
        if first: return loop + [f"{out}:"]
        tail.append((ck, loop, out))
        return [ld], chk + [f"s_cbranch_vccnz {ck}", f"{out}:"]
    P.start()
    a(f"s_load_dwordx4 s[4:7], s[0:1], {KA_X}")
    a(f"s_load_dwordx2 s[48:49], s[0:1], {KA_DBG}")
    a(f"s_load_dwordx2 s[50:51], s[0:1], {KA_WO}")
    a(f"s_load_dwordx4 s[52:55], s[0:1], {KA_WG}")
    a(f"s_load_dwordx2 s[56:57], s[0:1], {KA_WD}")
    a(f"s_memrealtime s[{nonce}:{nonce+1}]")
    a(f"s_load_dwordx2 s[{WS}:{WS+1}], s[0:1], {KA_WS}")
    a(f"s_cmp_ge_u32 s2, 256")
    a(f"s_cbranch_scc1 {done}")
    a(f"v_lshrrev_b32 v{tmp}, 6, v0")
    a(f"v_and_b32 v{lane}, 63, v0")
    a(f"s_and_b32 s{g}, s2, 7")
    a(f"v_readfirstlane_b32 s{wv}, v{tmp}")
    a(f"s_lshr_b32 s{m}, s2, 3")
    import qkv
    rloads, rperm, rstores = qkv.qkv(dict(locals(), SPIN=SPIN, IMPURE=IMPURE))
    a(f"s_load_dwordx2 s[6:7], s[0:1], {KA_OUT}")
    a("L_att_begin:")
    a(f"v_lshlrev_b32 v{voff}, 4, v{lane}")
    a(f"v_and_b32 v{tmp}, 31, v{lane}")
    a(f"v_lshrrev_b32 v{tmp2}, 5, v{lane}")
    a(f"v_lshlrev_b32 v{kb[0]}, 3, v{tmp}")
    a(f"v_lshl_add_u32 v{kb[0]}, v{tmp2}, 9, v{kb[0]}")
    a(f"s_lshl_b32 s{hd}, s{g}, 2")
    a(f"s_and_b32 s{t0}, s{m}, 3")
    a(f"s_add_u32 s{hd}, s{hd}, s{t0}")
    a(f"s_lshr_b32 s{qb}, s{m}, 2")
    a(f"s_lshl_b32 s{t0}, s{qb}, 2")
    a(f"s_add_u32 s{t0}, s{t0}, s{wv}")
    a(f"s_mul_i32 s{t0}, s{t0}, 5120")
    a(f"s_mul_i32 s{t2}, s{g}, {GS}")
    a(f"s_add_u32 s{t0}, s{t0}, s{t2}")
    a(f"s_bfe_u32 s{t1}, s{m}, 0x10001")
    a(f"s_mul_i32 s{t1}, s{t1}, 163840")
    a(f"s_add_u32 s{ob}, s{t0}, s{t1}")
    a(f"s_and_b32 s{t1}, s{m}, 1")
    a(f"s_mul_i32 s{t1}, s{t1}, 1280")
    a(f"s_add_u32 s{task}, s{ob}, s{t1}")
    a(f"s_and_b32 s{t1}, s{m}, 3")
    a(f"s_mul_i32 s{t1}, s{t1}, 163840")
    a(f"s_add_u32 s{t2}, s{t2}, s{t1}")
    a(f"s_lshl_b32 s{kvo}, s{wv}, 12")
    a(f"s_mov_b32 m0, s{kvo}")
    a(f"s_add_u32 s{t2}, s{t2}, {KVO}")
    for x in range(2):
        a(f"v_mov_b32 v{Q[x]+4}, 0")
        a(f"v_mov_b32 v{Q[x]+5}, 0")
    a(f"s_waitcnt lgkmcnt(0)")
    srd(a, SOUT, 6, S*D*2)
    a(f"s_add_u32 s{kvb}, s{t2}, s{kvo}")
    ndma = [0]
    def dma():
        j = ndma[0]; ndma[0] += 1
        out = [f"buffer_load_dwordx4 v{voff}, s[{SW}:{SW+3}], s{kvb} offen offset:{1024*(j&3)} sc1 lds"]
        if j & 3 == 0 and j:
            out = [f"s_add_u32 m0, m0, 16384", f"s_add_u32 s{kvb}, s{kvb}, 16384"] + out
        return out
    srd(a, SX, 4, S*D*2)
    a(f"v_mul_u32_u24 v{vb[0]}, 320, v{tmp2}")
    a(f"v_lshl_add_u32 v{vb[0]}, v{tmp}, 4, v{vb[0]}")
    a(f"v_add_u32 v{vb[0]}, 1280, v{vb[0]}")
    for i in (1, 2):
        a(f"v_add_u32 v{kb[i]}, {61440*i}, v{kb[0]}")
        a(f"v_add_u32 v{vb[i]}, {61440*i}, v{vb[0]}")
    a(f"s_mov_b32 s{vmask}, 0xfffff")
    a(f"s_mov_b32 s{vmask+1}, 0xfffff")
    for i in range(8):
        a(f"v_mov_b32 v{V[0]+i}, 0x3f803f80")
        a(f"v_mov_b32 v{V[1]+i}, 0x3f803f80")
    a(f"s_mov_b32 s{fbk}, 0")
    PT, pt20, pt16 = 254, 62, 63
    def later():
        a(f"s_lshr_b32 s{t0}, s{m}, 2")
        a(f"s_mul_i32 s{wo_}, s{t0}, {20*5120}")
        a(f"s_mul_i32 s{t1}, s{wv}, {5*5120}")
        a(f"s_add_u32 s{wo_}, s{wo_}, s{t1}")
        a(f"s_add_u32 s{wo_}, s{wo_}, {WS_WO}")
        a(f"s_lshl_b32 s{t1}, s{t0}, 1")
        a(f"s_and_b32 s{t2}, s{m}, 1")
        a(f"s_add_u32 s{t1}, s{t1}, s{t2}")
        a(f"s_lshl_b32 s{t1}, s{t1}, 2")
        a(f"s_add_u32 s{t1}, s{t1}, s{wv}")
        a(f"s_mul_i32 s{wgu_}, s{t1}, {3*20480}")
        a(f"s_add_u32 s{wgu_}, s{wgu_}, {WS_WGU}")
        a(f"s_lshl_b32 s{t1}, s{g}, 2")
        a(f"s_and_b32 s{t2}, s{m}, 3")
        a(f"s_add_u32 s{t1}, s{t1}, s{t2}")
        a(f"s_lshl_b32 s{t1}, s{t1}, 2")
        a(f"s_add_u32 s{t1}, s{t1}, s{wv}")
        a(f"s_mul_i32 s{t1}, s{t1}, 20480")
        a(f"s_mul_i32 s{t0}, s{t0}, 160")
        a(f"s_add_u32 s{t0}, s{t0}, s{t1}")
        a(f"v_and_b32 v{tmp}, 15, v{lane}")
        a(f"v_lshrrev_b32 v{tmp2}, 4, v{lane}")
        a(f"v_mul_u32_u24 v{raddr}, 1280, v{tmp}")
        a(f"v_mad_u32_u24 v{raddr}, v{tmp2}, 40, v{raddr}")
        a(f"v_add_u32 v{raddr}, s{t0}, v{raddr}")

        a(f"s_lshl_b32 s{t0}, s{g}, 5")
        a(f"s_add_u32 s{t0}, s{t0}, s{m}")
        a(f"s_lshl_b32 s{t0}, s{t0}, 2")
        a(f"s_add_u32 s{t0}, s{t0}, s{wv}")
        a(f"s_mul_i32 s{so[0]}, s{t0}, 2560")
        a(f"s_mul_i32 s{so[1]}, s{rpj}, 6144")
        a(f"s_mul_i32 s{t1}, s{g}, {GS}")
        a(f"s_add_u32 s{so[1]}, s{so[1]}, s{t1}")
        a(f"s_add_u32 s{so[1]}, s{so[1]}, {KVO}")
        a(f"v_min_u32 v{pt20}, 19, v{lane}")
        a(f"v_lshlrev_b32 v{pt20}, 7, v{pt20}")
        a(f"v_lshlrev_b32 v{pt16}, 7, v{tmp}")
        a(f"s_lshl_b32 s{so[3]}, s{t0}, 7")
        a(f"s_mov_b32 s{so[2]}, {WS_ST}")

    def ldsb(bases, off):
        i = off // 61440
        return bases[i], off - 61440*i
    def readK(t, Kb, bases=kb):
        b, off = ldsb(bases, t*2560)
        return [f"ds_read_b64 {v(Kb,2)}, v{b} offset:{off}",
                f"ds_read_b64 {v(Kb+2,2)}, v{b} offset:{off+256}",
                f"ds_read_b64 {v(Kb+4,2)}, v{b} offset:{off+1024}"]
    def readV(t, V0, bases=vb):
        b, off = ldsb(bases, t*2560)
        return [f"s_mov_b64 exec, s[{vmask}:{vmask+1}]",
                f"ds_read_b128 {v(V0,4)}, v{b} offset:{off}",
                f"ds_read_b128 {v(V0+4,4)}, v{b} offset:{off+640}",
                f"s_mov_b64 exec, -1"]
    def qk1(x, Kb, C): return f"v_mfma_f32_32x32x16_bf16 {v(S_[x],16)}, {v(Kb,4)}, {v(Q[x],4)}, {C}"
    def qk2(x, Kb): return f"v_mfma_f32_32x32x8_bf16 {v(S_[x],16)}, {v(Kb+4,2)}, {v(Q[x]+4,2)}, {v(S_[x],16)}"
    def max16(Sr, d):
        for i in range(0, 16, 2):
            a(f"v_max3_f32 v{d}, v{Sr+i}, v{Sr+i+1}, v{d}")
    pv = lambda x, Vb, hh: f"v_mfma_f32_32x32x16_bf16 {v(O[x],16)}, {v(Vb+4*hh,4)}, {v(PP+4*hh,4)}, {v(O[x],16)}"
    def zero():
        for i in range(32):
            a(f"v_mov_b32 v{O[0]+i}, 0")
        for i in range(4):
            a(f"v_mov_b32 v{PP+4+i}, 0")
    def prime(z=True):
        for x, d in enumerate((tmp, tmp2)):
            a(f"v_mov_b32 v{tmp3+x}, v{d}")
        a("s_nop 1")
        for x, d in enumerate((tmp, tmp2)):
            a(f"v_permlane32_swap_b32 v{tmp3+x}, v{d}")
        a("s_nop 1")
        for x, d in enumerate((tmp, tmp2)):
            a(f"v_max_f32 v{d}, v{d}, v{tmp3+x}")
        for i in range(16):
            a(f"v_sub_f32 v{NEG[0]+i}, 0, v{tmp}")
        for x in readK(1, K[1]): a(x)
        a(qk1(0, K[0], v(NEG[0],16))); a(qk2(0, K[0]))
        for x in readV(0, V[0]): a(x)
        for i in range(16):
            a(f"v_sub_f32 v{NEG[1]+i}, 0, v{tmp2}")
        if z: zero()
        a(f"s_waitcnt lgkmcnt(0)")
        a(f"v_exp_f32 v{S_[0]}, v{S_[0]}")
        a(f"v_exp_f32 v{S_[0]+1}, v{S_[0]+1}")
    def half(t, x, side, kbs=kb, vbs=vb, last=63):
        Sa, Sb = S_[x], S_[1-x]
        ex = lambda i: f"v_exp_f32 v{Sa+i}, v{Sa+i}" if i < 16 else f"v_exp_f32 v{Sb+i-16}, v{Sb+i-16}"
        cv = lambda j: f"v_cvt_pk_bf16_f32 v{PP+j}, v{Sa+2*j}, v{Sa+2*j+1}"
        Vc = V[t & 1]
        sl = [[], []]
        for i, gp in enumerate(side): sl[i % 2] += gp
        fin = x == 1 and t == last
        if x == 0:
            Kn = K[t & 1]
            rd = readV(t+1, V[(t+1) & 1], vbs) if t < last else []
            P1 = [pv(1, V[(t-1) & 1], 1)]
        else:
            Kn = K[(t+1) & 1]
            rd = readK(t+2, K[t & 1], kbs) if t + 2 <= last else []
            P1 = [pv(0, Vc, 1), "s_waitcnt lgkmcnt(0)"]
        seq = [ex(2)] + P1 + sl[1] + [cv(0), ex(3), ex(4), cv(1), ex(5), None if fin else qk1(1-x, Kn, v(NEG[1-x],16))] + rd + [
               ex(6), cv(2), ex(7), ex(8), None if fin else qk2(1-x, Kn), cv(3), ex(9), ex(10), cv(4), ex(11), ex(12), cv(5), ex(13),
               pv(x, Vc, 0)] + sl[0] + [ex(14), cv(6), ex(15)] + (["s_nop 0", cv(7), "s_nop 1"] if fin else [ex(16), cv(7), ex(17)])
        for s_ in seq:
            if s_: a(s_)
    a(f"s_lshl_b32 s{t0}, s{g}, 9")
    a(f"s_add_u32 s{t0}, s{t0}, {FL0}")
    a(f"v_lshlrev_b32 v{tmp}, 3, v{lane}")
    a(f"s_lshl_b32 s{st1}, s2, 2")
    a(f"s_add_u32 s{st1}, s{st1}, {FLR}")
    a(f"s_mov_b32 s{st2}, {FLR}")
    a(f"v_mov_b32 v192, s{nonce}")
    a(f"v_mov_b32 v193, 0")
    a(f"s_lshl_b32 s{t1}, s{rpj}, 2")
    a(f"s_add_u32 s{t1}, s{t1}, s{t0}")
    P.stamp("e3")
    flag(t1, 132)
    P.stamp(2)
    a(f"s_barrier")
    P.stamp("e4")
    for x in pollw(t0, 2, 64, tmp): a(x)
    P.stamp(3)
    for x in range(2):
        a(f"buffer_load_dwordx2 {v(Q[x],2)}, v{kb[0]}, s[{SW}:{SW+3}], s{task} offen offset:{2560*x} sc1")
        a(f"buffer_load_dwordx2 {v(Q[x]+2,2)}, v{kb[0]}, s[{SW}:{SW+3}], s{task} offen offset:{2560*x+256} sc1")
    a(f"s_mov_b32 exec_hi, 0")
    for x in range(2):
        a(f"buffer_load_dwordx2 {v(Q[x]+4,2)}, v{kb[0]}, s[{SW}:{SW+3}], s{task} offen offset:{2560*x+1024} sc1")
    a(f"s_mov_b64 exec, -1")
    NUP = int(os.environ.get('NUP', '8')); B0 = int(os.environ.get('B0', '6'))
    for j in range(NUP):
        for x in dma(): a(x)
    zero()
    later()
    a(f"s_waitcnt vmcnt({NUP - (4 if B0 else 8)})")
    a(f"s_barrier")
    P.stamp(4)
    for x in readK(0, K[0]): a(x)
    a(f"v_mov_b32 v{tmp}, 0xff800000")
    a(f"v_mov_b32 v{tmp2}, 0xff800000")
    a(f"s_waitcnt lgkmcnt(0)")
    a(qk1(0, K[0], "0")); a(qk1(1, K[0], "0")); a(qk2(0, K[0])); a(qk2(1, K[0]))
    a("s_nop 7"); a("s_nop 4")
    max16(S_[0], tmp); max16(S_[1], tmp2)
    prime(False)
    a(f"v_and_b32 v{tmp}, 3, v{lane}")
    a(f"v_bfe_u32 v{tmp2}, v{lane}, 2, 1")
    a(f"v_lshlrev_b32 v{tmp}, 7, v{tmp}")
    a(f"v_lshl_add_u32 v{tmp}, v{tmp2}, 12, v{tmp}")
    a(f"s_lshl_b32 s{t1}, s{g}, 9")
    a(f"s_add_u32 s{t1}, s{t1}, {FL2-WS_ST}")
    a(f"v_add_u32 v{tmp4}, s{t1}, v{tmp}")
    a(f"v_writelane_b32 v{tmp4}, s{so[3]}, 63")
    Wd_ = f"s[{SW}:{SW+3}]"
    wo_l, gu_l = [], []
    for n in range(25):
        gp = [f"buffer_load_dwordx4 {WOF(n)}, v{voff}, {Wd_}, s{wo_} offen offset:{1024*(n&3)} sc1"]
        if n & 3 == 0 and n: gp.insert(0, f"s_add_u32 s{wo_}, s{wo_}, 4096")
        wo_l.append((8, gp))
    for f in range(3):
        for ks in range(20):
            gp = [f"buffer_load_dwordx4 {ag((ks*3+f)*4,4)}, v{voff}, {Wd_}, s{wgu_} offen offset:{1024*(ks&3)} sc1"]
            if ks & 3 == 0 and (ks or f): gp.insert(0, f"s_add_u32 s{wgu_}, s{wgu_}, 4096")
            gu_l.append((8, gp))
    CW = float(os.environ.get('CW', '2'))
    x_l = [(24, [f"buffer_load_dwordx4 {v(RES,4)}, v{raddr}, s[{SX}:{SX+3}], 0 offen"]),
           (8, [f"buffer_load_dwordx4 {v(RES+4,4)}, v{raddr}, s[{SX}:{SX+3}], 0 offen offset:16"]),
           (8, [f"buffer_load_dwordx2 {v(RES+8,2)}, v{raddr}, s[{SX}:{SX+3}], 0 offen offset:32"])]
    pt = lambda va, sr, off=0: f"buffer_load_dword v{PT}, v{va}, {Wd_}, s{sr} offen offset:{off} sc1"
    pt_l = [(20*CW, [pt(pt20, so[0]).replace(Wd_, f"s[{SOUT}:{SOUT+3}]")]), (9, [pt(tmp4, so[2])])]
    pa_l = [(16, [pt(pt16, so[1])]), (16, [pt(pt16, so[1], 2048)]), (16, [f"s_add_u32 s{so[1]}, s{so[1]}, 4096", pt(pt16, so[1])])]
    if os.environ.get('NOPT'): pt_l = []
    early = x_l + pt_l
    SP = int(os.environ.get('SP', '16'))
    items = gu_l[:40] + wo_l + gu_l[40:]
    if not os.environ.get('NOPA'):
        for k, it_ in enumerate(pa_l): items.insert(len(items) - SP - 8 + 6*k, it_)
    CAP = float(os.environ.get('CAP', '10.5')); HEND = int(os.environ.get('HEND', '128'))
    HW = int(os.environ.get('HW', '18')); HF = HW + int(os.environ.get('DF', '20')); HP = HF + int(os.environ.get('DP', '12')); HC = HP + 4
    l0 = a.label("nfl")
    flagr = [f"s_cmp_lg_u32 s{wv}, 0", f"s_cbranch_scc1 {l0}", "s_mov_b64 exec, 1",
             f"buffer_store_dword v192, v193, {Wd_}, s{st1} offen sc0 sc1", "s_mov_b64 exec, -1", f"{l0}:"]
    pld, pck = pollw(st2, 4, 196, voff, False)
    if not os.environ.get('NOCP2'):
        b = Asm(); b.uid = a.uid + 1000; a.uid += 2000
        code_prefetch(b, "L_fin_begin", "L_mk_end", rpj, 54, t1, lane, 255)
        items.insert(len(items) - SP, (16, [x.strip() for x in b.lines]))
    side = {}; issued = []
    kvq = list(range(NUP, 40)); rs = list(rstores); rl = list(rloads)
    budget = 0.0; k = 0
    kvh = {j: (HW + 1 + (j-16)*2//3 if j < 28 else HF + 1 + 2*(j-28)) for j in range(16, 40)}
    for j in range(NUP, 16): kvh[j] = 8 + (j-8)*int(os.environ.get('KS', '1'))//2
    assert int(os.environ.get('HE', '88')) > HW and NUP >= 8 and B0 <= 8
    assert HW <= 21 and kvh[27] < HF <= 46
    for h in range(128):
        sd = []
        budget = min(budget + CAP, 2*CAP)
        if h == HW:
            assert not rl and kvq[0] == 16
            sd += [[f"s_waitcnt vmcnt(0)", "s_barrier"], rperm]
        if B0 and h == B0: sd.append([f"s_waitcnt vmcnt({len(issued) + NUP - 8})", "s_barrier"])
        if h == HF: sd.append(["s_waitcnt vmcnt(0)", "s_barrier"] + flagr)
        if h == 84: sd.append([f"s_waitcnt vmcnt({min(63, len(issued) - 1 - issued.index(39))})", "s_barrier"])
        if h == HP: sd.append(pld); issued.append(-2)
        if h == HC: sd.append([f"s_waitcnt vmcnt({len(issued) - 1 - issued.index(-2)})"] + pck)
        while rl and len(sd) < 2: sd.append([rl.pop(0)]); issued.append(-3)
        while h > HW and rs and len(sd) < int(os.environ.get('SR', '1')): sd.append([rs.pop(0)])
        while kvq and h >= kvh[kvq[0]] and len(sd) < 2:
            sd.append(dma()); issued.append(kvq.pop(0)); budget -= float(os.environ.get('KVW', '4'))
        if h >= int(os.environ.get('HE', '88')) and h % 2 == 0 and early and len(sd) < 2:
            w_, gp = early.pop(0); sd.append(gp); issued.append(-1)
        while HC < h < HEND and k < len(items) and budget > 0 and len(sd) < 2:
            budget -= items[k][0]; sd.append(items[k][1]); issued.append(-1); k += 1
        side[h] = sd[::-1]
    assert not early and not rs
    late = [gp for w_, gp in items[k:]]
    print("late items", len(late))
    assert all(it_ in gu_l[40:] for it_ in items[k:])
    nlast = sum(1 for it_ in items[40:k] if it_ in wo_l or it_ in gu_l)
    assert items[39] is gu_l[39]
    assert ndma[0] == 40
    for t in range(64):
        for x in range(2):
            half(t, x, side[2*t+x])
            P.stamp(f"h{2*t+x}")
    fin0 = a.label("fin0")
    a(f"{fin0}:")
    a("L_fin_begin:")
    a(pv(1, V[1], 1))
    P.stamp(5)
    a(f"v_bfe_u32 v{tmp}, v{lane}, 4, 1")
    a(f"v_mul_u32_u24 v{tmp}, 1280, v{tmp}")
    a(f"v_and_b32 v{tmp2}, 15, v{lane}")
    a(f"v_lshl_add_u32 v{tmp}, v{tmp2}, 4, v{tmp}")
    a(f"v_lshrrev_b32 v{tmp2}, 5, v{lane}")
    a(f"v_lshl_add_u32 v{tmp2}, v{tmp2}, 8, v{tmp}")
    a(f"v_rcp_f32 v{tmp3}, v{O[0]+12}")
    a(f"s_mov_b32 s{t3}, 0x5f800000")
    a(f"s_mov_b32 s{t0}, s{ob}")
    a("s_nop 5")
    a(f"s_and_b32 s{t1}, s{hd}, 1")
    a(f"v_add_f32 v{S_[0]}, v{O[0]+12}, v{O[1]+12}")
    a(f"s_lshl_b32 s{t2}, s{t1}, 9")
    a(f"s_add_u32 s{so[0]}, s{t2}, s{t0}")
    a(f"v_cmp_nlt_f32 vcc, v{S_[0]}, s{t3}")
    a(f"s_lshl_b32 s{t1}, s{t1}, 3")
    a(f"s_add_u32 s{so[1]}, s{t1}, s{t0}")
    a(f"s_add_u32 s{so[2]}, s{so[0]}, 2560")
    a(f"s_add_u32 s{so[3]}, s{so[1]}, 2560")
    fb = a.label("fb"); fin = a.label("fin")
    a(f"s_cbranch_vccnz {fb}")
    a(f"{fin}:")
    a(f"v_rcp_f32 v{tmp4}, v{O[1]+12}")
    a(f"s_waitcnt vmcnt({nlast})")
    for x in range(2):
        for i in range(12):
            a(f"v_mul_f32 v{O[x]+i}, v{O[x]+i}, v{tmp3+x}")
        for i in range(6):
            a(f"v_cvt_pk_bf16_f32 v{O[x]+i}, v{O[x]+2*i}, v{O[x]+2*i+1}")
    both([f"buffer_store_dwordx4 {v(O[x],4)}, v{tmp2}, s[{SW}:{SW+3}], s{so[2*x]} offen" for x in range(2)] + ["s_mov_b32 exec_hi, 0"] +
         [f"buffer_store_dwordx2 {v(O[x]+4,2)}, v{tmp}, s[{SW}:{SW+3}], s{so[2*x+1]} offen offset:1024" for x in range(2)] + ["s_mov_b64 exec, -1"], True)
    ctx = dict(locals())
    if UPTO >= 3:
        import mg2
        mg2.rest(ctx)
    l0 = a.label("ntag")
    a(f"s_or_b32 s{t0}, s2, s{wv}")
    a(f"s_cbranch_scc1 {l0}")
    a(f"s_load_dwordx2 s[48:49], s[0:1], {KA_DBG}")
    a(f"v_mov_b32 v{tmp}, 0")
    a(f"s_mov_b64 exec, 1")
    a(f"s_waitcnt lgkmcnt(0)")
    a(f"global_store_dword v{tmp}, v{tmp}, s[48:49]")
    a(f"{l0}:")
    P.flush(12, WS, wv)
    a(f"{done}:")
    a("s_endpgm")
    a(f"{fb}:")
    a(f"s_cmp_lg_u32 s{fbk}, 0")
    a(f"s_cbranch_scc1 {fin}")
    a(f"s_mov_b32 s{fbk}, 1")
    ka, va = 62, 63
    a(f"v_add_u32 v{ka}, {63*2560}, v{kb[0]}")
    a(f"v_mov_b32 v{tmp}, 0xff800000")
    a(f"v_mov_b32 v{tmp2}, 0xff800000")
    a(f"s_mov_b32 s{t0}, 64")
    fl = a.label("fl")
    a(f"{fl}:")
    for x in readK(0, K[0], [ka]): a(x)
    a(f"s_waitcnt lgkmcnt(0)")
    a(qk1(0, K[0], "0")); a(qk1(1, K[0], "0")); a(qk2(0, K[0])); a(qk2(1, K[0]))
    a(f"v_subrev_u32 v{ka}, 2560, v{ka}")
    a(f"s_sub_u32 s{t0}, s{t0}, 1")
    a("s_nop 7"); a("s_nop 4")
    max16(S_[0], tmp); max16(S_[1], tmp2)
    a(f"s_cmp_lg_u32 s{t0}, 0")
    a(f"s_cbranch_scc1 {fl}")
    prime()
    a(f"v_mov_b32 v{ka}, v{kb[0]}")
    a(f"v_mov_b32 v{va}, v{vb[0]}")
    a(f"s_mov_b32 s{t0}, 31")
    fl = a.label("fl2")
    a(f"{fl}:")
    for t in range(2):
        for x in range(2): half(t, x, [], [ka], [va])
    a(f"v_add_u32 v{ka}, 5120, v{ka}")
    a(f"v_add_u32 v{va}, 5120, v{va}")
    a(f"s_sub_u32 s{t0}, s{t0}, 1")
    a(f"s_cmp_lg_u32 s{t0}, 0")
    a(f"s_cbranch_scc1 {fl}")
    for t in range(2):
        for x in range(2): half(t, x, [], [ka], [va], last=1)
    a(f"s_branch {fin0}")
    for l0, ins, l1 in tail:
        a(f"{l0}:")
        for x in ins: a(x)
        a(f"s_branch {l1}")
    a("L_mk_end:")
    kernel_desc(a, name, 512, 102, accum=256)
    return dict(name=name, grid=256, block=256, lds=163840)
```

```python
from asmlib import *
from layout import *
import rp
STAGE = 16*1040 + 16384
BOFF = 16*1040
STATS = 4*STAGE

def qkv(c):
    a, P, both, flag = c['a'], c['P'], c['both'], c['flag']
    SW, SX, SQ, WS = c['SW'], c['SX'], c['SOUT'], c['WS']
    g, m, wv, pure, myid, spin, nonce, rpj = c['g'], c['m'], c['wv'], c['pure'], c['myid'], c['spin'], c['nonce'], c['rpj']
    t0, t1, t2, t3 = c['t0'], c['t1'], c['t2'], c['t3']
    lane = c['lane']; RJ = c['RJ']; RO = c['RO']
    soffA, soffB, dst_st, rd_st, cnt, wr, wc = 37, 38, 39, 40, 41, 42, 43
    so0, so1, m0A, m0B, kc, baseA, baseB, himask, rb, cbk = 58, 59, 60, 61, 62, 63, 29, 3, 92, 93
    R0, R1 = 20, 44; pto = 30; vst = 136
    vA = [4,5,6,7]; vB = [8,9,10,11]
    aBase = [12,13]; bBase = [14,15]; aCur = [16,17]; bCur = [18,19]
    vsq, vsum, vcs, vones, utmp = 206, 208, 212, 20, 216
    eaddr = list(range(24, 32))
    FA = lambda st, i: 32 + st*8 + i*4
    FB = lambda st, i: 48 + st*8 + i*4
    ACC = lambda ai, bi: 64 + (ai*2 + bi)*16
    r, h, tmp, tmp2, tmp3, tmp4 = 129, 130, 131, 132, 133, 134
    vn, vid, vz, vpt = 135, 137, 139, 128
    RL = [208, 224]
    W = f"s[{SW}:{SW+3}]"
    if not os.environ.get('NOCP0'):
        a(f"s_xor_b32 s{t0}, s{wv}, 3")
        a(f"s_lshl_b32 s{t0}, s{t0}, 5")
        a(f"s_add_u32 s{t0}, s{t0}, s{m}")
        code_prefetch(a, c['name'], "L_mk_end", t0, 94, t1, lane, 2, True)
    a(f"s_lshr_b32 s{rb}, s{m}, 1")
    a(f"s_and_b32 s{cbk}, s{m}, 1")
    a(f"v_lshrrev_b32 v{tmp}, 5, v{lane}")
    a(f"v_lshlrev_b32 v{tmp}, 5, v{tmp}")
    a(f"v_bfe_u32 v{tmp2}, v{lane}, 3, 1")
    a(f"v_add_u32 v{tmp}, v{tmp}, v{tmp2}")
    a(f"v_and_b32 v{tmp2}, 16, v{lane}")
    a(f"v_add_u32 v{tmp}, v{tmp}, v{tmp2}")
    a(f"s_lshr_b32 s{wr}, s{wv}, 1")
    a(f"s_and_b32 s{wc}, s{wv}, 1")
    a(f"s_lshl_b32 s{t0}, s{wr}, 6")
    a(f"s_lshl_b32 s{t1}, s{wc}, 3")
    a(f"s_add_u32 s{t0}, s{t0}, s{t1}")
    a(f"v_add_u32 v{tmp}, s{t0}, v{tmp}")
    a(f"v_mul_u32_u24 v{tmp}, 1280, v{tmp}")
    a(f"v_and_b32 v{tmp2}, 7, v{lane}")
    a(f"v_lshl_add_u32 v{vA[0]}, v{tmp2}, 4, v{tmp}")
    for i in range(1, 4):
        a(f"v_add_u32 v{vA[i]}, {i*(2*1280 - 1040)}, v{vA[0]}")
    a(f"v_lshrrev_b32 v{tmp}, 4, v{lane}")
    a(f"v_lshlrev_b32 v{tmp2}, 2, v{tmp}")
    a(f"v_and_b32 v{tmp3}, 15, v{lane}")
    a(f"v_xor_b32 v{tmp2}, v{tmp2}, v{tmp3}")
    a(f"s_cmp_eq_u32 s{cbk}, 0")
    a(f"s_cselect_b32 s{t1}, 10, 4")
    a(f"s_cselect_b32 s{t2}, 15, 13")
    a(f"s_lshl_b32 s{t0}, s{wv}, 4")
    a(f"v_add_u32 v{tmp}, s{t0}, v{tmp}")
    a(f"v_mul_u32_u24 v{tmp}, 3840, v{tmp}")
    a(f"v_cmp_le_u32 vcc, s{t1}, v{tmp2}")
    a(f"v_add_u32 v{tmp3}, 1120, v{tmp}")
    a(f"v_min_u32 v{tmp2}, s{t2}, v{tmp2}")
    a(f"v_cndmask_b32 v{tmp}, v{tmp}, v{tmp3}, vcc")
    a(f"v_lshl_add_u32 v{vB[0]}, v{tmp2}, 4, v{tmp}")
    for i in range(1, 4):
        a(f"v_add_u32 v{vB[i]}, {i*(4*3840 - 1024)}, v{vB[0]}")
    KR = [int(x) for x in os.environ.get('KR', '3,0,1').split(',')]
    a(f"s_mul_i32 s{kc}, s{rb}, {KR[0]}")
    a(f"s_mul_i32 s{t0}, s{cbk}, {KR[1]}")
    a(f"s_add_u32 s{kc}, s{kc}, s{t0}")
    a(f"s_mul_i32 s{t0}, s{g}, {KR[2]}")
    a(f"s_add_u32 s{kc}, s{kc}, s{t0}")
    a(f"s_mul_i32 s{t0}, s{kc}, 205")
    a(f"s_lshr_b32 s{t0}, s{t0}, 11")
    a(f"s_mul_i32 s{t0}, s{t0}, 10")
    a(f"s_sub_u32 s{kc}, s{kc}, s{t0}")
    a(f"s_mul_i32 s{baseA}, s{rb}, {128*1280}")
    a(f"s_mul_i32 s{baseB}, s{g}, 160")
    a(f"s_mul_i32 s{t0}, s{cbk}, 1376")
    a(f"s_add_u32 s{baseB}, s{baseB}, s{t0}")
    a(f"s_mul_i32 s{m0A}, s{wv}, {4*1040}")
    a(f"s_lshl_b32 s{m0B}, s{wv}, 12")
    a(f"s_add_u32 s{m0B}, s{m0B}, {BOFF}")
    a(f"v_mov_b32 v{vz}, 0")
    P.stamp("pa")
    a(f"s_waitcnt lgkmcnt(0)")
    srd(a, SX, 4, S*D*2)
    srd(a, SQ, 6, D*3*D*2)
    l0 = a.label("ntag")
    a(f"s_or_b32 s{t0}, s2, s{wv}")
    a(f"s_cbranch_scc1 {l0}")
    a(f"s_lshl_b32 s{nonce}, s{nonce}, 5")
    a(f"s_or_b32 s{nonce}, s{nonce}, 16")
    a(f"v_mov_b32 v{tmp}, s{nonce}")
    a(f"s_mov_b64 exec, 1")
    a(f"global_store_dword v{vz}, v{tmp}, s[48:49] sc0 sc1")
    a(f"s_mov_b64 exec, -1")
    a(f"{l0}:")
    dmaA = lambda: [f"buffer_load_dwordx4 v{vA[i]}, s[{SX}:{SX+3}], s{soffA} offen offset:{1040*i} lds" for i in range(4)]
    dmaB = lambda: [f"buffer_load_dwordx4 v{vB[i]}, s[{SQ}:{SQ+3}], s{soffB} offen offset:{1024*i} lds" for i in range(4)]
    def offs():
        return [f"s_lshl_b32 s{soffA}, s{kc}, 7", f"s_add_u32 s{soffA}, s{soffA}, s{baseA}",
                f"s_mul_i32 s{soffB}, s{kc}, {64*3840}", f"s_add_u32 s{soffB}, s{soffB}, s{baseB}",
                f"s_add_u32 s{kc}, s{kc}, 1", f"s_cmp_eq_u32 s{kc}, 10", f"s_cselect_b32 s{kc}, 0, s{kc}"]
    TW = int(os.environ.get('TW', '1'))
    def late():
        a(f"global_load_dword v{vn}, v{vz}, s[48:49] sc1")
        if TW:
            l1 = a.label("ntw")
            a(f"s_cmp_lg_u32 s{wv}, 2")
            a(f"s_cbranch_scc1 {l1}")
            a(f"s_load_dwordx2 s[6:7], s[0:1], {KA_OUT}")
            a(f"v_lshlrev_b32 v138, {19 if TW == 2 else 21}, v{lane}")
            a(f"v_and_b32 v140, 0x200000, v138")
            a(f"buffer_load_dword v254, v138, {W}, 0 offen sc1")
            for p_ in (50, 52, 54, 56): a(f"global_load_dword v254, v{vz}, s[{p_}:{p_+1}]")
            a(f"s_waitcnt lgkmcnt(0)")
            a(f"global_load_dword v254, v140, s[6:7] sc1")
            a(f"{l1}:")
    def chunk(cc):
        a(f"s_add_u32 m0, s{m0A}, {cc*STAGE}")
        for x in offs(): a(x)
        for x in dmaA(): a(x)
        a(f"s_add_u32 m0, s{m0B}, {cc*STAGE}")
        a("s_nop 0")
        for x in dmaB(): a(x)
    chunk(0)
    P.stamp("pb")
    C1 = os.environ.get('C1', '12')
    def c1(pos):
        if C1[0] == str(pos):
            a(f"s_add_u32 m0, s{m0A}, {STAGE}")
            for x in offs(): a(x)
            for x in dmaA(): a(x)
        if C1[1] == str(pos):
            a(f"s_add_u32 m0, s{m0B}, {STAGE}")
            a("s_nop 0")
            for x in dmaB(): a(x)
            for x in offs(): a(x)
            late()
    srd(a, SW, WS, WS_SPAN)
    a(f"s_lshl_b32 s{rpj}, s{m}, 2")
    a(f"s_add_u32 s{rpj}, s{rpj}, s{wv}")
    a(f"s_lshl_b32 s{so0}, s{rpj}, 3")
    a(f"s_add_u32 s{so0}, s{so0}, s{g}")
    a(f"s_add_u32 s{so1}, s{so0}, 480")
    a(f"s_sub_u32 s{t0}, s{rpj}, 60")
    a(f"s_mul_i32 s{t1}, s{t0}, 205")
    a(f"s_lshr_b32 s{t1}, s{t1}, 10")
    a(f"s_mul_i32 s{t1}, s{t1}, 70")
    a(f"s_lshl_b32 s{t0}, s{t0}, 1")
    a(f"s_add_u32 s{t1}, s{t1}, s{t0}")
    a(f"s_mul_i32 s{t0}, s{g}, 10")
    a(f"s_add_u32 s{t1}, s{t1}, s{t0}")
    a(f"s_add_u32 s{t1}, s{t1}, 960")
    a(f"s_add_u32 s{t2}, s{t1}, 1")
    a(f"s_cmp_ge_u32 s{rpj}, 60")
    a(f"s_cselect_b32 s{so0}, s{t1}, s{so0}")
    a(f"s_cselect_b32 s{so1}, s{t2}, s{so1}")
    tv = (tmp, tmp2, tmp3, tmp4)
    rp.rp_addr(a, so0, 50, R0, 94, 95, 96, spin, pure, (t0,t1,t2,t3), lane, tv, 240, 241, RJ[0])
    c1(0)
    rp.rp_addr(a, so1, 50, R1, 97, 98, 99, spin, pure, (t0,t1,t2,t3), lane, tv, 242, 243, RJ[1])
    a(f"s_cmp_ge_u32 s{rpj}, 60")
    a(f"s_cselect_b64 vcc, 0, -1")
    a(f"v_add_u32 v{tmp}, 64, v{RJ[0]}")
    a(f"s_cmp_ge_u32 s{so0}, 1640")
    a(f"s_cselect_b32 s{R0+2}, 0, s{R0+2}")
    a(f"s_cselect_b32 s{R1+2}, 0, s{R1+2}")
    a(f"s_cselect_b32 s{t0}, {WS_SPAN}, 0")
    a(f"v_cndmask_b32 v{RJ[1]}, v{RJ[1]}, v{tmp}, vcc")
    a(f"v_or_b32 v{RJ[0]}, s{t0}, v{RJ[0]}")
    a(f"v_or_b32 v{RJ[1]}, s{t0}, v{RJ[1]}")
    a(f"s_mul_i32 s{t1}, s{g}, {GS}")
    QPT = int(os.environ.get('QPT', '2'))
    if QPT == 1:
        a(f"v_min_u32 v{tmp}, 8, v{lane}")
        a(f"v_lshlrev_b32 v{vpt}, 7, v{tmp}")
        a(f"s_mul_i32 s{t0}, s{rpj}, 7680")
        a(f"s_add_u32 s{pto}, s{t0}, s{t1}")
    else:
        n0, n1_ = (20, 28) if QPT == 0 else (60, 60)
        a(f"v_min_u32 v{tmp}, {n1_+3}, v{lane}")
        a(f"s_mul_i32 s{t0}, s{rpj}, {n0*128}")
        a(f"s_add_u32 s{t0}, s{t0}, s{t1}")
        a(f"v_lshl_add_u32 v{vpt}, v{tmp}, 7, s{t0}")
        a(f"s_add_u32 s{t0}, s{wv}, 2")
        a(f"s_mul_i32 s{t0}, s{t0}, 163840")
        a(f"s_add_u32 s{t0}, s{t0}, s{t1}")
        a(f"s_lshl_b32 s{t2}, s{m}, 10")
        a(f"s_add_u32 s{t0}, s{t0}, s{t2}")
        a(f"s_sub_u32 s{t0}, s{t0}, {n0*128}")
        a(f"v_lshl_add_u32 v{tmp2}, v{tmp}, 7, s{t0}")
        a(f"v_cmp_lt_u32 vcc, {n0-1}, v{lane}")
        a(f"s_lshl_b32 s{t0}, s{g}, 9")
        a(f"s_add_u32 s{t0}, s{t0}, {FL0 - n1_*128}")
        a(f"v_cndmask_b32 v{vpt}, v{vpt}, v{tmp2}, vcc")
        if os.environ.get('NOQPT'): a(f"v_max_u32 v{tmp}, {n1_}, v{tmp}")
        a(f"v_lshl_add_u32 v{tmp2}, v{tmp}, 7, s{t0}")
        a(f"v_cmp_lt_u32 vcc, {n1_-1}, v{tmp}")
        a(f"v_cndmask_b32 v{vpt}, v{vpt}, v{tmp2}, vcc")
    c1(1)
    P.stamp('pc')
    a(f"s_mov_b32 s{dst_st}, {2*STAGE}")
    a(f"s_mov_b32 s{rd_st}, 0")
    a(f"v_and_b32 v{r}, 31, v{lane}")
    a(f"v_lshrrev_b32 v{h}, 5, v{lane}")
    a(f"s_lshl_b32 s{t1}, s{g}, 7")
    a(f"s_add_u32 s{t1}, s{t1}, {WS_FL}")
    a(f"v_lshl_add_u32 v{vid}, v{r}, 2, s{t1}")
    a(f"v_bfe_u32 v{tmp}, v{r}, 1, 3")
    a(f"v_mul_u32_u24 v{tmp}, 1040, v{tmp}")
    a(f"v_and_b32 v{tmp2}, 1, v{r}")
    a(f"v_lshl_add_u32 v{tmp}, v{tmp2}, 7, v{tmp}")
    a(f"v_lshrrev_b32 v{tmp2}, 4, v{r}")
    a(f"v_lshl_add_u32 v{tmp}, v{tmp2}, 8, v{tmp}")
    a(f"v_lshl_add_u32 v{tmp}, v{h}, 4, v{tmp}")
    a(f"s_mul_i32 s{t0}, s{wr}, {8*1040}")
    a(f"s_lshl_b32 s{t1}, s{wc}, 9")
    a(f"s_add_u32 s{t2}, s{t0}, s{t1}")
    a(f"v_add_u32 v{aBase[0]}, s{t2}, v{tmp}")
    a(f"s_xor_b32 s{t1}, s{t1}, 512")
    a(f"s_add_u32 s{t2}, s{t0}, s{t1}")
    a(f"v_add_u32 v{aBase[1]}, s{t2}, v{tmp}")
    a(f"v_bfe_u32 v{tmp}, v{lane}, 2, 2")
    a(f"v_lshl_add_u32 v{tmp2}, v{h}, 3, v{tmp}")
    a(f"v_lshlrev_b32 v{tmp2}, 8, v{tmp2}")
    a(f"v_bfe_u32 v{tmp3}, v{lane}, 4, 1")
    a(f"v_lshl_add_u32 v{tmp2}, v{tmp3}, 5, v{tmp2}")
    a(f"v_and_b32 v{tmp3}, 3, v{lane}")
    a(f"v_lshl_add_u32 v{tmp2}, v{tmp3}, 3, v{tmp2}")
    a(f"v_add_u32 v{tmp2}, {BOFF}, v{tmp2}")
    a(f"s_lshl_b32 s{t0}, s{wc}, 1")
    a(f"s_add_u32 s{t0}, s{t0}, s{wr}")
    a(f"v_xor_b32 v{tmp3}, s{t0}, v{tmp}")
    a(f"v_lshl_add_u32 v{bBase[0]}, v{tmp3}, 6, v{tmp2}")
    a(f"v_xor_b32 v{tmp3}, 1, v{tmp3}")
    a(f"v_lshl_add_u32 v{bBase[1]}, v{tmp3}, 6, v{tmp2}")
    for i in range(2):
        a(f"v_mov_b32 v{aCur[i]}, v{aBase[i]}")
        a(f"v_mov_b32 v{bCur[i]}, v{bBase[i]}")
    SQM = int(os.environ.get('SQM', '0'))
    for i in range(2 if SQM else 0, 18 if SQM else 10):
        a(f"v_mov_b32 v{vsq+i}, 0")
    a(f"v_lshrrev_b32 v{tmp}, 2, v{lane}")
    a(f"v_xor_b32 v{tmp}, v{tmp}, v{lane}")
    a(f"v_bfe_i32 v{tmp}, v{tmp}, 2, 1")
    a(f"v_mov_b32 v{vones}, 0x3f803f80")
    a(f"v_bfi_b32 v{vones}, v{tmp}, 0, v{vones}")
    for i in range(1, 4):
        a(f"v_mov_b32 v{vones+i}, v{vones}")
    a(f"s_mov_b32 s{himask}, 0xffff0000")
    for i in range(64):
        a(f"v_mov_b32 v{64+i}, 0")
    a(f"s_getreg_b32 s{myid}, hwreg(HW_REG_XCC_ID)")
    a(f"s_and_b32 s{myid}, s{myid}, 15")
    a(f"s_lshl_b32 s{t0}, s{rb}, 2")
    a(f"s_add_u32 s{so0}, s{t0}, s{wv}")
    a(f"s_xor_b32 s{so1}, s{so0}, 1")
    a(f"s_mul_i32 s{t1}, s{g}, {GS}")
    a(f"s_mul_i32 s{so0}, s{so0}, 2560")
    a(f"s_mul_i32 s{so1}, s{so1}, 2560")
    a(f"s_add_u32 s{so0}, s{so0}, s{t1}")
    a(f"s_add_u32 s{so1}, s{so1}, s{t1}")
    a(f"s_mov_b32 s{cnt}, 0")
    a(f"s_lshl_b32 s{t3}, s{cbk}, 1")
    a(f"s_add_u32 s{t3}, s{t3}, s{wc}")
    a(f"s_lshl_b32 s{t3}, s{t3}, 1")
    a(f"s_add_u32 s{t3}, s{t3}, s{wr}")

    def reads(step, st):
        out = []
        for i in range(2):
            out.append(f"ds_read_b128 {v(FA(st,i),4)}, v{aCur[i]} offset:{step*32}")
            for t in range(2):
                out.append(f"ds_read_b64_tr_b16 {v(FB(st,i)+2*t,2)}, v{bCur[i]} offset:{(16*step+4*t)*256}")
        return out
    def dots(st):
        out = []; o2 = []
        for k in range(4):
            u = utmp + 2*k
            out += [f"v_lshlrev_b32 v{u}, 16, v{FA(st,0)+k}", f"v_and_b32 v{u+1}, s{himask}, v{FA(st,0)+k}"]
            o2 += [f"v_fmac_f32 v{vsq}, v{u}, v{u}", f"v_fmac_f32 v{vsq+1}, v{u+1}, v{u+1}"]
        return out[:4] + o2[:2] + out[4:6] + o2[2:4] + out[6:] + o2[4:]
    join = a.label("qjoin")
    def path(md):
        for bi in range(2):
            if bi: a(f"s_xor_b32 s{t3}, s{t3}, 1")
            if md[bi] == 'q':
                a(f"s_lshl_b32 s{t0}, s{t3}, 3")
                a(f"s_mov_b32 s{t2}, {163840-1280}")
                a(f"s_mov_b32 s{t1}, {163840-2560}")
                a(f"v_lshlrev_b32 v{tmp3}, 3, v{r}")
                for g4 in range(4):
                    e = eaddr[bi*4+g4]
                    a(f"v_add3_u32 v{tmp}, s{t0}, v{h}, {2*g4}")
                    a(f"v_mul_u32_u24 v{tmp2}, 205, v{tmp}")
                    a(f"v_lshrrev_b32 v{tmp2}, 10, v{tmp2}")
                    a(f"v_lshl_add_u32 v{e}, v{tmp}, 8, v{tmp3}")
                    a(f"v_mul_u32_u24 v{tmp}, s{t2}, v{tmp2}")
                    a(f"v_lshrrev_b32 v{tmp2}, 1, v{tmp2}")
                    a(f"v_subrev_u32 v{tmp}, {KVO}, v{tmp}")
                    a(f"v_mul_u32_u24 v{tmp2}, s{t1}, v{tmp2}")
                    a(f"v_max_i32 v{tmp}, v{tmp}, v{tmp2}")
                    a(f"v_add_u32 v{e}, v{tmp}, v{e}")
            else:
                e = eaddr[bi*4]
                a(f"s_lshl_b32 s{t0}, s{t3}, 5")
                a(f"s_sub_u32 s{t0}, s{t0}, 160")
                a(f"s_mov_b32 s{t2}, {163840-320}")
                a(f"v_mul_u32_u24 v{tmp3}, 320, v{h}")
                a(f"v_add_u32 v{tmp3}, {KVO+1280}, v{tmp3}")
                a(f"v_add_u32 v{tmp}, s{t0}, v{r}")
                a(f"v_mul_u32_u24 v{tmp2}, 205, v{tmp}")
                a(f"v_lshrrev_b32 v{tmp2}, 12, v{tmp2}")
                a(f"v_lshl_add_u32 v{e}, v{tmp}, 4, v{tmp3}")
                a(f"v_mad_u32_u24 v{e}, v{tmp2}, s{t2}, v{e}")
                a(f"v_lshrrev_b32 v{tmp2}, 2, v{tmp2}")
                a(f"v_lshl_or_b32 v{e}, v{tmp2}, 25, v{e}")
        lp = a.label("qloop"); lp2 = a.label("qloop"); hook = a.label("qhook"); hb = a.label("qhb"); hc = a.label("qhc")
        c1(2)
        P.stamp("pd")
        lw = a.label("qfw")
        a(f"s_cmp_eq_u32 s{wv}, 2")
        a(f"s_waitcnt vmcnt({9+6*(TW>0)})")
        a(f"s_cbranch_scc1 {lw}")
        a(f"s_waitcnt vmcnt(9)")
        a(f"{lw}:")
        P.stamp("pe")
        a(f"s_barrier")
        P.stamp(0)
        for x in reads(0, 0): a(x)
        PT = int(QPT == 1)
        DE = int(os.environ.get('DE', '1'))
        def body(dma_):
            dA, dB = (dmaA(), dmaB()) if dma_ else ([None]*4, [None]*4)
            for step in range(4):
                st = step & 1
                mf = []
                for ai in range(2):
                    for bi in range(2):
                        A_, B_ = (FA(st,ai), FB(st,bi)) if md[bi] == 'v' else (FB(st,bi), FA(st,ai))
                        mf.append(f"v_mfma_f32_32x32x16_bf16 {v(ACC(ai,bi),16)}, {v(A_,4)}, {v(B_,4)}, {v(ACC(ai,bi),16)}")
                cs = f"v_mfma_f32_16x16x32_bf16 {v(vcs,4)}, {v(vones,4)}, {v(FB(st,0),4)}, {v(vcs,4)}"
                sm = f"v_mfma_f32_16x16x32_bf16 {v(vsum,4)}, {v(vones,4)}, {v(FA(st,0),4)}, {v(vsum,4)}"
                d = dots(st)
                if SQM:
                    q = [f"v_mfma_f32_4x4x4_16b_bf16 {v(utmp+4*k,4)}, {v(FA(st,0)+2*k,2)}, {v(FA(st,0)+2*k,2)}, {v(utmp+4*k,4)}" for k in range(2)]
                    d = [q[0]] + [None]*7 + [q[1]] + [None]*7
                a("s_waitcnt lgkmcnt(0)")
                if step == 0:
                    e0 = [f"s_add_u32 m0, s{m0A}, s{dst_st}"] if dma_ else []
                    e1, e2 = [dA[0]], [dA[1]]
                elif step == 1:
                    e0 = [dA[2]]; e1 = [f"buffer_load_dword v254, v{vpt}, {W}, s{pto} offen sc1", f"s_add_u32 s{pto}, s{pto}, 1152"] if dma_ and PT else []
                    e2 = [dA[3], f"s_add_u32 m0, s{m0B}, s{dst_st}", f"s_mov_b32 s{dst_st}, s{rd_st}"] if dma_ else []
                elif step == 2:
                    e0 = [dB[0], f"s_add_u32 s{rd_st}, s{rd_st}, {STAGE}", f"s_cmp_eq_u32 s{rd_st}, {3*STAGE}", f"s_cselect_b32 s{rd_st}, 0, s{rd_st}"]
                    e1 = [dB[1], f"s_add_u32 s{cnt}, s{cnt}, 1"]
                    e2 = [dB[2]] + [f"v_add_u32 v{aCur[i]}, s{rd_st}, v{aBase[i]}" for i in range(2)] + [f"v_add_u32 v{bCur[i]}, s{rd_st}, v{bBase[i]}" for i in range(2)]
                if DE and dma_:
                    strip = lambda e: [x for x in e if not x.endswith(" lds") and "m0" not in x]
                    if step == 0:
                        seq0 = [f"s_add_u32 m0, s{m0A}, s{dst_st}"]
                        e0, e1, e2 = [dA[0], dA[1]], [dA[2]], [dA[3], f"s_add_u32 m0, s{m0B}, s{dst_st}"]
                        a(seq0[0])
                    elif step == 1:
                        e0, e1, e2 = [dB[0], dB[1]], strip(e1) + [dB[2]], [dB[3]] + strip(e2)
                    elif step == 2:
                        e0, e1, e2 = strip(e0), strip(e1), strip(e2)
                    else: dB[3] = None
                if step < 3:
                    rd = reads(step+1, st^1)
                    seq = [mf[0]] + rd[:3] + d[:3] + [mf[1]] + rd[3:] + e0 + d[3:5] + [cs] + d[5:7] + [mf[2]] + e1 + d[7:12] + [mf[3]] + d[12:] + e2 + [sm]
                else:
                    rd = reads(0, st^1)
                    w2 = a.label("qw")
                    seq = [mf[0]] + ([dB[3], f"s_waitcnt vmcnt({8+PT})", "s_barrier"] if dma_ else ["s_waitcnt vmcnt(2)", "s_barrier"]) + rd[:3] + [mf[1]] + rd[3:] + d[:4] + [cs] + d[4:6] + [mf[2]] + d[6:12] + [mf[3]] + d[12:] + [sm]
                for x in seq:
                    if x: a(x)
        a(f".p2align 6")
        a(f"{lp}:")
        body(True)
        for x in offs() + [f"s_cmp_eq_u32 s{cnt}, 2", f"s_cbranch_scc1 {hook}", f"s_cmp_lt_u32 s{cnt}, 8", f"s_cbranch_scc1 {lp}"]: a(x)
        P.stamp("l1")
        if not os.environ.get('NOCP'):
            a(f"s_sub_u32 s{t0}, 127, s{rpj}")
            code_prefetch(a, "L_att_begin", "L_mk_end", t0, 50, t1, lane, 255)
        a(f"buffer_load_dword v{vn}, v{vid}, {W}, 0 offen sc1")
        a(f"buffer_load_dword v254, v{vpt}, {W}, {f's{pto}' if PT else 0} offen sc1")
        P.stamp("l2")
        a(f"{lp2}:")
        body(False)
        for x in [f"s_cmp_lt_u32 s{cnt}, 10", f"s_cbranch_scc1 {lp2}"]: a(x)
        sp = a.label("qsp"); ok = a.label("qok"); np_ = a.label("qnp")
        hk = [f"s_mov_b32 s{spin}, {c['SPIN']}",
              f"{sp}:", f"v_readfirstlane_b32 s{nonce}, v{vn}", f"s_cmp_lg_u32 s{nonce}, 0", f"s_cbranch_scc1 {ok}",
              f"global_load_dword v{vn}, v{vz}, s[48:49] sc1", f"s_sub_u32 s{spin}, s{spin}, 1", "s_waitcnt vmcnt(0)", f"s_cbranch_scc0 {sp}",
              f"{ok}:", f"s_or_b32 s{myid}, s{myid}, s{nonce}", f"s_lshl_b32 s{t1}, s{g}, 7", f"s_add_u32 s{t1}, s{t1}, {WS_FL}",
              f"s_cmp_lg_u32 s{wv}, 0", f"s_cbranch_scc1 {lp}",
              f"s_lshl_b32 s{t0}, s{m}, 2", f"s_add_u32 s{t0}, s{t0}, s{t1}", f"v_mov_b32 v{vn}, s{myid}", "s_mov_b64 exec, 1",
              f"buffer_store_dword v{vn}, v{vz}, {W}, s{t0} offen sc0 sc1", "s_mov_b64 exec, -1", f"s_branch {lp}",
              ]
        c['tail'].append((hook, hk[:-1], lp))
        P.stamp("l3")
        a(f"s_waitcnt vmcnt(1)")
        P.stamp(1)
        a(f"s_mov_b32 s{spin}, {c['SPIN']}")
        pl = a.label("idp"); pk = a.label("idk")
        a(f"{pl}:")
        a(f"v_xor_b32 v{tmp}, s{myid}, v{vn}")
        a(f"v_cmp_lt_u32 vcc, 15, v{tmp}")
        a(f"s_cbranch_vccz {pk}")
        a(f"buffer_load_dword v{vn}, v{vid}, {W}, 0 offen sc1")
        a(f"s_sub_u32 s{spin}, s{spin}, 1")
        a(f"s_waitcnt vmcnt(0)")
        a(f"s_cbranch_scc0 {pl}")
        a(f"{pk}:")
        if SQM:
            for k in range(4): a(f"v_add_f32 v{utmp+k}, v{utmp+k}, v{utmp+4+k}")
            a(f"s_mov_b32 vcc_lo, 0xaaaaaaaa")
            a(f"s_mov_b32 vcc_hi, 0xaaaaaaaa")
            a(f"v_cndmask_b32 v{utmp}, v{utmp}, v{utmp+1}, vcc")
            a(f"v_cndmask_b32 v{utmp+2}, v{utmp+2}, v{utmp+3}, vcc")
            a(f"s_mov_b32 vcc_lo, 0xcccccccc")
            a(f"s_mov_b32 vcc_hi, 0xcccccccc")
            a(f"v_cndmask_b32 v{vsq}, v{utmp}, v{utmp+2}, vcc")
        a(f"v_cmp_ne_u32 vcc, 0, v{tmp}")
        if not SQM: a(f"v_add_f32 v{vsq}, v{vsq}, v{vsq+1}")
        a(f"v_mov_b32 v{tmp}, v{vsq}")
        a(f"s_cmp_lg_u64 vcc, 0")
        a(f"s_cselect_b32 s{pure}, 0, {0 if c['IMPURE'] else 1}")
        a(f"v_permlane32_swap_b32 v{tmp}, v{vsq}")
        a("s_nop 1")
        a(f"v_add_f32 v{vsq}, v{vsq}, v{tmp}")
        a(f"v_mul_f32 v{vsum}, {f32(1.0/D)}, v{vsum}")
        a(f"v_mul_f32 v{vsq}, {f32(1.0/D)}, v{vsq}")
        a(f"v_fma_f32 v{vsq}, -v{vsum}, v{vsum}, v{vsq}")
        a(f"v_max_f32 v{vsq}, 0, v{vsq}")
        a(f"v_add_f32 v{vsq}, {f32(EPS)}, v{vsq}")
        a(f"v_rsq_f32 v{vsq}, v{vsq}")
        a(f"v_sub_f32 v{vsum}, 0, v{vsum}")
        a(f"s_lshl_b32 s{t2}, s{wv}, 7")
        a(f"s_add_u32 s{t2}, s{t2}, {STATS}")
        a(f"v_lshl_add_u32 v{tmp}, v{r}, 2, s{t2}")
        a(f"s_lshl_b32 s{t0}, s{wc}, 8")
        a(f"s_lshl_b32 s{t1}, s{wr}, 7")
        a(f"s_add_u32 s{t0}, s{t0}, s{t1}")
        a(f"s_add_u32 s{t0}, s{t0}, {STATS+1024}")
        a(f"v_lshl_add_u32 v{tmp2}, v{r}, 2, s{t0}")
        a(f"ds_write_b32 v{tmp}, v{vsq}")
        a(f"ds_write_b32 v{tmp}, v{vsum} offset:512")
        a(f"ds_write_b32 v{tmp2}, v{vcs}")
        Rr = [134, 138]; Mr = [136, 206]; Cr = [216, 218]; RR, MM = 140, 172
        x1, x2, x3, x4, x5, x6 = 4, 5, 6, 7, 8, 9
        a(f"v_xor_b32 v{x1}, 128, v{tmp}")
        a(f"v_xor_b32 v{x2}, 128, v{tmp2}")
        a(f"v_lshl_add_u32 v{x3}, v{h}, 4, s{t0}")
        a(f"v_xor_b32 v{x4}, 128, v{x3}")
        a(f"v_lshl_add_u32 v{x5}, v{h}, 4, s{t2}")
        a(f"v_xor_b32 v{x6}, 128, v{x5}")
        a(f"s_waitcnt lgkmcnt(0)")
        a(f"s_barrier")
        P.stamp("e1")
        if 'q' in md:
            for ai, ad in enumerate((tmp, x1)):
                a(f"ds_read_b32 v{Rr[ai]}, v{ad}")
                a(f"ds_read_b32 v{Mr[ai]}, v{ad} offset:512")
        for bi in range(2):
            if md[bi] == 'q':
                for g4 in range(4): a(f"ds_read_b128 {v(32+bi*16+g4*4,4)}, v{(x3,x4)[bi]} offset:{g4*32}")
            else:
                a(f"ds_read_b32 v{Cr[bi]}, v{(tmp2,x2)[bi]}")
        if 'v' in md:
            for ai in range(2):
                for g4 in range(4): a(f"ds_read_b128 {v(MM+ai*16+g4*4,4)}, v{(x5,x6)[ai]} offset:{512+g4*32}")
                for g4 in range(4): a(f"ds_read_b128 {v(RR+ai*16+g4*4,4)}, v{(x5,x6)[ai]} offset:{g4*32}")
        a(f"s_waitcnt lgkmcnt(0)")
        if 'q' in md:
            for ai in range(2): a(f"v_mul_f32 v{Rr[ai]}, {f32(QS2)}, v{Rr[ai]}")
        for ai in range(2):
            for bi in range(2):
                A0 = ACC(ai,bi); sof = (so0, so1)[ai]
                if md[bi] == 'q':
                    for p in range(8): a(f"v_pk_fma_f32 {v(A0+2*p,2)}, {v(32+bi*16+2*p,2)}, {v(Mr[ai],2)}, {v(A0+2*p,2)} op_sel_hi:[1,0,1]")
                    for p in range(8): a(f"v_pk_mul_f32 {v(A0+2*p,2)}, {v(A0+2*p,2)}, {v(Rr[ai],2)} op_sel_hi:[1,0]")
                else:
                    for p in range(8): a(f"v_pk_fma_f32 {v(A0+2*p,2)}, {v(MM+ai*16+2*p,2)}, {v(Cr[bi],2)}, {v(A0+2*p,2)} op_sel_hi:[1,0,1]")
                    for p in range(8): a(f"v_pk_mul_f32 {v(A0+2*p,2)}, {v(A0+2*p,2)}, {v(RR+ai*16+2*p,2)}")
                for p in range(8): a(f"v_cvt_pk_bf16_f32 v{A0+p}, v{A0+2*p}, v{A0+2*p+1}")
                if md[bi] == 'q':
                    both([f"buffer_store_dwordx2 {v(A0+2*g4,2)}, v{eaddr[bi*4+g4]}, {W}, s{sof} offen" for g4 in range(4)])
                else:
                    both([f"buffer_store_dwordx4 {v(A0+4*g2,4)}, v{eaddr[bi*4]}, {W}, s{sof} offen offset:{640*g2}" for g2 in range(2)])
    lv = a.label("pv"); lqv = a.label("pqv"); lvq = a.label("pvq")
    a(f"s_cmp_ge_u32 s{t3}, 6")
    a(f"s_cbranch_scc1 {lv}")
    a(f"s_cmp_eq_u32 s{t3}, 4")
    a(f"s_cbranch_scc1 {lqv}")
    a(f"s_cmp_eq_u32 s{t3}, 5")
    a(f"s_cbranch_scc1 {lvq}")
    path('qq'); a(f"s_branch {join}")
    a(f"{lqv}:"); path('qv'); a(f"s_branch {join}")
    a(f"{lvq}:"); path('vq'); a(f"s_branch {join}")
    a(f"{lv}:"); path('vv')
    a(f"{join}:")
    P.stamp("e2")
    a("s_nop 1")
    dn = a.label("rdn"); jn = a.label("rjn")
    rl = rp.rp_loads(R0, 94, 95, 96, 240, 241, RL[0]) + rp.rp_loads(R1, 97, 98, 99, 242, 243, RL[1])
    f0 = rp.rp_finish(SW, t0, t1, [(RL[0],0), (RL[0],1), (RL[1],0), (RL[1],1)], RO[0], RJ[0], 0, "sc0 sc1")
    f1 = rp.rp_finish(SW, t0, t1, [(RL[0],2), (RL[0],3), (RL[1],2), (RL[1],3)], RO[1], RJ[1], 0, "sc0 sc1")
    pm = [f"s_mov_b32 s{t0}, 0x05040100", f"s_mov_b32 s{t1}, 0x07060302", f"s_cmp_ge_u32 s{rpj}, 60", f"s_cbranch_scc1 {dn}"] + f0[:16] + f1[:16] + [f"s_branch {jn}", f"{dn}:"]
    for k in range(2): pm += rp.rp_finish(SW, t0, t1, [(RL[k],cc) for cc in range(4)], RO[k], RJ[k], 0)[:16]
    pm += [f"{jn}:"] + f0[17:25] + f1[17:25] + f0[26:34] + f1[26:34]
    return rl, pm, f0[-4:] + f1[-4:]
```

```python
from asmlib import *
from layout import *

def rest(c):
    a, P = c['a'], c['P']
    ag, both, flag, poll, WOF = c['ag'] if 'ag' in c else None, c['both'], c['flag'], c['poll'], c['WOF']
    import mg as mk
    ag = mk.ag; UPTO = mk.UPTO
    SW, SOUT, g, m, wv = c['SW'], c['SOUT'], c['g'], c['m'], c['wv']
    t0, t1, t2, t3, so = c['t0'], c['t1'], c['t2'], c['t3'], c['so']
    lane, voff, RES, raddr = c['lane'], c['voff'], c['RES'], c['raddr']
    tmp, tmp2, tmp3, tmp4 = c['tmp'], c['tmp2'], c['tmp3'], c['tmp4']
    W = f"s[{SW}:{SW+3}]"
    P1W = int(os.environ.get('P1W', '0')); WA = int(os.environ.get('WA', '1')); wd2 = 52
    rb64, nb, rbg, sfl, spl, wd_ = 40, 41, 42, 43, 44, 47
    hs = [45, 46]; hl = [48, 49]; chunk, rt = 50, 51
    CS = [136, 140, 152]; ONES = 156
    wr = [3, 4, 5]; rdv = 6; voff2 = 7
    mf16 = lambda D_, A_, B_, C_: f"v_mfma_f32_16x16x32_bf16 {v(D_,4)}, {A_}, {B_}, {C_}"
    def colsum(fs):
        for ks in range(20):
            for f in fs:
                a(mf16(CS[f], ag((ks*3+f)*4,4), v(ONES,4), "0" if ks == 0 else v(CS[f],4)))
    for i in range(4): a(f"v_mov_b32 v{ONES+i}, 0x3f803f80")
    a(f"s_and_b32 s{rb64}, s{m}, 3")
    a(f"s_lshr_b32 s{nb}, s{m}, 2")
    a(f"s_lshl_b32 s{rbg}, s{g}, 2")
    a(f"s_add_u32 s{rbg}, s{rbg}, s{rb64}")
    a(f"s_lshl_b32 s{rbg}, s{rbg}, 2")
    a(f"s_lshl_b32 s{t3}, s{c['qb']}, 2")
    a(f"s_add_u32 s{t3}, s{t3}, s{wv}")
    a(f"s_lshl_b32 s{t3}, s{t3}, 3")
    a(f"s_add_u32 s{t3}, s{t3}, s{g}")
    a(f"s_lshl_b32 s{t3}, s{t3}, 5")
    a(f"s_add_u32 s{t3}, s{t3}, s{rb64}")
    a(f"s_lshl_b32 s{t3}, s{t3}, 2")
    a(f"s_add_u32 s{sfl}, s{t3}, {FL1}")
    a(f"s_add_u32 s{t3}, s{rbg}, s{wv}")
    a(f"s_lshl_b32 s{t3}, s{t3}, 8")
    a(f"s_add_u32 s{spl}, s{t3}, {FL1}")
    colsum((0, 1))
    O_ = f"s[{SOUT}:{SOUT+3}]"
    def rowsel(stride, kq, base, gs=0):
        a(f"s_mul_i32 s{t2}, s{wv}, {kq}")
        if base: a(f"s_add_u32 s{t2}, s{t2}, {base}")
        if gs:
            a(f"s_mul_i32 s{t0}, s{g}, {gs}")
            a(f"s_add_u32 s{t2}, s{t2}, s{t0}")
        for j in range(4):
            a(f"s_add_u32 s{t0}, s{wv}, {j}")
            a(f"s_and_b32 s{t0}, s{t0}, 3")
            a(f"s_add_u32 s{t0}, s{t0}, s{rbg}")
            a(f"s_mul_i32 s{t0}, s{t0}, {stride}")
            a(f"s_add_u32 s{so[j]}, s{t0}, s{t2}")
    flag(sfl, tmp3, True)
    P.stamp(6)
    RP = [133, 134, 135]; rpa = 144
    def rpl(i, guard=True):
        if P1W < 2: return
        lq = a.label("nrp")
        if guard:
            a(f"s_cmp_lg_u32 s{wv}, 0")
            a(f"s_cbranch_scc1 {lq}")
        a(f"buffer_load_dword v{RP[i]}, v{rpa}, {W}, s{spl} offen sc1")
        if guard: a(f"{lq}:")
    if P1W == 2:
        a(f"v_and_b32 v{rpa}, 28, v{lane}")
        a(f"v_and_b32 v{rpa+1}, 3, v{lane}")
        a(f"v_lshlrev_b32 v{rpa}, 5, v{rpa}")
        a(f"v_lshl_add_u32 v{rpa}, v{rpa+1}, 2, v{rpa}")
    rpl(0)
    rowsel(1280, 2*GS, 0)
    OA = [128, 129, 130, 131, 132]
    a(f"v_lshrrev_b32 v{tmp}, 4, v{lane}")
    a(f"s_mov_b32 s{t0}, {163840-1280}")
    a(f"s_mov_b32 s{t1}, {GS-2*163840}")
    for s_ in range(5):
        a(f"v_add_u32 v{tmp2}, {4*s_}, v{tmp}")
        a(f"v_mul_u32_u24 v{tmp2}, 205, v{tmp2}")
        a(f"v_lshrrev_b32 v{tmp2}, 10, v{tmp2}")
        a(f"v_mad_u32_u24 v{OA[s_]}, v{tmp2}, s{t0}, v{voff}")
        a(f"v_lshrrev_b32 v{tmp2}, 1, v{tmp2}")
        a(f"v_mad_u32_u24 v{OA[s_]}, v{tmp2}, s{t1}, v{OA[s_]}")
    a(f"v_add_u32 v{OA[4]}, 4096, v{OA[4]}")
    for j in range(1, 4):
        a(f"s_add_u32 s{t0}, s{wv}, {j}")
        a(f"s_and_b32 s{t0}, s{t0}, 3")
        a(f"s_mul_i32 s{t0}, s{t0}, 15360")
        a(f"s_add_u32 s{t0}, s{t0}, {(j-1)*5120}")
        a(f"v_add_u32 v{wr[j-1]}, s{t0}, v{voff}")
    a(f"s_mul_i32 s{t0}, s{wv}, 15360")
    a(f"v_add_u32 v{rdv}, s{t0}, v{voff}")
    for gp in c['late']:
        for x in gp: a(x)
    if c['late']: a('s_waitcnt vmcnt(0)')
    assert P1W < 2 or not c['late']
    rpl(1)
    colsum((2,))
    if P1W == 2:
        lq = a.label("np1"); lp = a.label("rp")
        a(f"s_cmp_lg_u32 s{wv}, 0")
        a(f"s_cbranch_scc1 {lq}")
        rpl(2, False)
        a(f"s_mov_b32 s{c['spin']}, {mk.SPIN}")
        a(f"{lp}:")
        for i in range(3):
            a("s_waitcnt vmcnt(2)")
            a(f"v_cmp_ne_u32 vcc, s{c['nonce']}, v{RP[i]}")
            a(f"s_cbranch_vccz {lq}")
            rpl(i, False)
        a(f"s_sub_u32 s{c['spin']}, s{c['spin']}, 1")
        a(f"s_cbranch_scc0 {lp}")
        a(f"{lq}:")
        a("s_barrier")
    elif P1W:
        lq = a.label("np1")
        a(f"s_cmp_lg_u32 s{wv}, 0")
        a(f"s_cbranch_scc1 {lq}")
        poll(spl, 32, tmp3, True)
        a(f"{lq}:")
        a("s_barrier")
    else:
        a("s_barrier")
        poll(spl, 8, tmp3, True)
    P.stamp(7)
    def xgemm(KS, A0, NR, ACC, RD, wf, lead, pre, va=None):
        order = [(j, s) for j in (1, 2, 3, 0) for s in range(KS)]
        N = len(order)
        accs = {1: ACC[0], 2: ACC[1], 3: ACC[2], 0: ACC[0]}
        def ld(n):
            j, s = order[n]
            out = [f"buffer_load_dwordx4 {v(A0+4*(n%NR),4)}, v{va[s] if va else voff}, {W}, s{so[j]} offen offset:{1024*(s&3)} sc1"]
            if s & 3 == 3 and s + 1 < KS and not va: out.append(f"s_add_u32 s{so[j]}, s{so[j]}, 4096")
            return out
        for n in range(lead):
            for x in ld(n): a(x)
        for x in pre: a(x)
        bs = KS - 2 if KS == 5 else KS - 4
        rq = [f"ds_read_b128 {v(RD+4*q,4)}, v{rdv} offset:{1024*q}" for q in range(15)]
        for n, (j, s) in enumerate(order):
            a(f"s_waitcnt vmcnt({min(lead-1, N-1-n)})")
            P.stamp(f"g{KS}_{n}")
            pj = {2: 1, 3: 2, 0: 3}.get(j)
            for i in range(5):
                D_ = accs[j] + 4*i
                a(mf16(D_, wf(s*5+i), v(A0+4*(n%NR),4), "0" if s == 0 and j else v(D_,4)))
                if j == 3 and s < 2:
                    q = 5*s + i
                    a(f"v_lshlrev_b32 v{ACC[0]+2*q}, 16, v{RES+q}")
                    a(f"v_and_b32 v{ACC[0]+2*q+1}, 0xffff0000, v{RES+q}")
                if i == 0 and n + lead < N:
                    for x in ld(n+lead): a(x)
                if pj and s == 2:
                    a(f"ds_write_b128 v{wr[pj-1]}, {v(accs[pj]+4*i,4)} offset:{1024*i}")
                if j == 0 and s > bs:
                    for _ in range(3 // (KS-1-bs)): a(rq.pop(0))
            if j == 0 and s == bs:
                a("s_waitcnt lgkmcnt(0)")
                a("s_barrier")
        assert not rq
    def addres(ACC0, RD, U0):
        a("s_waitcnt lgkmcnt(5)")
        for j in range(10):
            a(f"v_pk_add_f32 {v(RD+2*j,2)}, {v(RD+2*j,2)}, {v(RD+20+2*j,2)}")
        a("s_waitcnt lgkmcnt(0)")
        for j in range(10):
            a(f"v_pk_add_f32 {v(ACC0+2*j,2)}, {v(ACC0+2*j,2)}, {v(RD+40+2*j,2)}")
        for j in range(10):
            a(f"v_pk_add_f32 {v(ACC0+2*j,2)}, {v(ACC0+2*j,2)}, {v(RD+2*j,2)}")
        for j in range(10):
            a(f"v_cvt_pk_bf16_f32 v{RES+j}, v{ACC0+2*j}, v{ACC0+2*j+1}")
    ACC = [64, 84, 104]
    ha, ha2, sta = 124, 125, 126
    pre = [f"v_and_b32 v{tmp}, 15, v{lane}", f"v_lshrrev_b32 v{tmp2}, 5, v{lane}", f"v_mul_u32_u24 v{tmp2}, 1280, v{tmp2}",
           f"v_lshl_add_u32 v{ha2}, v{tmp}, 4, v{tmp2}", f"v_bfe_u32 v{tmp2}, v{lane}, 4, 1",
           f"v_lshl_add_u32 v{ha}, v{tmp2}, 9, v{ha2}", f"v_lshl_add_u32 v{ha2}, v{tmp2}, 3, v{ha2}", f"v_lshlrev_b32 v{sta}, 4, v{tmp}",
           f"s_add_u32 s{t0}, s{rbg}, s{wv}", f"s_mul_i32 s{t1}, s{t0}, 20480", f"s_mul_i32 s{t2}, s{nb}, 2560",
           f"s_add_u32 s{hs[0]}, s{t1}, s{t2}",
           f"s_lshl_b32 s{t1}, s{t0}, 10", f"s_mul_i32 s{t2}, s{nb}, 136", f"s_and_b32 s{t2}, s{t2}, 0x308", f"s_add_u32 s{t1}, s{t1}, s{t2}", f"s_add_u32 s{hs[1]}, s{t1}, {WS_ST}",
           f"s_lshl_b32 s{t0}, s{t0}, 3", f"s_add_u32 s{t0}, s{t0}, s{nb}", f"s_lshl_b32 s{t0}, s{t0}, 2", f"s_add_u32 s{sfl}, s{t0}, {FL2}"]
    xgemm(5, 14, 12, ACC, 160, WOF, int(os.environ.get('L3', '6')), pre, OA)
    U0 = 14
    P.stamp("p3g")
    addres(ACC[0], 160, U0)
    A0 = ACC[0]
    both([f"buffer_store_dwordx4 {v(RES,4)}, v{ha}, {O_}, s{hs[0]} offen",
          f"buffer_store_dwordx4 {v(RES+4,4)}, v{ha}, {O_}, s{hs[0]} offen offset:256",
          f"buffer_store_dwordx2 {v(RES+8,2)}, v{ha2}, {O_}, s{hs[0]} offen offset:1024"])
    sm, sq = U0, U0+2
    a(f"v_pk_add_f32 {v(sm,2)}, {v(A0,2)}, {v(A0+2,2)}")
    a(f"v_pk_mul_f32 {v(sq,2)}, {v(A0,2)}, {v(A0,2)}")
    for j in range(1, 10):
        if j > 1: a(f"v_pk_add_f32 {v(sm,2)}, {v(sm,2)}, {v(A0+2*j,2)}")
        a(f"v_pk_fma_f32 {v(sq,2)}, {v(A0+2*j,2)}, {v(A0+2*j,2)}, {v(sq,2)}")
    a(f"v_add_f32 v{sm}, v{sm}, v{sm+1}")
    a(f"v_add_f32 v{sm+1}, v{sq}, v{sq+1}")
    for op in ("v_permlane32_swap_b32", "v_permlane16_swap_b32"):
        a(f"v_mov_b32 v{sq}, v{sm}")
        a(f"v_mov_b32 v{sq+1}, v{sm+1}")
        a("s_nop 1")
        a(f"{op} v{sq}, v{sm}")
        a(f"{op} v{sq+1}, v{sm+1}")
        a("s_nop 1")
        a(f"v_pk_add_f32 {v(sm,2)}, {v(sm,2)}, {v(sq,2)}")
    a(f"s_mov_b64 exec, 0xffff")
    both([f"buffer_store_dwordx2 {v(sm,2)}, v{sta}, {W}, s{hs[1]} offen"])
    a(f"s_mov_b64 exec, -1")
    if UPTO < 4: return
    a(f"s_bfe_u32 s{rt}, s{m}, 0x10001")
    a(f"s_lshl_b32 s{t0}, s{g}, 1")
    a(f"s_add_u32 s{rt}, s{rt}, s{t0}")
    a(f"s_lshl_b32 s{chunk}, s{nb}, 1")
    a(f"s_and_b32 s{t0}, s{m}, 1")
    a(f"s_add_u32 s{chunk}, s{chunk}, s{t0}")
    a(f"s_lshl_b32 s{chunk}, s{chunk}, 2")
    a(f"s_add_u32 s{chunk}, s{chunk}, s{wv}")
    a(f"s_lshl_b32 s{t0}, s{rt}, 8")
    a(f"s_lshl_b32 s{t1}, s{wv}, 6")
    a(f"s_add_u32 s{t0}, s{t0}, s{t1}")
    a(f"s_add_u32 s{spl}, s{t0}, {FL2}")
    a(f"s_mul_i32 s{hl[0]}, s{wv}, 40960")
    a(f"s_add_u32 s{hl[1]}, s{hl[0]}, 20480")
    a(f"s_mul_i32 s{t0}, s{rt}, 163840")
    P.stamp("p3s")
    flag(sfl, tmp3)
    P.stamp("p3f")
    a(f"s_add_u32 s{hs[0]}, s{hl[0]}, s{t0}")
    a(f"s_add_u32 s{hs[1]}, s{hl[1]}, s{t0}")
    a(f"s_mul_i32 s{wd_}, s{nb}, {48*5120}")
    a(f"s_mul_i32 s{t0}, s{wv}, {12*5120}")
    a(f"s_add_u32 s{wd_}, s{wd_}, s{t0}")
    a(f"s_add_u32 s{wd_}, s{wd_}, {WS_WD}")
    a(f"s_add_u32 s{wd2}, s{wd_}, {56*1024}")
    rdb = [92, 93, 94]; oaddr = 95; sta = 8
    HF = lambda b, i: 14 + b*32 + i*4
    def AC(i, f):
        n = i*3 + f
        return 160 + 4*n if n < 21 else 80 + 4*(n-21)
    ST = 96
    for i in range(3):
        a(f"v_add_u32 v{rdb[i]}, {i*61440}, v{voff}")
    a(f"v_and_b32 v{tmp}, 15, v{lane}")
    a(f"v_lshrrev_b32 v{tmp2}, 4, v{lane}")
    a(f"v_add_u32 v{sta}, 4096, v{voff}")
    a(f"v_mul_u32_u24 v{oaddr}, 49152, v{tmp2}")
    a(f"v_lshl_add_u32 v{oaddr}, v{tmp}, 4, v{oaddr}")
    a("s_barrier")
    poll(spl, 16, tmp3)
    P.stamp(8)
    def hgrp(u):
        o = (u & 1)*2048
        dm = lambda b, s: f"buffer_load_dwordx4 v{voff}, {O_}, s{hs[b]} offen offset:{o+1024*s} sc1 lds"
        out = []
        for b in range(2):
            out.append([f"s_mov_b32 m0, s{hl[b]}", "s_nop 0", dm(b, 0)])
            last = [dm(b, 1)]
            if u & 1: last += [f"s_add_u32 s{hs[b]}, s{hs[b]}, 4096", f"s_add_u32 s{hl[b]}, s{hl[b]}, 4096"]
            out.append(last)
        return out
    WDF = lambda n: ag(4*n + (12 if WA and n >= 57 else 0), 4)
    def wdl(n):
        if WA and n >= 57: return [f"buffer_load_dwordx4 {WDF(n)}, v{voff}, {W}, s{wd2} offen offset:{1024*(n&3)} sc1"]
        out = [f"buffer_load_dwordx4 {ag(4*n,4)}, v{voff}, {W}, s{wd_} offen offset:{1024*(n&3)} sc1"]
        if n & 3 == 3: out.append(f"s_add_u32 s{wd_}, s{wd_}, 4096")
        return out
    HU = int(os.environ.get('HU', '3'))
    for u in range(HU):
        for gp in hgrp(u):
            for x in gp: a(x)
    a(f"s_lshl_b32 s{t0}, s{rt}, 13")
    a(f"s_add_u32 s{t0}, s{t0}, {WS_ST}")
    def reads(ks, b):
        return [f"ds_read_b128 {v(HF(b,i),4)}, v{rdb[i//3]} offset:{(i%3)*20480 + ks*1024}" for i in range(8)]
    a(f"s_waitcnt vmcnt({4*(HU-1)})")
    a(f"s_barrier")
    P.stamp("kb")
    for x in reads(0, 0): a(x)
    NIN = 60 if WA else 48
    loads = {ks: [] for ks in range(20)}
    for u in range(HU, 10): loads[max(u-3, 0)] += hgrp(u)
    a(f"v_and_b32 v{tmp}, 7, v{lane}")
    a(f"v_lshlrev_b32 v{tmp}, 12, v{tmp}")
    a(f"s_lshl_b32 s{t3}, s{wv}, 3")
    a(f"s_add_u32 s{t3}, s{t3}, s{g}")
    a(f"s_lshl_b32 s{t3}, s{t3}, 7")
    a(f"s_add_u32 s{t3}, s{t3}, {FL1}")
    kld, kck = c['pollw'](t3, 4, 128, tmp, False)
    loads[6].insert(0, kld)
    loads[7] += [[f"buffer_load_dwordx4 {v(ST+4*i,4)}, v{sta if i > 3 else voff}, {W}, s{t0} offen offset:{1024*(i&3)} sc1"] for i in range(8)]
    for p_, n in enumerate(([57, 58, 59] if WA else []) + list(range(min(NIN, 57)))):
        ks = 8 + p_*12//NIN
        assert n < 3*ks or n >= 57
        loads[ks].append(wdl(n))
    sl = [f"s_waitcnt vmcnt({sum(len(loads[k]) for k in range(8, 12))})"]; a_ = sl.append
    for i in range(8): [a_(f"v_add_f32 v{ST+4*i+q}, v{ST+4*i+q}, v{ST+4*i+2+q}") for q in range(2)]
    for op, n in (("v_permlane32_swap_b32", 4), ("v_permlane16_swap_b32", 2)):
        a_("s_nop 1")
        for i in range(n):
            for q in range(2): a_(f"{op} v{ST+4*i+q}, v{ST+4*(i+n)+q}")
        a_("s_nop 1")
        for i in range(n): [a_(f"v_add_f32 v{ST+4*i+q}, v{ST+4*i+q}, v{ST+4*(i+n)+q}") for q in range(2)]
    NM = 104; R2 = 105; T = 48
    for j in range(2):
        b = ST + 4*j
        a_(f"v_mul_f32 v{b}, {f32(-1.0/D)}, v{b}")
        a_(f"v_mul_f32 v{b+1}, {f32(1.0/D)}, v{b+1}")
        a_(f"v_fma_f32 v{b+1}, -v{b}, v{b}, v{b+1}")
        a_(f"v_max_f32 v{b+1}, 0, v{b+1}")
        a_(f"v_add_f32 v{b+1}, {f32(EPS)}, v{b+1}")
        a_(f"v_rcp_f32 v{b+1}, v{b+1}")
    a_("s_nop 0")
    rr = lambda dst, j: [dst + 2*(2*q + j) for q in range(4)]
    for j in range(2):
        for (src, dst) in ((ST+4*j, NM), (ST+4*j+1, R2)):
            r = rr(dst, j)
            a_(f"v_mov_b32 v{r[0]}, v{src}")
            a_(f"v_mov_b32 v{r[1]}, v{src}")
    a_("s_nop 1")
    for j in range(2):
        for dst in (NM, R2):
            r = rr(dst, j)
            a_(f"v_permlane16_swap_b32 v{r[0]}, v{r[1]}")
    a_("s_nop 0")
    for j in range(2):
        for dst in (NM, R2):
            r = rr(dst, j)
            a_(f"v_mov_b32 v{r[2]}, v{r[0]}")
            a_(f"v_mov_b32 v{r[3]}, v{r[1]}")
    a_("s_nop 1")
    for j in range(2):
        for dst in (NM, R2):
            r = rr(dst, j)
            a_(f"v_permlane32_swap_b32 v{r[0]}, v{r[2]}")
            a_(f"v_permlane32_swap_b32 v{r[1]}, v{r[3]}")
    assert not any("pk_" in x for x in sl)
    fill = {ks: sl[(ks-12)*len(sl)//7:(ks-11)*len(sl)//7] for ks in range(12, 19)}
    for ks in range(20):
        b = ks & 1
        mf = [mf16(AC(i,f), ag((ks*3+f)*4,4), v(HF(b,i),4), "0" if ks == 0 else v(AC(i,f),4)) for i in range(8) for f in range(3)]
        rd = reads(ks+1, b^1) if ks < 19 else []
        ld = loads[ks]
        if os.environ.get('NOWD') and ks >= 8: ld = []
        a("s_waitcnt lgkmcnt(0)")
        seq = []
        bar = {**({1: 4} if HU == 3 else {1: 8, 3: 12}), 5: 8, 11: 8 + sum(len(loads[k]) for k in range(8, 11))}.get(ks)
        if bar is not None:
            seq += mf[:2] + [f"s_waitcnt vmcnt({bar})"] + (kck if ks == 11 else []) + ["s_barrier"]
            k0 = 2
        else:
            k0 = 0
        for i in range(8):
            seq.append(mf[k0+i])
            if rd: seq.append(rd[i])
        rest_ = mf[k0+8:]
        k = 0
        for i, x in enumerate(rest_):
            seq.append(x)
            while k < len(ld) and k*len(rest_) <= i*len(ld):
                seq += ld[k]; k += 1
        assert k == len(ld)
        if ks >= 12:
            out = []
            if ks == 12: out.append(sl.pop(0))
            for n_, x in enumerate(seq):
                out.append(x)
                if x.startswith("v_mfma") and (n_ + 1 == len(seq) or seq[n_+1].startswith("v_mfma")):
                    while sl:
                        out.append(sl.pop(0))
                        if not out[-1].startswith("s_nop"): break
            seq = out
        for x in seq: a(x)
        P.stamp(f"k{ks}")
    assert not sl
    P.stamp(11)
    a(f"s_mul_i32 s{t0}, s{rt}, {8*49152}")
    a(f"s_mul_i32 s{t1}, s{chunk}, 768")
    a(f"s_add_u32 s{t0}, s{t0}, s{t1}")
    a(f"s_mul_i32 s{t1}, s{g}, {GS-16*49152}")
    a(f"s_add_u32 s{t0}, s{t0}, s{t1}")
    a(f"s_add_u32 s{t0}, s{t0}, {KVO}")
    for h in range(2):
        for I in range(4):
            i = 4*h + I
            for f in range(3):
                A = AC(i,f)
                a(f"v_pk_fma_f32 {v(A,2)}, {v(CS[f],2)}, {v(NM+2*i,2)}, {v(A,2)} op_sel_hi:[1,0,1]")
                a(f"v_pk_fma_f32 {v(A+2,2)}, {v(CS[f]+2,2)}, {v(NM+2*i,2)}, {v(A+2,2)} op_sel_hi:[1,0,1]")
            for f in range(3):
                A = AC(i,f)
                a(f"v_pk_mul_f32 {v(A,2)}, {v(A,2)}, {v(NM+2*i,2)} op_sel:[0,1]")
            for f in range(3):
                A = AC(i,f)
                a(f"v_pk_mul_f32 {v(A,2)}, {v(A,2)}, {v(A+2,2)}")
            for f in range(3):
                A = AC(i,f)
                a(f"v_cvt_pk_bf16_f32 v{T+12*h+4*f+I}, v{A}, v{A+1}")
        a("s_nop 1")
        for f in range(3):
            r = T + 12*h + 4*f
            a(f"v_permlane16_swap_b32 v{r}, v{r+1}")
            a(f"v_permlane16_swap_b32 v{r+2}, v{r+3}")
        a("s_nop 1")
        for f in range(3):
            r = T + 12*h + 4*f
            a(f"v_permlane32_swap_b32 v{r}, v{r+2}")
            a(f"v_permlane32_swap_b32 v{r+1}, v{r+3}")
        both([f"buffer_store_dwordx4 {v(T+12*h+4*f,4)}, v{oaddr}, {W}, s{t0} offen offset:{256*f}" for f in range(3)])
        if h == 0: a(f"s_add_u32 s{t0}, s{t0}, {4*49152}")
    if UPTO < 5: return
    a(f"s_lshl_b32 s{t0}, s{rt}, 8")
    a(f"s_add_u32 s{t0}, s{t0}, {FL3}")
    a(f"s_lshl_b32 s{t1}, s{chunk}, 2")
    a(f"s_add_u32 s{sfl}, s{t0}, s{t1}")
    a(f"s_lshl_b32 s{t1}, s{wv}, 6")
    a(f"s_add_u32 s{spl}, s{t0}, s{t1}")
    rowsel(49152, 12288, KVO, GS-16*49152)
    P.stamp("p4s")
    flag(sfl, tmp3)
    P.stamp(9)
    for n in range(NIN, 60):
        for x in wdl(n): a(x)
    a("s_barrier")
    P.stamp("p5b")
    poll(spl, 16, tmp3)
    P.stamp("p5p")
    ACC = [112, 132, 152]
    xgemm(12, 14, 24, ACC, 176, WDF, int(os.environ.get('L5', '8')), [])
    P.stamp(10)
    addres(ACC[0], 176, 14)
    both([f"buffer_store_dwordx4 {v(RES,4)}, v{raddr}, {O_}, 0 offen",
          f"buffer_store_dwordx4 {v(RES+4,4)}, v{raddr}, {O_}, 0 offen offset:16",
          f"buffer_store_dwordx2 {v(RES+8,2)}, v{raddr}, {O_}, 0 offen offset:32"])
```

```python
from asmlib import *
from layout import *

def rest(c):
    a, P = c['a'], c['P']
    ag, both, flag, poll, WOF = c['ag'] if 'ag' in c else None, c['both'], c['flag'], c['poll'], c['WOF']
    import mg as mk
    ag = mk.ag; UPTO = mk.UPTO
    SW, SOUT, g, m, wv = c['SW'], c['SOUT'], c['g'], c['m'], c['wv']
    t0, t1, t2, t3, so = c['t0'], c['t1'], c['t2'], c['t3'], c['so']
    lane, voff, RES, raddr = c['lane'], c['voff'], c['RES'], c['raddr']
    tmp, tmp2, tmp3, tmp4 = c['tmp'], c['tmp2'], c['tmp3'], c['tmp4']
    W = f"s[{SW}:{SW+3}]"
    P1W = int(os.environ.get('P1W', '0')); WA = int(os.environ.get('WA', '1')); wd2 = 52
    rb64, nb, rbg, sfl, spl, wd_ = 40, 41, 42, 43, 44, 47
    hs = [45, 46]; hl = [48, 49]; chunk, rt = 50, 51
    CS = [136, 140, 152]; ONES = 156
    wr = [3, 4, 5]; rdv = 6; voff2 = 7
    mf16 = lambda D_, A_, B_, C_: f"v_mfma_f32_16x16x32_bf16 {v(D_,4)}, {A_}, {B_}, {C_}"
    def colsum(fs):
        for ks in range(20):
            for f in fs:
                a(mf16(CS[f], ag((ks*3+f)*4,4), v(ONES,4), "0" if ks == 0 else v(CS[f],4)))
    for i in range(4): a(f"v_mov_b32 v{ONES+i}, 0x3f803f80")
    a(f"s_and_b32 s{rb64}, s{m}, 3")
    a(f"s_lshr_b32 s{nb}, s{m}, 2")
    a(f"s_lshl_b32 s{rbg}, s{g}, 2")
    a(f"s_add_u32 s{rbg}, s{rbg}, s{rb64}")
    a(f"s_lshl_b32 s{rbg}, s{rbg}, 2")
    a(f"s_lshl_b32 s{t3}, s{c['qb']}, 2")
    a(f"s_add_u32 s{t3}, s{t3}, s{wv}")
    a(f"s_lshl_b32 s{t3}, s{t3}, 3")
    a(f"s_add_u32 s{t3}, s{t3}, s{g}")
    a(f"s_lshl_b32 s{t3}, s{t3}, 5")
    a(f"s_add_u32 s{t3}, s{t3}, s{rb64}")
    a(f"s_lshl_b32 s{t3}, s{t3}, 2")
    a(f"s_add_u32 s{sfl}, s{t3}, {FL1}")
    a(f"s_add_u32 s{t3}, s{rbg}, s{wv}")
    a(f"s_lshl_b32 s{t3}, s{t3}, 8")
    a(f"s_add_u32 s{spl}, s{t3}, {FL1}")
    colsum((0, 1))
    O_ = f"s[{SOUT}:{SOUT+3}]"
    def rowsel(stride, kq, base, gs=0):
        a(f"s_mul_i32 s{t2}, s{wv}, {kq}")
        if base: a(f"s_add_u32 s{t2}, s{t2}, {base}")
        if gs:
            a(f"s_mul_i32 s{t0}, s{g}, {gs}")
            a(f"s_add_u32 s{t2}, s{t2}, s{t0}")
        for j in range(4):
            a(f"s_add_u32 s{t0}, s{wv}, {j}")
            a(f"s_and_b32 s{t0}, s{t0}, 3")
            a(f"s_add_u32 s{t0}, s{t0}, s{rbg}")
            a(f"s_mul_i32 s{t0}, s{t0}, {stride}")
            a(f"s_add_u32 s{so[j]}, s{t0}, s{t2}")
    flag(sfl, tmp3, True)
    P.stamp(6)
    RP = [133, 134, 135]; rpa = 144
    def rpl(i, guard=True):
        if P1W < 2: return
        lq = a.label("nrp")
        if guard:
            a(f"s_cmp_lg_u32 s{wv}, 0")
            a(f"s_cbranch_scc1 {lq}")
        a(f"buffer_load_dword v{RP[i]}, v{rpa}, {W}, s{spl} offen sc1")
        if guard: a(f"{lq}:")
    if P1W == 2:
        a(f"v_and_b32 v{rpa}, 28, v{lane}")
        a(f"v_and_b32 v{rpa+1}, 3, v{lane}")
        a(f"v_lshlrev_b32 v{rpa}, 5, v{rpa}")
        a(f"v_lshl_add_u32 v{rpa}, v{rpa+1}, 2, v{rpa}")
    rpl(0)
    rowsel(1280, 2*GS, 0)
    OA = [128, 129, 130, 131, 132]
    a(f"v_lshrrev_b32 v{tmp}, 4, v{lane}")
    a(f"s_mov_b32 s{t0}, {163840-1280}")
    a(f"s_mov_b32 s{t1}, {GS-2*163840}")
    for s_ in range(5):
        a(f"v_add_u32 v{tmp2}, {4*s_}, v{tmp}")
        a(f"v_mul_u32_u24 v{tmp2}, 205, v{tmp2}")
        a(f"v_lshrrev_b32 v{tmp2}, 10, v{tmp2}")
        a(f"v_mad_u32_u24 v{OA[s_]}, v{tmp2}, s{t0}, v{voff}")
        a(f"v_lshrrev_b32 v{tmp2}, 1, v{tmp2}")
        a(f"v_mad_u32_u24 v{OA[s_]}, v{tmp2}, s{t1}, v{OA[s_]}")
    a(f"v_add_u32 v{OA[4]}, 4096, v{OA[4]}")
    for j in range(1, 4):
        a(f"s_add_u32 s{t0}, s{wv}, {j}")
        a(f"s_and_b32 s{t0}, s{t0}, 3")
        a(f"s_mul_i32 s{t0}, s{t0}, 15360")
        a(f"s_add_u32 s{t0}, s{t0}, {(j-1)*5120}")
        a(f"v_add_u32 v{wr[j-1]}, s{t0}, v{voff}")
    a(f"s_mul_i32 s{t0}, s{wv}, 15360")
    a(f"v_add_u32 v{rdv}, s{t0}, v{voff}")
    for gp in c['late']:
        for x in gp: a(x)
    if c['late']: a('s_waitcnt vmcnt(0)')
    assert P1W < 2 or not c['late']
    rpl(1)
    colsum((2,))
    if P1W == 2:
        lq = a.label("np1"); lp = a.label("rp")
        a(f"s_cmp_lg_u32 s{wv}, 0")
        a(f"s_cbranch_scc1 {lq}")
        rpl(2, False)
        a(f"s_mov_b32 s{c['spin']}, {mk.SPIN}")
        a(f"{lp}:")
        for i in range(3):
            a("s_waitcnt vmcnt(2)")
            a(f"v_cmp_ne_u32 vcc, s{c['nonce']}, v{RP[i]}")
            a(f"s_cbranch_vccz {lq}")
            rpl(i, False)
        a(f"s_sub_u32 s{c['spin']}, s{c['spin']}, 1")
        a(f"s_cbranch_scc0 {lp}")
        a(f"{lq}:")
        a("s_barrier")
    elif P1W:
        lq = a.label("np1")
        a(f"s_cmp_lg_u32 s{wv}, 0")
        a(f"s_cbranch_scc1 {lq}")
        poll(spl, 32, tmp3, True)
        a(f"{lq}:")
        a("s_barrier")
    else:
        a("s_barrier")
        poll(spl, 8, tmp3, True)
    P.stamp(7)
    def xgemm(KS, A0, NR, ACC, RD, wf, lead, pre, va=None):
        order = [(j, s) for j in (1, 2, 3, 0) for s in range(KS)]
        N = len(order)
        accs = {1: ACC[0], 2: ACC[1], 3: ACC[2], 0: ACC[0]}
        def ld(n):
            j, s = order[n]
            out = [f"buffer_load_dwordx4 {v(A0+4*(n%NR),4)}, v{va[s] if va else voff}, {W}, s{so[j]} offen offset:{1024*(s&3)} sc1"]
            if s & 3 == 3 and s + 1 < KS and not va: out.append(f"s_add_u32 s{so[j]}, s{so[j]}, 4096")
            return out
        for n in range(lead):
            for x in ld(n): a(x)
        for x in pre: a(x)
        bs = KS - 2 if KS == 5 else KS - 4
        rq = [f"ds_read_b128 {v(RD+4*q,4)}, v{rdv} offset:{1024*q}" for q in range(15)]
        for n, (j, s) in enumerate(order):
            a(f"s_waitcnt vmcnt({min(lead-1, N-1-n)})")
            P.stamp(f"g{KS}_{n}")
            pj = {2: 1, 3: 2, 0: 3}.get(j)
            for i in range(5):
                D_ = accs[j] + 4*i
                a(mf16(D_, wf(s*5+i), v(A0+4*(n%NR),4), "0" if s == 0 and j else v(D_,4)))
                if j == 3 and s < 2:
                    q = 5*s + i
                    a(f"v_lshlrev_b32 v{ACC[0]+2*q}, 16, v{RES+q}")
                    a(f"v_and_b32 v{ACC[0]+2*q+1}, 0xffff0000, v{RES+q}")
                if i == 0 and n + lead < N:
                    for x in ld(n+lead): a(x)
                if pj and s == 2:
                    a(f"ds_write_b128 v{wr[pj-1]}, {v(accs[pj]+4*i,4)} offset:{1024*i}")
                if j == 0 and s > bs:
                    for _ in range(3 // (KS-1-bs)): a(rq.pop(0))
            if j == 0 and s == bs:
                a("s_waitcnt lgkmcnt(0)")
                a("s_barrier")
        assert not rq
    def addres(ACC0, RD, U0):
        a("s_waitcnt lgkmcnt(5)")
        for j in range(10):
            a(f"v_pk_add_f32 {v(RD+2*j,2)}, {v(RD+2*j,2)}, {v(RD+20+2*j,2)}")
        a("s_waitcnt lgkmcnt(0)")
        for j in range(10):
            a(f"v_pk_add_f32 {v(ACC0+2*j,2)}, {v(ACC0+2*j,2)}, {v(RD+40+2*j,2)}")
        for j in range(10):
            a(f"v_pk_add_f32 {v(ACC0+2*j,2)}, {v(ACC0+2*j,2)}, {v(RD+2*j,2)}")
        for j in range(10):
            a(f"v_cvt_pk_bf16_f32 v{RES+j}, v{ACC0+2*j}, v{ACC0+2*j+1}")
    ACC = [64, 84, 104]
    ha, ha2, sta = 124, 125, 126
    pre = [f"v_and_b32 v{tmp}, 15, v{lane}", f"v_lshrrev_b32 v{tmp2}, 5, v{lane}", f"v_mul_u32_u24 v{tmp2}, 1280, v{tmp2}",
           f"v_lshl_add_u32 v{ha2}, v{tmp}, 4, v{tmp2}", f"v_bfe_u32 v{tmp2}, v{lane}, 4, 1",
           f"v_lshl_add_u32 v{ha}, v{tmp2}, 9, v{ha2}", f"v_lshl_add_u32 v{ha2}, v{tmp2}, 3, v{ha2}", f"v_lshlrev_b32 v{sta}, 4, v{tmp}",
           f"s_add_u32 s{t0}, s{rbg}, s{wv}", f"s_mul_i32 s{t1}, s{t0}, 20480", f"s_mul_i32 s{t2}, s{nb}, 2560",
           f"s_add_u32 s{hs[0]}, s{t1}, s{t2}",
           f"s_lshl_b32 s{t1}, s{t0}, 10", f"s_mul_i32 s{t2}, s{nb}, 136", f"s_and_b32 s{t2}, s{t2}, 0x308", f"s_add_u32 s{t1}, s{t1}, s{t2}", f"s_add_u32 s{hs[1]}, s{t1}, {WS_ST}",
           f"s_lshl_b32 s{t0}, s{t0}, 3", f"s_add_u32 s{t0}, s{t0}, s{nb}", f"s_lshl_b32 s{t0}, s{t0}, 2", f"s_add_u32 s{sfl}, s{t0}, {FL2}"]
    xgemm(5, 14, 12, ACC, 160, WOF, int(os.environ.get('L3', '6')), pre, OA)
    U0 = 14
    P.stamp("p3g")
    addres(ACC[0], 160, U0)
    A0 = ACC[0]
    both([f"buffer_store_dwordx4 {v(RES,4)}, v{ha}, {O_}, s{hs[0]} offen",
          f"buffer_store_dwordx4 {v(RES+4,4)}, v{ha}, {O_}, s{hs[0]} offen offset:256",
          f"buffer_store_dwordx2 {v(RES+8,2)}, v{ha2}, {O_}, s{hs[0]} offen offset:1024"])
    sm, sq = U0, U0+2
    a(f"v_pk_add_f32 {v(sm,2)}, {v(A0,2)}, {v(A0+2,2)}")
    a(f"v_pk_mul_f32 {v(sq,2)}, {v(A0,2)}, {v(A0,2)}")
    for j in range(1, 10):
        if j > 1: a(f"v_pk_add_f32 {v(sm,2)}, {v(sm,2)}, {v(A0+2*j,2)}")
        a(f"v_pk_fma_f32 {v(sq,2)}, {v(A0+2*j,2)}, {v(A0+2*j,2)}, {v(sq,2)}")
    a(f"v_add_f32 v{sm}, v{sm}, v{sm+1}")
    a(f"v_add_f32 v{sm+1}, v{sq}, v{sq+1}")
    for op in ("v_permlane32_swap_b32", "v_permlane16_swap_b32"):
        a(f"v_mov_b32 v{sq}, v{sm}")
        a(f"v_mov_b32 v{sq+1}, v{sm+1}")
        a("s_nop 1")
        a(f"{op} v{sq}, v{sm}")
        a(f"{op} v{sq+1}, v{sm+1}")
        a("s_nop 1")
        a(f"v_pk_add_f32 {v(sm,2)}, {v(sm,2)}, {v(sq,2)}")
    a(f"s_mov_b64 exec, 0xffff")
    both([f"buffer_store_dwordx2 {v(sm,2)}, v{sta}, {W}, s{hs[1]} offen"])
    a(f"s_mov_b64 exec, -1")
    if UPTO < 4: return
    a(f"s_bfe_u32 s{rt}, s{m}, 0x10001")
    a(f"s_lshl_b32 s{t0}, s{g}, 1")
    a(f"s_add_u32 s{rt}, s{rt}, s{t0}")
    a(f"s_lshl_b32 s{chunk}, s{nb}, 1")
    a(f"s_and_b32 s{t0}, s{m}, 1")
    a(f"s_add_u32 s{chunk}, s{chunk}, s{t0}")
    a(f"s_lshl_b32 s{chunk}, s{chunk}, 2")
    a(f"s_add_u32 s{chunk}, s{chunk}, s{wv}")
    a(f"s_lshl_b32 s{t0}, s{rt}, 8")
    a(f"s_lshl_b32 s{t1}, s{wv}, 6")
    a(f"s_add_u32 s{t0}, s{t0}, s{t1}")
    a(f"s_add_u32 s{spl}, s{t0}, {FL2}")
    a(f"s_mul_i32 s{hl[0]}, s{wv}, 40960")
    a(f"s_add_u32 s{hl[1]}, s{hl[0]}, 20480")
    a(f"s_mul_i32 s{t0}, s{rt}, 163840")
    P.stamp("p3s")
    flag(sfl, tmp3)
    P.stamp("p3f")
    a(f"s_add_u32 s{hs[0]}, s{hl[0]}, s{t0}")
    a(f"s_add_u32 s{hs[1]}, s{hl[1]}, s{t0}")
    a(f"s_mul_i32 s{wd_}, s{nb}, {48*5120}")
    a(f"s_mul_i32 s{t0}, s{wv}, {12*5120}")
    a(f"s_add_u32 s{wd_}, s{wd_}, s{t0}")
    a(f"s_add_u32 s{wd_}, s{wd_}, {WS_WD}")
    a(f"s_add_u32 s{wd2}, s{wd_}, {56*1024}")
    rdb = [92, 93, 94]; oaddr = 95; sta = 8
    HF = lambda b, i: 14 + b*32 + i*4
    def AC(i, f):
        n = i*3 + f
        return 160 + 4*n if n < 21 else 80 + 4*(n-21)
    ST = 96
    for i in range(3):
        a(f"v_add_u32 v{rdb[i]}, {i*61440}, v{voff}")
    a(f"v_and_b32 v{tmp}, 15, v{lane}")
    a(f"v_lshrrev_b32 v{tmp2}, 4, v{lane}")
    a(f"v_add_u32 v{sta}, 4096, v{voff}")
    a(f"v_mul_u32_u24 v{oaddr}, 49152, v{tmp2}")
    a(f"v_lshl_add_u32 v{oaddr}, v{tmp}, 4, v{oaddr}")
    a("s_barrier")
    poll(spl, 16, tmp3)
    P.stamp(8)
    def hgrp(u):
        o = (u & 1)*2048
        dm = lambda b, s: f"buffer_load_dwordx4 v{voff}, {O_}, s{hs[b]} offen offset:{o+1024*s} sc1 lds"
        out = []
        for b in range(2):
            out.append([f"s_mov_b32 m0, s{hl[b]}", "s_nop 0", dm(b, 0)])
            last = [dm(b, 1)]
            if u & 1: last += [f"s_add_u32 s{hs[b]}, s{hs[b]}, 4096", f"s_add_u32 s{hl[b]}, s{hl[b]}, 4096"]
            out.append(last)
        return out
    WDF = lambda n: ag(4*n + (12 if WA and n >= 57 else 0), 4)
    def wdl(n):
        if WA and n >= 57: return [f"buffer_load_dwordx4 {WDF(n)}, v{voff}, {W}, s{wd2} offen offset:{1024*(n&3)} sc1"]
        out = [f"buffer_load_dwordx4 {ag(4*n,4)}, v{voff}, {W}, s{wd_} offen offset:{1024*(n&3)} sc1"]
        if n & 3 == 3: out.append(f"s_add_u32 s{wd_}, s{wd_}, 4096")
        return out
    HU = int(os.environ.get('HU', '3'))
    for u in range(HU):
        for gp in hgrp(u):
            for x in gp: a(x)
    a(f"s_lshl_b32 s{t0}, s{rt}, 13")
    a(f"s_add_u32 s{t0}, s{t0}, {WS_ST}")
    def reads(ks, b):
        return [f"ds_read_b128 {v(HF(b,i),4)}, v{rdb[i//3]} offset:{(i%3)*20480 + ks*1024}" for i in range(8)]
    a(f"s_waitcnt vmcnt({4*(HU-1)})")
    a(f"s_barrier")
    P.stamp("kb")
    for x in reads(0, 0): a(x)
    NIN = 60 if WA else 48
    loads = {ks: [] for ks in range(20)}
    for u in range(HU, 10): loads[max(u-3, 0)] += hgrp(u)
    a(f"v_and_b32 v{tmp}, 7, v{lane}")
    a(f"v_lshlrev_b32 v{tmp}, 12, v{tmp}")
    a(f"s_lshl_b32 s{t3}, s{wv}, 3")
    a(f"s_add_u32 s{t3}, s{t3}, s{g}")
    a(f"s_lshl_b32 s{t3}, s{t3}, 7")
    a(f"s_add_u32 s{t3}, s{t3}, {FL1}")
    kld, kck = c['pollw'](t3, 4, 128, tmp, False)
    loads[6].insert(0, kld)
    loads[7] += [[f"buffer_load_dwordx4 {v(ST+4*i,4)}, v{sta if i > 3 else voff}, {W}, s{t0} offen offset:{1024*(i&3)} sc1"] for i in range(8)]
    for p_, n in enumerate(([57, 58, 59] if WA else []) + list(range(min(NIN, 57)))):
        ks = 8 + p_*12//NIN
        assert n < 3*ks or n >= 57
        loads[ks].append(wdl(n))
    sl = [f"s_waitcnt vmcnt({sum(len(loads[k]) for k in range(8, 12))})"]; a_ = sl.append
    for i in range(8): [a_(f"v_add_f32 v{ST+4*i+q}, v{ST+4*i+q}, v{ST+4*i+2+q}") for q in range(2)]
    for op, n in (("v_permlane32_swap_b32", 4), ("v_permlane16_swap_b32", 2)):
        a_("s_nop 1")
        for i in range(n):
            for q in range(2): a_(f"{op} v{ST+4*i+q}, v{ST+4*(i+n)+q}")
        a_("s_nop 1")
        for i in range(n): [a_(f"v_add_f32 v{ST+4*i+q}, v{ST+4*i+q}, v{ST+4*(i+n)+q}") for q in range(2)]
    NM = 104; R2 = 105; T = 48
    for j in range(2):
        b = ST + 4*j
        a_(f"v_mul_f32 v{b}, {f32(-1.0/D)}, v{b}")
        a_(f"v_mul_f32 v{b+1}, {f32(1.0/D)}, v{b+1}")
        a_(f"v_fma_f32 v{b+1}, -v{b}, v{b}, v{b+1}")
        a_(f"v_max_f32 v{b+1}, 0, v{b+1}")
        a_(f"v_add_f32 v{b+1}, {f32(EPS)}, v{b+1}")
        a_(f"v_rcp_f32 v{b+1}, v{b+1}")
    a_("s_nop 0")
    rr = lambda dst, j: [dst + 2*(2*q + j) for q in range(4)]
    for j in range(2):
        for (src, dst) in ((ST+4*j, NM), (ST+4*j+1, R2)):
            r = rr(dst, j)
            a_(f"v_mov_b32 v{r[0]}, v{src}")
            a_(f"v_mov_b32 v{r[1]}, v{src}")
    a_("s_nop 1")
    for j in range(2):
        for dst in (NM, R2):
            r = rr(dst, j)
            a_(f"v_permlane16_swap_b32 v{r[0]}, v{r[1]}")
    a_("s_nop 0")
    for j in range(2):
        for dst in (NM, R2):
            r = rr(dst, j)
            a_(f"v_mov_b32 v{r[2]}, v{r[0]}")
            a_(f"v_mov_b32 v{r[3]}, v{r[1]}")
    a_("s_nop 1")
    for j in range(2):
        for dst in (NM, R2):
            r = rr(dst, j)
            a_(f"v_permlane32_swap_b32 v{r[0]}, v{r[2]}")
            a_(f"v_permlane32_swap_b32 v{r[1]}, v{r[3]}")
    assert not any("pk_" in x for x in sl)
    fill = {ks: sl[(ks-12)*len(sl)//7:(ks-11)*len(sl)//7] for ks in range(12, 19)}
    for ks in range(20):
        b = ks & 1
        mf = [mf16(AC(i,f), ag((ks*3+f)*4,4), v(HF(b,i),4), "0" if ks == 0 else v(AC(i,f),4)) for i in range(8) for f in range(3)]
        rd = reads(ks+1, b^1) if ks < 19 else []
        ld = loads[ks]
        if os.environ.get('NOWD') and ks >= 8: ld = []
        a("s_waitcnt lgkmcnt(0)")
        seq = []
        bar = {**({1: 4} if HU == 3 else {1: 8, 3: 12}), 5: 8, 11: 8 + sum(len(loads[k]) for k in range(8, 11))}.get(ks)
        if bar is not None:
            seq += mf[:2] + [f"s_waitcnt vmcnt({bar})"] + (kck if ks == 11 else []) + ["s_barrier"]
            k0 = 2
        else:
            k0 = 0
        for i in range(8):
            seq.append(mf[k0+i])
            if rd: seq.append(rd[i])
        rest_ = mf[k0+8:]
        k = 0
        for i, x in enumerate(rest_):
            seq.append(x)
            while k < len(ld) and k*len(rest_) <= i*len(ld):
                seq += ld[k]; k += 1
        assert k == len(ld)
        if ks >= 12:
            out = []
            if ks == 12: out.append(sl.pop(0))
            for n_, x in enumerate(seq):
                out.append(x)
                if x.startswith("v_mfma") and (n_ + 1 == len(seq) or seq[n_+1].startswith("v_mfma")):
                    while sl:
                        out.append(sl.pop(0))
                        if not out[-1].startswith("s_nop"): break
            seq = out
        for x in seq: a(x)
        P.stamp(f"k{ks}")
    assert not sl
    P.stamp(11)
    a(f"s_mul_i32 s{t0}, s{rt}, {8*49152}")
    a(f"s_mul_i32 s{t1}, s{chunk}, 768")
    a(f"s_add_u32 s{t0}, s{t0}, s{t1}")
    a(f"s_mul_i32 s{t1}, s{g}, {GS-16*49152}")
    a(f"s_add_u32 s{t0}, s{t0}, s{t1}")
    a(f"s_add_u32 s{t0}, s{t0}, {KVO}")
    for h in range(2):
        for I in range(4):
            i = 4*h + I
            for f in range(3):
                A = AC(i,f)
                a(f"v_pk_fma_f32 {v(A,2)}, {v(CS[f],2)}, {v(NM+2*i,2)}, {v(A,2)} op_sel_hi:[1,0,1]")
                a(f"v_pk_fma_f32 {v(A+2,2)}, {v(CS[f]+2,2)}, {v(NM+2*i,2)}, {v(A+2,2)} op_sel_hi:[1,0,1]")
            for f in range(3):
                A = AC(i,f)
                a(f"v_pk_mul_f32 {v(A,2)}, {v(A,2)}, {v(NM+2*i,2)} op_sel:[0,1]")
            for f in range(3):
                A = AC(i,f)
                a(f"v_pk_mul_f32 {v(A,2)}, {v(A,2)}, {v(A+2,2)}")
            for f in range(3):
                A = AC(i,f)
                a(f"v_cvt_pk_bf16_f32 v{T+12*h+4*f+I}, v{A}, v{A+1}")
        a("s_nop 1")
        for f in range(3):
            r = T + 12*h + 4*f
            a(f"v_permlane16_swap_b32 v{r}, v{r+1}")
            a(f"v_permlane16_swap_b32 v{r+2}, v{r+3}")
        a("s_nop 1")
        for f in range(3):
            r = T + 12*h + 4*f
            a(f"v_permlane32_swap_b32 v{r}, v{r+2}")
            a(f"v_permlane32_swap_b32 v{r+1}, v{r+3}")
        both([f"buffer_store_dwordx4 {v(T+12*h+4*f,4)}, v{oaddr}, {W}, s{t0} offen offset:{256*f}" for f in range(3)])
        if h == 0: a(f"s_add_u32 s{t0}, s{t0}, {4*49152}")
    if UPTO < 5: return
    a(f"s_lshl_b32 s{t0}, s{rt}, 8")
    a(f"s_add_u32 s{t0}, s{t0}, {FL3}")
    a(f"s_lshl_b32 s{t1}, s{chunk}, 2")
    a(f"s_add_u32 s{sfl}, s{t0}, s{t1}")
    a(f"s_lshl_b32 s{t1}, s{wv}, 6")
    a(f"s_add_u32 s{spl}, s{t0}, s{t1}")
    rowsel(49152, 12288, KVO, GS-16*49152)
    P.stamp("p4s")
    CO = int(os.environ.get('CO', '1'))
    if CO:
        a(f"v_readfirstlane_b32 s{wd2}, v{raddr}")
        a(f"s_mul_i32 s{t0}, s{wv}, 15360")
        a(f"s_movk_i32 s{t1}, {1280-160}")
        for k in range(3):
            a(f"v_add_u32 v239, {64*k}, v{lane}")
            a(f"v_min_u32 v239, 159, v239")
            a(f"v_mul_u32_u24 v240, 205, v239")
            a(f"v_lshrrev_b32 v240, 11, v240")
            a(f"v_lshlrev_b32 v239, 4, v239")
            a(f"v_mad_u32_u24 v{236+k}, v240, s{t1}, v239")
        a(f"v_and_b32 v240, 15, v{lane}")
        a(f"v_lshrrev_b32 v241, 4, v{lane}")
        a(f"v_lshl_add_u32 v240, v240, 2, v241")
        a(f"v_mul_u32_u24 v240, 40, v240")
        a(f"v_add_u32 v239, s{t0}, v240")
    flag(sfl, tmp3)
    P.stamp(9)
    for n in range(NIN, 60):
        for x in wdl(n): a(x)
    a("s_barrier")
    P.stamp("p5b")
    poll(spl, 16, tmp3)
    P.stamp("p5p")
    ACC = [112, 132, 152]
    xgemm(12, 14, 24, ACC, 176, WDF, int(os.environ.get('L5', '8')), [])
    P.stamp(10)
    addres(ACC[0], 176, 14)
    if CO:
        for k in range(5): a(f"ds_write_b64 v239, {v(RES+2*k,2)} offset:{8*k}")
        a("s_waitcnt lgkmcnt(0)")
        for k in range(3): a(f"ds_read_b128 {v(14+4*k,4)}, v{rdv} offset:{1024*k}")
        st = []
        for k in range(3):
            st += [f"s_waitcnt lgkmcnt({2-k})"] + (["s_mov_b32 exec_hi, 0"] if k == 2 else []) + [f"buffer_store_dwordx4 {v(14+4*k,4)}, v{236+k}, {O_}, s{wd2} offen"]
        both(st + ["s_mov_b64 exec, -1"])
        return
    both([f"buffer_store_dwordx4 {v(RES,4)}, v{raddr}, {O_}, 0 offen",
          f"buffer_store_dwordx4 {v(RES+4,4)}, v{raddr}, {O_}, 0 offen offset:16",
          f"buffer_store_dwordx2 {v(RES+8,2)}, v{raddr}, {O_}, 0 offen offset:32"])
```
